```python
import torch

def _softmax(x, axis=-1):
    return torch.softmax(x, dim=axis)
def _gelu(x):
    return torch.nn.functional.gelu(x, approximate="tanh")
def _silu(x):
    return torch.nn.functional.silu(x)
def _sigmoid(x):
    return torch.sigmoid(x)
def _layernorm(x, axis=-1, eps=1e-5):
    m = x.mean(dim=axis, keepdim=True)
    v = x.var(dim=axis, keepdim=True, unbiased=False)
    return (x - m) / torch.sqrt(v + eps)
def _scatter_add(tgt, idx, src, axis=0):
    return tgt.clone().index_add_(axis, idx, src)
def _segment_sum(src, seg, n):
    out = torch.zeros((n,) + src.shape[1:], dtype=src.dtype)
    return out.index_add_(0, seg, src)
def _pad(x, pw):
    flat = tuple(v for pair in reversed(pw) for v in pair)
    return torch.nn.functional.pad(x, flat)

kernel_name = 'interleave_layers__softmax_full_mha__mixer_channel_mlp__prompt'

def setup_inputs():

    _w = (lambda a: (lambda t: t.to(torch.bfloat16) if t.is_floating_point() else t)(torch.as_tensor(a)))
    def _A_setup():
        B, S, D = 1, 2048, 640
        return {
            "x": _w((lambda *s: torch.randn(*s, dtype=torch.bfloat16) * 0.05)(B, S, D)),
            "wqkv": _w((lambda *s: torch.randn(*s, dtype=torch.bfloat16) * 0.05)(D, 3 * D)),
            "wo": _w((lambda *s: torch.randn(*s, dtype=torch.bfloat16) * 0.05)(D, D)),
        }
    _A_in = _A_setup()

    def _B_setup():
        B, S, D, F = 1, 2048, 640, 1536
        return {
            "x": _w((lambda *s: torch.randn(*s, dtype=torch.bfloat16) * 0.05)(B, S, D)),
            "w1": _w((lambda *s: torch.randn(*s, dtype=torch.bfloat16) * 3.2)(D, F) * (D ** -0.5)),
            "b1": _w((lambda *s: torch.randn(*s, dtype=torch.bfloat16) * 0.8)(F)),
            "w2": _w((lambda *s: torch.randn(*s, dtype=torch.bfloat16) * 0.4)(F, D) * (F ** -0.5)),
            "b2": _w((lambda *s: torch.randn(*s, dtype=torch.bfloat16) * 0.4)(D)),
        }
    _B_in = _B_setup()

    return {
        "A_x": _A_in["x"],
        "A_wqkv": _A_in["wqkv"],
        "A_wo": _A_in["wo"],
        "B_x": _B_in["x"],
        "B_w1": _B_in["w1"],
        "B_b1": _B_in["b1"],
        "B_w2": _B_in["w2"],
        "B_b2": _B_in["b2"],
    }

def reference(A_x, A_wqkv, A_wo, B_x, B_w1, B_b1, B_w2, B_b2):
    def _A_ref(x, wqkv, wo):
        B, S, D = x.shape
        H = 32; Dh = D // H
        qkv = (lambda x, *d: x.permute(*d))((x @ wqkv).reshape(B, S, 3, H, Dh), 2, 0, 3, 1, 4)
        q, k, v = qkv[0], qkv[1], qkv[2]
        scale = Dh ** -0.5
        scores = torch.einsum("bhqd,bhkd->bhqk", q, k) * scale
        p = _softmax(scores, axis=-1)
        o = torch.einsum("bhqk,bhkd->bhqd", p, v)
        return (lambda x, *d: x.permute(*d))(o, 0, 2, 1, 3).reshape(B, S, D) @ wo

    def _B_ref(x, w1, b1, w2, b2):
        y = _layernorm(x, axis=-1)
        h = _gelu(torch.einsum("bsd,df->bsf", y, w1) + b1)
        return torch.einsum("bsf,fd->bsd", h, w2) + b2

    x = A_x
    x = x + _A_ref(_layernorm(x, axis=-1), A_wqkv, A_wo)
    x = x + _B_ref(_layernorm(x, axis=-1), B_w1, B_b1, B_w2, B_b2)
    x = x + _A_ref(_layernorm(x, axis=-1), A_wqkv, A_wo)
    x = x + _B_ref(_layernorm(x, axis=-1), B_w1, B_b1, B_w2, B_b2)
    return x
```

```python
class Asm:
    def __init__(self):
        self.L = []
        self.uid = 0
    def __call__(self, s):
        for line in s.strip("\n").split("\n"):
            line = line.strip()
            if not line: continue
            if line.endswith(":") or line.startswith("."):
                self.L.append(line)
            else:
                self.L.append("    " + line)
    def c(self, s):
        self.L.append("    ; " + s)
    def label(self, base):
        self.uid += 1
        return f"L_{base}_{self.uid}"
    def text(self):
        return "\n".join(self.L) + "\n"

def vr(b, n=1):
    return f"v{b}" if n == 1 else f"v[{b}:{b+n-1}]"
def sr(b, n=1):
    return f"s{b}" if n == 1 else f"s[{b}:{b+n-1}]"

def kernel_begin(a, name):
    a(f".globl {name}\n.p2align 8\n.type {name},@function\n{name}:")

def kd(name, vgpr, sgpr=96):
    acc = min(256, (vgpr + 3)//4*4)
    return f""".amdhsa_kernel {name}
  .amdhsa_next_free_vgpr {vgpr}
  .amdhsa_next_free_sgpr {sgpr}
  .amdhsa_accum_offset {acc}
  .amdhsa_group_segment_fixed_size 0
  .amdhsa_kernarg_size 88
  .amdhsa_user_sgpr_count 2
  .amdhsa_user_sgpr_kernarg_segment_ptr 1
  .amdhsa_system_sgpr_workgroup_id_x 1
  .amdhsa_float_denorm_mode_32 3
.end_amdhsa_kernel
"""

def srd(a, d, base, nbytes):
    a(f"""s_mov_b32 s{d}, s{base}
s_and_b32 s{d+1}, s{base+1}, 0xffff
s_mov_b32 s{d+2}, {nbytes}
s_mov_b32 s{d+3}, 0x20000""")
```

```python
S, D, F, H, DH = 2048, 640, 1536, 32, 20
FLAGS  = 0x000000
XCC    = 0x010000
ZERO_BYTES = 0x10800
PROF   = 0x020000
AUXQ   = 0x040000
AUX1   = 0x048000
STAT   = [0x100000 + i*0x40000 for i in range(4)]
WQKV_F = 0x200000
WO_F   = 0x480000
W1_F   = 0x580000
W2_F   = 0x780000
XF0    = 0x980000
X1F    = [0xC00000, 0x1100000]
X2F    = 0xE80000
OF     = [0x1380000, 0x1600000]
HF     = [0x1880000, 0x1E80000]
QKV    = [0x2480000, 0x2C00000]
PROF   = 0x3400000
WS_USED = 0x3500000
CH = 20480
NSLOT = 7
MISC = NSLOT*CH
LDS_BYTES = 163840
```

```python
import math, struct
from dsl import *
from layout import *

OOB = 0x40000000
def f2u(x): return struct.unpack("<I", struct.pack("<f", x))[0]
QSCALE = DH ** -0.5 * math.log2(math.e)
EPS = 1e-5

sWS, sOUT, sB2 = 4, 8, 12
sWAVE, sG, sJ, sSLOW = 16, 17, 18, 19
sQIN, sQOUT, sRES, sFLG, sXCA, sLAST = 20, 21, 22, 23, 24, 25
sSTQ, sACTQ, sNOPOLL, sXCC = 26, 27, 28, 29
sOF, sX1F, sHF, sST1 = 30, 31, 32, 33
sCB, sRB, sCB2, sRB2 = 34, 35, 36, 37
sKH, sT2, sTL = 38, 39, 40
sSRC, sC, sSLOT, sLDW = 41, 42, 43, 44
sWO, sW1, sW2, sWQ = 45, 46, 47, 48
sT = 50
sPROF = 60
sQA = 84
sKID = 98
vLANE, vL16, vSW, vTL, vH = 1, 2, 3, 4, 5
vK1, vK2, vV0, vV1 = 6, 7, 8, 9
vB0, vB1, vB2 = 6, 7, 8
vP0, vP1, vP2 = 9, 10, 11
vT = 12
Q1, Q2, K1, K2, V0, V1, P, SS, O = 16, 20, 24, 28, 32, [36, 40], 44, [52, 68], 84
vBK1, vBK2, vBV0, vBV1, vMK, vMV, vXC = 100, 101, 102, 103, 104, 105, 106
AUXB, AUXA, WF, ACC, ACT, STT = 38, 40, 48, 64, 128, 192
RA0, RA2, RA1 = 208, 224, 240
NACT = 16

class VM:
    def __init__(self): self.q = []
    def issue(self, tag): self.q.append(tag)
    def need(self, tag):
        if tag not in self.q: return None
        i = len(self.q) - 1 - self.q[::-1].index(tag)
        n = len(self.q) - 1 - i
        self.q = self.q[i+1:]
        return n
    def drain(self): self.q = []

class Gen:
    def __init__(self, a, prof):
        self.a = a; self.prof = prof
        self.bar = []
        self.acq = 8
        self.left = {}
        self.dsq = []
        self.freed = set()
        self.vm = VM()
        self.basechunk = {}

    def stamp(self, i):
        if self.prof: self.a(f"s_memtime s[{sPROF+2*i}:{sPROF+2*i+1}]")

    def barrier(self, need=None):
        fr = [c for c, n in sorted(self.left.items()) if n == 0 and c not in self.dsq and c not in self.freed]
        self.freed |= set(fr)
        self.bar.append(dict(need=need, free=fr))
        self.a("s_barrier")
        if need is not None: self.acq = need
    def lgkm(self, n):
        self.a(f"s_waitcnt lgkmcnt({n})")
        if len(self.dsq) > n: self.dsq = self.dsq[len(self.dsq)-n:] if n else []
    def wread(self, dst, chunk, kind, off):
        a = self.a
        if chunk > self.acq:
            assert chunk == self.acq + 1
            self.barrier(chunk)
        if self.basechunk.get(kind) != chunk:
            a(f"v_add_u32 v{vB0+kind}, {(chunk % NSLOT)*CH}, v{vP0+kind}")
            self.basechunk[kind] = chunk
        a(f"ds_read_b128 {vr(dst,4)}, v{vB0+kind} offset:{off}")
        self.left[chunk] -= 1
        self.dsq.append(chunk)

    def poll(self, phase, nslots):
        a = self.a
        lp, ld = a.label("poll"), a.label("polld")
        mask = (1 << nslots) - 1
        a(f"""
s_lshl_b32 s{sT}, s{sTL}, 7
s_add_u32 s{sT}, s{sT}, s{sFLG}
s_add_u32 s{sT}, s{sT}, {phase*8192}
v_and_b32 v{vT}, 31, v{vLANE}
v_lshlrev_b32 v{vT}, 2, v{vT}
s_mov_b32 s{sT+1}, 0x100000
{lp}:
buffer_load_dword v{vT+1}, v{vT}, s[{sWS}:{sWS+3}], s{sT} offen sc1
s_sub_u32 s{sT+1}, s{sT+1}, 1
s_cbranch_scc1 {ld}
s_waitcnt vmcnt(0)
v_cmp_eq_u32 vcc, 0, v{vT+1}
s_and_b32 s{sT+2}, vcc_lo, {mask:#x}
s_cbranch_scc1 {lp}
{ld}:
s_waitcnt vmcnt(0)
""")
        ls = a.label("noinv")
        a(f"""
s_cmp_eq_u32 s{sSLOW}, 0
s_cbranch_scc1 {ls}
buffer_inv sc1
s_waitcnt vmcnt(0)
{ls}:
""")
        self.vm.drain()

    def publish(self, phase, slot_sreg, vmn=0):
        a = self.a
        l1, l2 = a.label("pubslow"), a.label("pubdone")
        a(f"""
s_lshl_b32 s{sT}, s{sTL}, 7
s_add_u32 s{sT}, s{sT}, s{sFLG}
s_add_u32 s{sT}, s{sT}, {phase*8192}
s_lshl_b32 s{sT+1}, s{slot_sreg}, 2
s_add_u32 s{sT}, s{sT}, s{sT+1}
v_mov_b32 v{vT}, 0
v_mov_b32 v{vT+1}, 1
s_cmp_lg_u32 s{sSLOW}, 0
s_cbranch_scc1 {l1}
s_waitcnt vmcnt({vmn})
s_mov_b64 exec, 1
buffer_store_dword v{vT+1}, v{vT}, s[{sWS}:{sWS+3}], s{sT} offen
s_branch {l2}
{l1}:
s_waitcnt vmcnt(0)
buffer_wbl2 sc1
s_waitcnt vmcnt(0)
s_mov_b64 exec, 1
buffer_store_dword v{vT+1}, v{vT}, s[{sWS}:{sWS+3}], s{sT} offen sc1
{l2}:
s_mov_b64 exec, -1
""")
        self.vm.drain(); self.vm.issue("flag")

    def gemm(self, nsteps, accs, frag, act_ks, sact, cinit, hooks, pre_stats=None):
        a = self.a; nt = len(accs)
        cur = [None]
        def aload(s):
            ks = act_ks(s)
            if cur[0] != ks // 4:
                cur[0] = ks // 4
                a(f"s_add_u32 s{sT+3}, s{sact}, {(ks//4)*4096}")
            a(f"buffer_load_dwordx4 {vr(ACT+4*(s%NACT),4)}, v{vL16}, s[{sWS}:{sWS+3}], s{sT+3} offen offset:{(ks%4)*1024} sc1")
            self.vm.issue(("act", s))
        npre = min(NACT-1, nsteps)
        for s in range(npre):
            aload(s)
            if s == 3 and pre_stats: pre_stats()
        for s in range(nsteps):
            n = self.vm.need(("act", s))
            if n is not None: a(f"s_waitcnt vmcnt({n})")
            for j in range(nt):
                nout = min(nt-1, (nsteps-1-s)*nt + (nt-1-j))
                self.lgkm(nout)
                c = "0" if (s == 0 and not cinit[j]) else vr(accs[j], 16)
                a(f"v_mfma_f32_32x32x16_bf16 {vr(accs[j],16)}, {vr(WF+4*j,4)}, {vr(ACT+4*(s%NACT),4)}, {c}")
                if s+1 < nsteps:
                    self.wread(WF+4*j, *frag(s+1, j))
                if j == 1 and s + npre < nsteps:
                    aload(s + npre)
                for h in hooks.get((s, j), []):
                    h()

    def first_w(self, nt, frag):
        for j in range(nt):
            self.wread(WF+4*j, *frag(0, j))

    def stats_load(self, sbase):
        a = self.a
        def f():
            a(f"s_lshl_b32 s{sT+4}, s{sG}, 15\ns_lshl_b32 s{sT+5}, s{sTL}, 12\ns_add_u32 s{sT+4}, s{sT+4}, s{sT+5}\ns_add_u32 s{sT+4}, s{sT+4}, s{sbase}")
            for q in range(4):
                a(f"buffer_load_dwordx4 {vr(STT+4*q,4)}, v{vL16}, s[{sWS}:{sWS+3}], s{sT+4} offen offset:{1024*q} sc1")
                self.vm.issue(("st", q))
        return f

    def stats_math(self, double):
        a = self.a
        def h0():
            n = self.vm.need(("st", 3))
            if n is not None: a(f"s_waitcnt vmcnt({n})")
            for q in range(4):
                a(f"v_pk_add_f32 {vr(STT+2*q,2)}, {vr(STT+2*q,2)}, {vr(STT+8+2*q,2)}")
        def h1():
            a(f"""v_pk_add_f32 {vr(STT,2)}, {vr(STT,2)}, {vr(STT+4,2)}
v_pk_add_f32 {vr(STT+2,2)}, {vr(STT+2,2)}, {vr(STT+6,2)}
v_pk_add_f32 {vr(STT,2)}, {vr(STT,2)}, {vr(STT+2,2)}
v_add_f32 v{STT}, v{STT}, v{STT+1}""")
        def h2():
            a(f"""v_mul_f32 v{STT}, {f2u(1.0/D):#x}, v{STT}
v_mov_b32 v{STT+1}, v{STT}
s_nop 1
v_permlane32_swap_b32 v{STT}, v{STT+1}""")
        def h3():
            a(f"""v_fma_f32 v{STT+1}, -v{STT}, v{STT}, v{STT+1}
v_max_f32 v{STT+1}, 0, v{STT+1}
v_add_f32 v{STT+2}, {f2u(EPS):#x}, v{STT+1}
v_rsq_f32 v16, v{STT+2}""")
        def h4():
            if double:
                a(f"""v_mul_f32 v{STT+3}, v16, v16
v_mul_f32 v{STT+3}, v{STT+3}, v{STT+1}
v_add_f32 v{STT+3}, {f2u(EPS):#x}, v{STT+3}
v_rsq_f32 v{STT+3}, v{STT+3}
s_nop 0
v_mul_f32 v16, v16, v{STT+3}""")
            a(f"v_rcp_f32 v17, v16")
        def h5():
            a(f"""v_cmp_gt_u32 vcc, 32, v{vLANE}
v_sub_f32 v{STT+4}, 0, v{STT}
s_nop 0
v_cndmask_b32 v{STT+4}, v17, v{STT+4}, vcc
v_and_b32 v{STT+5}, 0xffff0000, v{STT+4}
v_sub_f32 v{STT+6}, v{STT+4}, v{STT+5}""")
        def h6():
            a(f"""v_lshrrev_b32 v{STT+5}, 16, v{STT+5}
v_and_or_b32 v{AUXB}, v{STT+6}, v18, v{STT+5}
v_cndmask_b32 v{AUXB+1}, 0, v{STT+5}, vcc""")
        return [h0, h1, h2, h3, h4, h5, h6]

    def aux_load(self, base, nt):
        a = self.a
        a(f"""s_lshl_b32 s{sT}, s{sCB2}, 11
s_add_u32 s{sT}, s{sT}, {base}
v_lshlrev_b32 v{vT}, 3, v{vLANE}
v_mov_b32 v18, 0xffff0000""")
        for j in range(nt):
            a(f"buffer_load_dwordx2 {vr(AUXA+2*j,2)}, v{vT}, s[{sWS}:{sWS+3}], s{sT} offen offset:{512*j}")
            self.vm.issue(("aux", j))

    def aux_hooks(self, hooks, nt, accs, double, s0):
        a = self.a
        hs = self.stats_math(double)
        pos = [(s0 + k // nt, k % nt) for k in range(len(hs) + 1 + nt)]
        for k, h in enumerate(hs):
            hooks.setdefault(pos[k], []).append(h)
        for j in range(nt):
            s, jj = s0 + (len(hs) + nt) // nt + 1, j
            def mk(j):
                def f():
                    n = self.vm.need(("aux", j))
                    if n is not None: a(f"s_waitcnt vmcnt({n})")
                    a(f"v_mfma_f32_32x32x8_bf16 {vr(accs[j],16)}, {vr(AUXA+2*j,2)}, {vr(AUXB,2)}, {vr(accs[j],16)}")
                return f
            hooks.setdefault((s, jj), []).append(mk(j))

    def set_tl_128(self):
        a = self.a
        a(f"""s_lshl_b32 s{sTL}, s{sRB2}, 2
s_add_u32 s{sTL}, s{sTL}, s{sWAVE}""")
    def set_tl_64(self):
        a = self.a
        a(f"""s_lshl_b32 s{sTL}, s{sRB}, 1
s_add_u32 s{sTL}, s{sTL}, s{sT2}""")
    def tt_off(self, dst, base_sreg, tile_bytes):
        a = self.a
        a(f"""s_lshl_b32 s{dst}, s{sG}, 3
s_add_u32 s{dst}, s{dst}, s{sTL}
s_mul_i32 s{dst}, s{dst}, {tile_bytes}
s_add_u32 s{dst}, s{dst}, s{base_sreg}""")

    def phase_qkv(self, c0):
        a = self.a
        a.c("================ QKV phase")
        for c in range(8): self.left[c0+c] = 20
        self.basechunk = {}
        def frag(s, j):
            c, u = divmod(s, 5)
            return (c0+c, 0, (u*3+j)*1024) if j < 3 else (c0+c, 1, 15360 + u*768)
        self.set_tl_128()
        a(f"""v_mov_b32 v{vP0}, v{vL16}
v_and_b32 v{vT}, 31, v{vLANE}
v_subrev_u32 v{vT+1}, 24, v{vT}
v_min_u32 v{vT}, v{vT}, v{vT+1}
v_lshlrev_b32 v{vT}, 4, v{vT}
v_mul_u32_u24 v{vP1}, 384, v{vH}
v_add_u32 v{vP1}, v{vP1}, v{vT}""")
        self.aux_load(AUXQ, 4)
        self.first_w(4, frag)
        lsk = a.label("nopoll")
        a(f"s_cmp_lg_u32 s{sNOPOLL}, 0\ns_cbranch_scc1 {lsk}")
        sav = list(self.vm.q)
        self.poll(3, 16)
        self.vm.q = sav
        a(f"{lsk}:")
        self.stamp(8)
        self.tt_off(sT+6, sACTQ, 40960)
        accs = [ACC+16*j for j in range(4)]
        hooks = {}
        self.aux_hooks(hooks, 4, accs, False, 6)
        def mkaddr(jj):
            def f():
                b = sQA + 1 + 4*jj
                a(f"""s_mul_i32 s{sT+7}, s{sCB2}, 6
s_add_u32 s{sT+7}, s{sT+7}, {2*jj}
s_lshr_b32 s{sT+8}, s{sT+7}, 1
s_add_u32 s{sT+8}, s{sT+8}, 32
s_and_b32 s{sT+9}, s{sT+7}, 31
s_cmp_lt_u32 s{sT+7}, 32
s_cselect_b32 s{sT+8}, s{sT+8}, s{sT+9}
s_cselect_b32 s{b+3}, 8, 163840
s_cselect_b32 s{b+1}, 1024, s{b+3}
s_cselect_b32 s{sT+9}, {f2u(QSCALE):#x}, 1.0
v_mul_f32 v{20+2*jj}, s{sT+9}, v16
s_mul_i32 s{sT+8}, s{sT+8}, 163840
s_add_u32 s{sT+8}, s{sT+8}, s{sQA}
s_cmp_ge_u32 s{sT+7}, 64
s_cselect_b32 s{b}, 1024, 0
s_cselect_b32 s{b+2}, 8, 0
s_add_u32 s{b}, s{b}, s{sT+8}
s_add_u32 s{b+2}, s{b+2}, s{sT+8}
s_add_u32 s{b+1}, s{b+1}, s{b}
v_mul_lo_u32 v{26+jj}, s{b+3}, v{vH}
v_add_u32 v{26+jj}, v{26+jj}, v{vTL}""")
            return f
        def base84():
            self.tt_off(sQA, sQOUT, 2560)
        hooks.setdefault((20, 0), []).append(base84)
        for jj in range(3):
            hooks.setdefault((21+jj, 0), []).append(mkaddr(jj))
        self.gemm(40, accs, frag, lambda s: s, sT+6, [False]*4, hooks, pre_stats=self.stats_load(sSTQ))
        self.stamp(9)
        a("s_nop 7")
        for jj in range(3):
            b = sQA + 1 + 4*jj
            for hf in range(2):
                r = ACC + 16*jj + 8*hf
                for k in range(4):
                    a(f"v_pk_mul_f32 {vr(r+2*k,2)}, {vr(r+2*k,2)}, {vr(20+2*jj,2)} op_sel_hi:[1,0]")
                for k in range(4):
                    a(f"v_cvt_pk_bf16_f32 v{r+k}, v{r+2*k}, v{r+2*k+1}")
                a(f"buffer_store_dwordx4 {vr(r,4)}, v{vSW}, s[{sWS}:{sWS+3}], s{b+hf} offen")
        for jj in range(3):
            b = sQA + 1 + 4*jj
            r = ACC + 48 + 4*jj
            for k in range(2):
                a(f"v_pk_mul_f32 {vr(r+2*k,2)}, {vr(r+2*k,2)}, {vr(20+2*jj,2)} op_sel_hi:[1,0]")
            for k in range(2):
                a(f"v_cvt_pk_bf16_f32 v{r+k}, v{r+2*k}, v{r+2*k+1}")
            a(f"buffer_store_dwordx2 {vr(r,2)}, v{26+jj}, s[{sWS}:{sWS+3}], s{b+2} offen")
        self.stamp(10)

    def unpack(self, dst, src, n):
        a = self.a
        for k in range(n):
            a(f"v_lshlrev_b32 v{dst+2*k}, 16, v{src+k}")
            a(f"v_and_b32 v{dst+2*k+1}, 0xffff0000, v{src+k}")

    def n80_patterns(self):
        a = self.a
        a(f"""s_mul_i32 s{sT}, s{sKH}, {10240+1024}
s_mul_i32 s{sT+1}, s{sKH}, {10240-1024}
s_add_u32 s{sT+1}, s{sT+1}, 1024
s_mul_i32 s{sT+2}, s{sKH}, 10240
s_add_u32 s{sT+2}, s{sT+2}, 2048
v_add_u32 v{vP0}, s{sT}, v{vL16}
v_add_u32 v{vP1}, s{sT+1}, v{vL16}
v_and_b32 v{vT}, 15, v{vLANE}
v_lshlrev_b32 v{vT}, 4, v{vT}
v_lshl_add_u32 v{vT}, v{vH}, 8, v{vT}
v_add_u32 v{vP2}, s{sT+2}, v{vT}""")

    def phase_n80(self, which, c0, nchunks):
        a = self.a
        a.c(f"================ {'WO' if which == 0 else 'W2'} phase")
        for c in range(nchunks): self.left[c0+c] = 12
        self.basechunk = {}
        def frag(s, j):
            c, u = divmod(s, 4)
            return (c0+c, j, u*2560)
        self.set_tl_64()
        self.n80_patterns()
        self.first_w(3, frag)
        self.poll(0 if which == 0 else 2, 32 if which == 0 else 16)
        self.stamp(2 if which == 0 else 6)
        self.tt_off(sT+6, sOF if which == 0 else sHF, 40960 if which == 0 else 98304)
        a(f"s_lshl_b32 s{sT}, s{sKH}, 12\ns_add_u32 s{sT+6}, s{sT+6}, s{sT}")
        accs = [RA0, RA1, RA2]
        hooks = {}
        def xaddr():
            a(f"""s_lshl_b32 s{sT}, s{sWAVE}, 12
s_add_u32 s{sT}, s{sT}, {MISC}
v_add_u32 v20, s{sT}, v{vL16}
s_lshl_b32 s{sT}, s{sT2}, 11
s_add_u32 s{sT}, s{sT}, {MISC+16384}
v_add_u32 v22, s{sT}, v{vL16}""")
        def xaddr2():
            a(f"""s_xor_b32 s{sT}, s{sWAVE}, 2
s_lshl_b32 s{sT}, s{sT}, 12
s_add_u32 s{sT}, s{sT}, {MISC}
v_add_u32 v21, s{sT}, v{vL16}""")
        hooks[(2, 0)] = [xaddr]
        hooks[(3, 0)] = [xaddr2]
        def oaddr():
            self.tt_off(sQA, sX1F if which == 0 else sACTQ, 40960)
            a(f"""s_mul_i32 s{sT}, s{sCB}, 5120
s_add_u32 s{sQA}, s{sQA}, s{sT}
s_add_u32 s{sQA+1}, s{sQA}, 4096
s_lshl_b32 s{sT}, s{sKH}, 11
s_add_u32 s{sQA}, s{sQA}, s{sT}""")
        def saddr():
            self.tt_off(sQA+2, sST1 if which == 0 else sSTQ, 4096)
            a(f"""s_lshl_b32 s{sQA+3}, s{sCB}, 1
s_add_u32 s{sQA+3}, s{sQA+3}, s{sKH}       ; slot
s_lshr_b32 s{sT}, s{sQA+3}, 2
s_lshl_b32 s{sT}, s{sT}, 10
s_add_u32 s{sQA+2}, s{sQA+2}, s{sT}
s_and_b32 s{sT}, s{sQA+3}, 3
s_lshl_b32 s{sT}, s{sT}, 2
s_add_u32 s{sQA+2}, s{sQA+2}, s{sT}""")
        hooks[(4, 0)] = [oaddr]
        hooks[(5, 0)] = [saddr]
        if which == 0:
            def b2load():
                a(f"""s_mul_i32 s{sT}, s{sCB}, 160
s_lshl_b32 s{sT+1}, s{sKH}, 6
s_add_u32 s{sT+1}, s{sT+1}, s{sT}
v_lshlrev_b32 v{vT}, 4, v{vH}
buffer_load_dwordx4 v[24:27], v{vT}, s[{sB2}:{sB2+3}], s{sT+1} offen
buffer_load_dwordx4 v[28:31], v{vT}, s[{sB2}:{sB2+3}], s{sT+1} offen offset:32
buffer_load_dwordx4 v[32:35], v{vT}, s[{sB2}:{sB2+3}], s{sT} offen offset:128""")
                for k in range(3): self.vm.issue(("b2", k))
            hooks[(6, 0)] = [b2load]
        else:
            def outaddr():
                a(f"""v_and_b32 v23, 31, v{vLANE}
v_mul_u32_u24 v23, 1280, v23
v_lshl_add_u32 v23, v{vH}, 4, v23
s_lshl_b32 s{sQA+5}, s{sG}, 3
s_add_u32 s{sQA+5}, s{sQA+5}, s{sTL}
s_mul_i32 s{sQA+5}, s{sQA+5}, 40960
s_mul_i32 s{sT}, s{sCB}, 160
s_add_u32 s{sQA+5}, s{sQA+5}, s{sT}
s_lshl_b32 s{sT}, s{sKH}, 6
s_add_u32 s{sQA+4}, s{sQA+5}, s{sT}""")
            hooks[(6, 0)] = [outaddr]
        nsteps = nchunks*4
        self.gemm(nsteps, accs, frag, lambda s: (s//4)*8 + s % 4, sT+6, [True, False, True], hooks)
        self.stamp(3 if which == 0 else 7)
        lk0, lk1 = a.label("kh0"), a.label("kh1")
        a("s_nop 10")
        for q in range(4):
            a(f"ds_write_b128 v20, {vr(RA1+4*q,4)} offset:{1024*q}")
        a(f"s_cmp_eq_u32 s{sKH}, 0\ns_cbranch_scc1 {lk0}")
        for q in range(2):
            a(f"ds_write_b128 v22, {vr(RA2+4*q,4)} offset:{1024*q}")
        a(f"{lk0}:")
        self.lgkm(0)
        self.barrier()
        for q in range(4):
            a(f"ds_read_b128 {vr(RA1+4*q,4)}, v21 offset:{1024*q}")
        for q in range(2):
            a(f"ds_read_b128 {vr(RA2+8+4*q,4)}, v22 offset:{1024*q}")
        a("v_mov_b32 v16, 0\nv_mov_b32 v17, 0\nv_mov_b32 v18, 0\nv_mov_b32 v19, 0")
        lfin = a.label("fin")
        def block(r, src, pk, nwait):
            a(f"s_waitcnt lgkmcnt({nwait})")
            for k in range(4):
                a(f"v_pk_add_f32 {vr(r+2*k,2)}, {vr(r+2*k,2)}, {vr(src+2*k,2)}")
            for k in range(4):
                a(f"v_cvt_pk_bf16_f32 v{pk+k}, v{r+2*k}, v{r+2*k+1}")
        def stats(r):
            for k in range(4):
                a(f"v_pk_add_f32 v[16:17], v[16:17], {vr(r+2*k,2)}")
                a(f"v_pk_fma_f32 v[18:19], {vr(r+2*k,2)}, {vr(r+2*k,2)}, v[18:19]")
        PK = ACT
        block(RA0, RA1, PK, 4)
        if which == 1:
            a(f"s_cmp_lg_u32 s{sLAST}, 0\ns_cbranch_scc1 {lfin}")
        a(f"buffer_store_dwordx4 {vr(PK,4)}, v{vL16}, s[{sWS}:{sWS+3}], s{sQA} offen")
        block(RA0+8, RA1+8, PK+4, 2)
        a(f"buffer_store_dwordx4 {vr(PK+4,4)}, v{vL16}, s[{sWS}:{sWS+3}], s{sQA} offen offset:1024")
        a(f"s_cmp_lg_u32 s{sKH}, 0\ns_cbranch_scc1 {lk1}")
        block(RA2, RA2+8, PK+8, 0)
        a(f"buffer_store_dwordx4 {vr(PK+8,4)}, v{vL16}, s[{sWS}:{sWS+3}], s{sQA+1} offen")
        stats(RA2)
        a(f"{lk1}:")
        stats(RA0); stats(RA0+8)
        a(f"""v_add_f32 v16, v16, v17
v_add_f32 v18, v18, v19
s_nop 1
v_permlane32_swap_b32 v16, v18
s_nop 1
v_add_f32 v16, v16, v18
buffer_store_dword v16, v{vL16}, s[{sWS}:{sWS+3}], s{sQA+2} offen
s_waitcnt lgkmcnt(0)""")
        self.publish(1 if which == 0 else 3, sQA+3)
        if which == 0:
            self.unpack(RA0, PK, 8)
            self.unpack(RA2, PK+8, 4)
            self.unpack(RA1, 24, 8)
            self.unpack(RA2+8, 32, 4)
            for k in range(8):
                a(f"v_pk_add_f32 {vr(RA0+2*k,2)}, {vr(RA0+2*k,2)}, {vr(RA1+2*k,2)}")
            for k in range(4):
                a(f"v_pk_add_f32 {vr(RA2+2*k,2)}, {vr(RA2+2*k,2)}, {vr(RA2+8+2*k,2)}")
            lz = a.label("nz")
            a(f"s_cmp_eq_u32 s{sKH}, 0\ns_cbranch_scc1 {lz}")
            for k in range(8): a(f"v_mov_b32 v{RA2+k}, 0")
            a(f"{lz}:")
        else:
            self.final_label = lfin
            self.final_block = block
        return

    def final_out(self):
        a = self.a
        PK = ACT
        lk1 = a.label("fkh1")
        a(f"{self.final_label}:")
        a(f"buffer_store_dwordx4 {vr(PK,4)}, v23, s[{sOUT}:{sOUT+3}], s{sQA+4} offen")
        self.final_block(RA0+8, RA1+8, PK+4, 2)
        a(f"buffer_store_dwordx4 {vr(PK+4,4)}, v23, s[{sOUT}:{sOUT+3}], s{sQA+4} offen offset:32")
        a(f"s_cmp_lg_u32 s{sKH}, 0\ns_cbranch_scc1 {lk1}")
        self.final_block(RA2, RA2+8, PK+8, 0)
        a(f"buffer_store_dwordx4 {vr(PK+8,4)}, v23, s[{sOUT}:{sOUT+3}], s{sQA+5} offen offset:128")
        a(f"{lk1}:")
        self.stamp(8)

    def phase_w1(self, c0):
        a = self.a
        a.c("================ W1 phase")
        for c in range(6): self.left[c0+c] = 20
        self.basechunk = {}
        def frag(s, j):
            c, u = divmod(3*s+j, 20)
            return (c0+c, 0, u*1024)
        self.set_tl_128()
        a(f"v_mov_b32 v{vP0}, v{vL16}")
        self.aux_load(AUX1, 3)
        self.first_w(3, frag)
        self.poll(1, 16)
        self.stamp(4)
        self.tt_off(sT+6, sX1F, 40960)
        accs = [ACC+16*j for j in range(3)]
        hooks = {}
        self.aux_hooks(hooks, 3, accs, True, 6)
        k1 = -2.0*math.sqrt(2.0/math.pi)*math.log2(math.e)
        k3 = k1*0.044715
        def consts():
            a(f"""v_mul_f32 v20, {f2u(k1):#x}, v16
v_mul_f32 v22, v16, v16
v_mul_f32 v22, v22, v16
v_mul_f32 v22, {f2u(k3):#x}, v22
v_mov_b32 v24, v17""")
        def oaddr():
            self.tt_off(sQA, sHF, 98304)
            a(f"""s_mul_i32 s{sT}, s{sCB2}, 6144
s_add_u32 s{sQA}, s{sQA}, s{sT}
s_add_u32 s{sQA+1}, s{sQA}, 4096""")
        hooks.setdefault((20, 0), []).append(consts)
        hooks.setdefault((21, 0), []).append(oaddr)
        self.gemm(40, accs, frag, lambda s: s, sT+6, [False]*3, hooks, pre_stats=self.stats_load(sST1))
        self.stamp(5)
        self.barrier()
        a("s_nop 7")
        T = ACT
        for blk in range(6):
            r = ACC + 8*blk
            t = T + 8*(blk % 2)
            for k in range(4):
                a(f"v_pk_mul_f32 {vr(t+2*k,2)}, {vr(r+2*k,2)}, {vr(r+2*k,2)}")
            for k in range(4):
                a(f"v_pk_fma_f32 {vr(t+2*k,2)}, {vr(t+2*k,2)}, v[22:23], v[20:21] op_sel_hi:[1,0,0]")
            for k in range(4):
                a(f"v_pk_mul_f32 {vr(t+2*k,2)}, {vr(t+2*k,2)}, {vr(r+2*k,2)}")
            for k in range(8):
                a(f"v_exp_f32 v{t+k}, v{t+k}")
            for k in range(4):
                a(f"v_pk_fma_f32 {vr(t+2*k,2)}, {vr(t+2*k,2)}, v[24:25], v[24:25] op_sel_hi:[1,0,0]")
            for k in range(8):
                a(f"v_rcp_f32 v{t+k}, v{t+k}")
            for k in range(4):
                a(f"v_pk_mul_f32 {vr(t+2*k,2)}, {vr(t+2*k,2)}, {vr(r+2*k,2)}")
            for k in range(4):
                a(f"v_cvt_pk_bf16_f32 v{r+k}, v{t+2*k}, v{t+2*k+1}")
            a(f"buffer_store_dwordx4 {vr(r,4)}, v{vL16}, s[{sWS}:{sWS+3}], s{sQA + blk//4} offen offset:{(blk%4)*1024}")
        self.publish(2, sCB2)

    def dma_chunk_static(self, n):
        a = self.a
        if n < 8: base, k = sSRC, n
        elif n < 13: base, k = sWO, n-8
        elif n < 19: base, k = sW1, n-13
        elif n < 31: base, k = sW2, n-19
        else: base, k = sWQ, n-31
        a(f"s_add_u32 m0, s{sLDW}, {(n % NSLOT)*CH}\ns_add_u32 s{sT}, s{base}, {k*CH}")
        self.dma5(sT, " nt" if n < 8 else "")
    def dma5(self, so, fl=""):
        a = self.a
        for q in range(4):
            a(f"buffer_load_dwordx4 v{vL16}, s[{sWS}:{sWS+3}], s{so} offen offset:{1024*q} lds{fl}" if False else
              f"buffer_load_dwordx4 v{vL16}, s[{sWS}:{sWS+3}], s{so} offen offset:{1024*q}{fl} lds")
        a(f"s_add_u32 m0, m0, 4096\ns_add_u32 s{sT+1}, s{so}, 4096")
        a(f"buffer_load_dwordx4 v{vL16}, s[{sWS}:{sWS+3}], s{sT+1} offen{fl} lds")

    def loader(self, bars, issued, last):
        a = self.a
        issued = list(issued)
        for b in bars:
            if b["need"] is not None:
                assert b["need"] in issued, (b, issued)
                n = 5*(len(issued) - 1 - issued.index(b["need"]))
                a(f"s_waitcnt vmcnt({n})")
            a("s_barrier")
            for f in b["free"]:
                nx = f + NSLOT
                if nx <= last and nx not in issued:
                    self.dma_chunk_static(nx); issued.append(nx)

    def att_tile(self, u):
        a = self.a
        X, Y = SS[u % 2], SS[(u+1) % 2]
        e = lambda k: a(f"v_exp_f32 v{X+k}, v{X+k}")
        c = lambda k: a(f"v_cvt_pk_bf16_f32 v{P+k}, v{X+2*k}, v{X+2*k+1}")
        kt, vt = (u+2) % 8, (u+1) % 8
        vb = V1[(u+1) % 2]
        if u == 7:
            a(f"v_mad_u32_u24 v{vV0}, s{sSLOT}, v{vMV}, v{vBV0}")
        e(0)
        a(f"v_cvt_pk_bf16_f32 v{P+7}, v{Y+14}, v{Y+15}")
        if u == 7:
            a(f"v_mad_u32_u24 v{vV1}, s{sSLOT}, v{vMV}, v{vBV1}")
        e(1); e(2)
        a(f"v_mfma_f32_32x32x16_bf16 {vr(O,16)}, {vr(vb,4)}, {vr(P+4,4)}, {vr(O,16)}")
        a(f"ds_read_b64_tr_b16 {vr(vb,2)}, v{vV0} offset:{vt*2560+256}")
        a(f"ds_read_b64_tr_b16 {vr(vb+2,2)}, v{vV1} offset:{vt*2560+256}")
        c(0); e(3); e(4); c(1); e(5); e(6)
        a("s_waitcnt lgkmcnt(2)")
        a(f"v_mfma_f32_32x32x16_bf16 {vr(Y,16)}, {vr(K1,4)}, {vr(Q1,4)}, 0")
        if u == 6:
            self.att_chunk_sync()
        a(f"ds_read_b128 {vr(K1,4)}, v{vK1} offset:{kt*2560}")
        if u in (0, 2, 4):
            a(f"s_setprio {2 - u//2}")
        c(2); e(7); e(8); c(3); e(9); e(10)
        a(f"v_mfma_f32_32x32x8_bf16 {vr(Y,16)}, {vr(K2,2)}, {vr(Q2,2)}, {vr(Y,16)}")
        a(f"ds_read_b64 {vr(K2,2)}, v{vK2} offset:{kt*2560}")
        if u == 3:
            a(f"buffer_load_dword v{vXC}, v{vXC+1}, s[{sWS}:{sWS+3}], s{sXCA} offen sc1")
        c(4); e(11); e(12); c(5); e(13); e(14)
        a(f"v_mfma_f32_32x32x16_bf16 {vr(O,16)}, {vr(V0,4)}, {vr(P,4)}, {vr(O,16)}")
        a(f"ds_read_b64_tr_b16 {vr(V0,2)}, v{vV0} offset:{vt*2560}")
        a(f"ds_read_b64_tr_b16 {vr(V0+2,2)}, v{vV1} offset:{vt*2560}")
        c(6); e(15)

    def att_chunk_sync(self):
        a = self.a
        l0, l1 = a.label("c0"), a.label("cs")
        a(f"""
s_add_u32 s{sT+2}, s{sSLOT}, {CH}
s_cmp_eq_u32 s{sT+2}, {NSLOT*CH}
s_cselect_b32 s{sT+2}, 0, s{sT+2}
s_cmp_eq_u32 s{sC}, 0
s_cbranch_scc1 {l0}
s_waitcnt vmcnt(20)
s_barrier
s_setprio 3
s_cmp_lt_u32 s{sWAVE}, 4
s_cbranch_scc1 {l1}
s_sub_u32 s{sT+3}, s{sSLOT}, {CH}
s_cselect_b32 s{sT+3}, {(NSLOT-1)*CH}, s{sT+3}
s_add_u32 m0, s{sLDW}, s{sT+3}
s_nop 0
""")
        self.dma5(sSRC)
        a(f"""
s_add_u32 s{sSRC}, s{sSRC}, {CH}
s_cmp_eq_u32 s{sC}, 1
s_cselect_b32 s{sSRC}, s{sWO}, s{sSRC}
s_cmp_eq_u32 s{sC}, 6
s_cselect_b32 s{sSRC}, s{sW1}, s{sSRC}
s_branch {l1}
{l0}:
s_waitcnt vmcnt(25)
s_barrier
s_setprio 3
{l1}:
s_mov_b32 s{sSLOT}, s{sT+2}
v_add_u32 v{vK1}, s{sT+2}, v{vBK1}
v_mad_u32_u24 v{vK2}, s{sT+2}, v{vMK}, v{vBK2}
""")

    def split3(self, m):
        a = self.a
        a(f"""
v_sub_f32 v{vT}, 0, v{m}
v_and_b32 v{vT+1}, 0xffff0000, v{vT}
v_sub_f32 v{vT}, v{vT}, v{vT+1}
v_and_b32 v{vT+2}, 0xffff0000, v{vT}
v_sub_f32 v{vT}, v{vT}, v{vT+2}
v_lshrrev_b32 v{vT+1}, 16, v{vT+1}
v_cmp_gt_u32 vcc, 32, v{vLANE}
v_or_b32 v{vT+1}, v{vT+1}, v{vT+2}
v_lshrrev_b32 v{vT}, 16, v{vT}
v_cndmask_b32 v{Q2}, v{vT+1}, v{Q2}, vcc
v_cndmask_b32 v{Q2+1}, v{vT}, v{Q2+1}, vcc
""")

    def rowmax16(self, X, dst, init=None):
        a = self.a
        if init is None:
            a(f"v_max3_f32 v{dst}, v{X}, v{X+1}, v{X+2}")
            a(f"v_max_f32 v{dst}, v{dst}, v{X+3}")
            k0 = 4
        else:
            k0 = 0
        for k in range(k0, 16, 2):
            a(f"v_max3_f32 v{dst}, v{dst}, v{X+k}, v{X+k+1}")
    def crosshalf_max(self, m):
        a = self.a
        a(f"""v_mov_b32 v{vT}, v{m}
s_nop 1
v_permlane32_swap_b32 v{m}, v{vT}
s_nop 1
v_max_f32 v{m}, v{m}, v{vT}""")

    def attention(self):
        a = self.a
        a.c("================ attention")
        a(f"""
s_mov_b32 s{sTL}, s{sWAVE}
s_lshr_b32 s{sT}, s{sJ}, 1
s_add_u32 s{sT}, s{sT}, 32
s_mul_i32 s{sT}, s{sT}, 163840
s_lshl_b32 s{sT+1}, s{sG}, 3
s_add_u32 s{sT+1}, s{sT+1}, s{sWAVE}
s_mul_i32 s{sT+1}, s{sT+1}, 2560
s_add_u32 s{sT}, s{sT}, s{sT+1}
s_add_u32 s{sT}, s{sT}, s{sQIN}
s_and_b32 s{sT+1}, s{sJ}, 1
s_lshl_b32 s{sT+2}, s{sT+1}, 10
s_add_u32 s{sT+2}, s{sT+2}, s{sT}
s_lshl_b32 s{sT+1}, s{sT+1}, 3
s_add_u32 s{sT+1}, s{sT+1}, s{sT}
v_lshlrev_b32 v{vT}, 30, v{vH}
v_add_u32 v{vT}, v{vT}, v{vTL}
buffer_load_dwordx4 {vr(Q1,4)}, v{vSW}, s[{sWS}:{sWS+3}], s{sT+2} offen
buffer_load_dwordx2 {vr(Q2,2)}, v{vT}, s[{sWS}:{sWS+3}], s{sT+1} offen
s_mul_i32 s{sSRC}, s{sJ}, 163840
s_add_u32 s{sSRC}, s{sSRC}, s{sQIN}
s_add_u32 s{sSRC}, s{sSRC}, s{sLDW}
""")
        lnl, lj = a.label("notloader"), a.label("join")
        a(f"s_cmp_lt_u32 s{sWAVE}, 4\ns_cbranch_scc1 {lnl}")
        for n in range(7): self.dma_chunk_static(n)
        a(f"s_branch {lj}\n{lnl}:")
        self.set_tl_64()
        self.tt_off(sT, sRES, 40960)
        a(f"""s_mul_i32 s{sT+1}, s{sCB}, 5120
s_add_u32 s{sT}, s{sT}, s{sT+1}
s_add_u32 s{sT+2}, s{sT}, 4096
s_lshl_b32 s{sT+1}, s{sKH}, 11
s_add_u32 s{sT}, s{sT}, s{sT+1}
buffer_load_dwordx4 {vr(ACT,4)}, v{vL16}, s[{sWS}:{sWS+3}], s{sT} offen
buffer_load_dwordx4 {vr(ACT+4,4)}, v{vL16}, s[{sWS}:{sWS+3}], s{sT} offen offset:1024
buffer_load_dwordx4 {vr(ACT+8,4)}, v{vL16}, s[{sWS}:{sWS+3}], s{sT+2} offen
s_mov_b32 s{sTL}, s{sWAVE}
s_cmp_lg_u32 s{sWAVE}, 0
s_cbranch_scc1 {lj}
s_lshl_b32 s{sT}, s{sJ}, 2
v_mov_b32 v{vT}, s{sT}
v_mov_b32 v{vT+1}, s{sXCC}
s_mov_b64 exec, 1
buffer_store_dword v{vT+1}, v{vT}, s[{sWS}:{sWS+3}], s{sXCA} offen sc1
s_mov_b64 exec, -1
{lj}:
s_add_u32 s{sSRC}, s{sSRC}, {7*CH}
""")
        a(f"""
s_mul_i32 s{sT}, s{sWAVE}, 2560
s_add_u32 s{sT}, s{sT}, {MISC}
v_lshlrev_b32 v{vT}, 3, v{vLANE}
v_add_u32 v{vT}, s{sT}, v{vT}
v_mov_b32 v{vT+2}, 0x3f803f80
v_mov_b32 v{vT+3}, 0x3f803f80
ds_write_b64 v{vT}, {vr(vT+2,2)}
v_and_b32 v{vXC+1}, 31, v{vLANE}
v_lshlrev_b32 v{vXC+1}, 2, v{vXC+1}
v_and_b32 v{vT}, 19, v{vLANE}
v_bfe_u32 v{vT+1}, v{vLANE}, 2, 1
v_lshl_or_b32 v{vT}, v{vT+1}, 3, v{vT}
v_bfe_u32 v{vT+1}, v{vLANE}, 3, 1
v_lshl_or_b32 v{vT}, v{vT+1}, 2, v{vT}        ; pi
v_lshlrev_b32 v{vT+1}, 3, v{vH}
v_xor_b32 v{vT+1}, v{vT+1}, v{vT}
v_lshlrev_b32 v{vT+1}, 4, v{vT+1}
v_lshl_add_u32 v{vBK1}, v{vH}, 9, v{vT+1}      ; K1 base
v_xor_b32 v{vT}, 4, v{vT}
v_lshlrev_b32 v{vT}, 4, v{vT}
v_add_u32 v{vT}, 2048, v{vT}
v_mov_b32 v{vT+1}, {MISC}
v_cmp_gt_u32 vcc, 32, v{vLANE}
v_sub_u32 v{vMK}, 1, v{vH}
s_nop 0
v_cndmask_b32 v{vBK2}, v{vT+1}, v{vT}, vcc     ; K2 base
""")
        for p, dst in ((0, vBV0), (1, vBV1)):
            a(f"""
v_bfe_u32 v{vT}, v{vLANE}, 2, 2               ; r
v_lshl_add_u32 v{vT}, v{vH}, 3, v{vT}
v_add_u32 v{vT}, {4*p}, v{vT}                  ; kappa'
v_and_b32 v{vT+1}, 1, v{vLANE}                 ; c&1
v_lshlrev_b32 v{vT+2}, 3, v{vT+1}
v_xor_b32 v{vT+2}, v{vT+2}, v{vT}
v_lshlrev_b32 v{vT+2}, 4, v{vT+2}
v_lshl_add_u32 v{vT+2}, v{vT+1}, 9, v{vT+2}
v_bfe_u32 v{vT+1}, v{vLANE}, 1, 1
v_lshl_add_u32 v{vT+2}, v{vT+1}, 3, v{vT+2}
v_add_u32 v{vT+2}, 1024, v{vT+2}               ; main
v_xor_b32 v{vT}, 4, v{vT}
v_lshlrev_b32 v{vT}, 4, v{vT}
v_add_u32 v{vT}, 2056, v{vT}                   ; tail
v_and_b32 v{vT+1}, 16, v{vLANE}
v_cmp_eq_u32 vcc, 0, v{vT+1}
v_lshlrev_b32 v{vT+3}, 7, v{vMK}
v_add_u32 v{vT+3}, {MISC + 64*(1-p)}, v{vT+3}  ; const
v_cndmask_b32 v{dst}, v{vT}, v{vT+2}, vcc
v_and_b32 v{vT+1}, 19, v{vLANE}
v_cmp_lt_u32 vcc, 16, v{vT+1}
v_mov_b32 v{vT}, 1
s_nop 0
v_cndmask_b32 v{dst}, v{dst}, v{vT+3}, vcc
v_cndmask_b32 v{vMV}, v{vT}, 0, vcc
""")
        a(f"""
v_mov_b32 v{vK1}, v{vBK1}
v_mov_b32 v{vK2}, v{vBK2}
v_mov_b32 v{vV0}, v{vBV0}
v_mov_b32 v{vV1}, v{vBV1}
""")
        for k in range(16): a(f"v_mov_b32 v{O+k}, 0")
        for k in range(4): a(f"v_mov_b32 v{V1[1]+k}, 0")
        for k in range(4): a(f"v_mov_b32 v{P+4+k}, 0")
        a(f"v_mov_b32 v{SS[1]+14}, 0\nv_mov_b32 v{SS[1]+15}, 0")
        lw = a.label("w")
        a(f"""
s_mov_b32 s{sC}, 0
s_mov_b32 s{sSLOT}, 0
s_waitcnt vmcnt(30) lgkmcnt(0)
s_cmp_ge_u32 s{sWAVE}, 4
s_cbranch_scc1 {lw}
s_waitcnt vmcnt(0)
""")
        self.unpack(RA0, ACT, 8)
        self.unpack(RA2, ACT+8, 4)
        a(f"s_cmp_eq_u32 s{sKH}, 0\ns_cbranch_scc1 {lw}")
        for k in range(8): a(f"v_mov_b32 v{RA2+k}, 0")
        a(f"""
{lw}:
s_barrier
""")
        self.stamp(0)
        a(f"""
ds_read_b128 {vr(K1,4)}, v{vK1}
ds_read_b64 {vr(K2,2)}, v{vK2}
ds_read_b64_tr_b16 {vr(V0,2)}, v{vV0}
ds_read_b64_tr_b16 {vr(V0+2,2)}, v{vV1}
ds_read_b64_tr_b16 {vr(V1[0],2)}, v{vV0} offset:256
ds_read_b64_tr_b16 {vr(V1[0]+2,2)}, v{vV1} offset:256
s_waitcnt lgkmcnt(4)
v_mfma_f32_32x32x16_bf16 {vr(SS[0],16)}, {vr(K1,4)}, {vr(Q1,4)}, 0
v_mfma_f32_32x32x8_bf16 {vr(SS[0],16)}, {vr(K2,2)}, {vr(Q2,2)}, {vr(SS[0],16)}
s_nop 15
""")
        self.rowmax16(SS[0], 22)
        self.crosshalf_max(22)
        self.split3(22)
        a(f"""
s_nop 1
v_mfma_f32_32x32x16_bf16 {vr(SS[0],16)}, {vr(K1,4)}, {vr(Q1,4)}, 0
v_mfma_f32_32x32x8_bf16 {vr(SS[0],16)}, {vr(K2,2)}, {vr(Q2,2)}, {vr(SS[0],16)}
ds_read_b128 {vr(K1,4)}, v{vK1} offset:2560
ds_read_b64 {vr(K2,2)}, v{vK2} offset:2560
s_setprio 3
s_nop 12
.p2align 6
L_att_loop:
""")
        for u in range(8): self.att_tile(u)
        a(f"""
s_add_u32 s{sC}, s{sC}, 1
s_cmp_lt_u32 s{sC}, 8
s_cbranch_scc1 L_att_loop
v_cvt_pk_bf16_f32 v{P+7}, v{SS[1]+14}, v{SS[1]+15}
s_setprio 0
s_nop 0
v_mfma_f32_32x32x16_bf16 {vr(O,16)}, {vr(V1[1],4)}, {vr(P+4,4)}, {vr(O,16)}
""")
        self.tt_off(sT+4, sOF, 40960)
        a(f"""
s_lshl_b32 s{sT+5}, s{sJ}, 10
s_add_u32 s{sT+5}, s{sT+5}, s{sT+4}
s_lshr_b32 s{sT+6}, s{sJ}, 1
s_lshl_b32 s{sT+6}, s{sT+6}, 9               ; (head/4)*1024 + ((head%4)/2)*512
s_add_u32 s{sT+4}, s{sT+4}, s{sT+6}
s_and_b32 s{sT+6}, s{sJ}, 1
s_lshl_b32 s{sT+6}, s{sT+6}, 3
s_add_u32 s{sT+4}, s{sT+4}, s{sT+6}
s_add_u32 s{sT+4}, s{sT+4}, 32768
v_lshlrev_b32 v23, 30, v{vH}
v_add_u32 v23, v23, v{vL16}
s_mov_b32 s{sT+6}, {f2u(2.0**64):#x}
s_nop 3
v_cmp_lt_f32 vcc, v{O+12}, s{sT+6}
s_cmp_eq_u64 vcc, -1
s_cbranch_scc0 L_att_fallback
L_att_fin:
v_rcp_f32 v22, v{O+12}
s_nop 0
""")
        for k in range(6):
            a(f"v_pk_mul_f32 {vr(O+2*k,2)}, {vr(O+2*k,2)}, v[22:23] op_sel_hi:[1,0]")
        for k in range(6):
            a(f"v_cvt_pk_bf16_f32 v{O+k}, v{O+2*k}, v{O+2*k+1}")
        lx, lxd = a.label("xpoll"), a.label("xdone")
        a(f"""
buffer_store_dwordx4 {vr(O,4)}, v{vL16}, s[{sWS}:{sWS+3}], s{sT+5} offen
buffer_store_dwordx2 {vr(O+4,2)}, v23, s[{sWS}:{sWS+3}], s{sT+4} offen
s_waitcnt vmcnt(2)
s_mov_b32 s{sT+1}, 0x100000
{lx}:
v_cmp_eq_u32 vcc, 0, v{vXC}
s_cbranch_vccz {lxd}
s_sub_u32 s{sT+1}, s{sT+1}, 1
s_cbranch_scc1 {lxd}
buffer_load_dword v{vXC}, v{vXC+1}, s[{sWS}:{sWS+3}], s{sXCA} offen sc1
s_waitcnt vmcnt(0)
s_branch {lx}
{lxd}:
v_cmp_ne_u32 vcc, s{sXCC}, v{vXC}
s_cmp_lg_u64 vcc, 0
s_cselect_b32 s{sSLOW}, 1, 0
s_waitcnt lgkmcnt(0)
""")
        self.publish(0, sJ)
        self.stamp(1)

    def att_fallback(self):
        a = self.a
        X = SS[0]
        a(f"""
L_att_fallback:
s_waitcnt vmcnt(0) lgkmcnt(0)
s_mul_i32 s{sT+7}, s{sJ}, 163840
s_add_u32 s{sT+7}, s{sT+7}, s{sQIN}
v_cmp_gt_u32 vcc, 32, v{vLANE}
v_mov_b32 v{vT}, 0
s_nop 0
v_cndmask_b32 v{Q2}, v{vT}, v{Q2}, vcc
v_cndmask_b32 v{Q2+1}, v{vT}, v{Q2+1}, vcc
v_lshlrev_b32 v{vK2}, 30, v{vH}
v_add_u32 v{vK2}, v{vK2}, v{vBK2}
v_mov_b32 v22, 0xff800000
s_mov_b32 s{sT+8}, s{sT+7}
s_mov_b32 s{sT+9}, 64
L_fb_max:
buffer_load_dwordx4 {vr(K1,4)}, v{vBK1}, s[{sWS}:{sWS+3}], s{sT+8} offen
buffer_load_dwordx2 {vr(K2,2)}, v{vK2}, s[{sWS}:{sWS+3}], s{sT+8} offen
s_waitcnt vmcnt(0)
v_mfma_f32_32x32x16_bf16 {vr(X,16)}, {vr(K1,4)}, {vr(Q1,4)}, 0
v_mfma_f32_32x32x8_bf16 {vr(X,16)}, {vr(K2,2)}, {vr(Q2,2)}, {vr(X,16)}
s_nop 15
""")
        self.rowmax16(X, 22, init=True)
        a(f"""
s_add_u32 s{sT+8}, s{sT+8}, 2560
s_sub_u32 s{sT+9}, s{sT+9}, 1
s_cmp_lg_u32 s{sT+9}, 0
s_cbranch_scc1 L_fb_max
""")
        self.crosshalf_max(22)
        self.split3(22)
        a(f"""
s_mul_i32 s{sT+8}, s{sWAVE}, 2560
s_add_u32 s{sT+8}, s{sT+8}, {MISC + 512 - 1024}
v_mad_u32_u24 v{vV0}, s{sT+8}, v{vMV}, v{vBV0}
v_mad_u32_u24 v{vV1}, s{sT+8}, v{vMV}, v{vBV1}
v_add_u32 v{vK1}, s{sT+8}, v{vL16}
v_lshlrev_b32 v{SS[1]}, 3, v{vLANE}
v_add_u32 v{SS[1]+1}, s{sT+8}, v{SS[1]}
s_mov_b32 s{sT+8}, s{sT+7}
s_mov_b32 s{sT+9}, 64
""")
        for k in range(16): a(f"v_mov_b32 v{O+k}, 0")
        a(f"""
L_fb_pv:
buffer_load_dwordx4 {vr(K1,4)}, v{vBK1}, s[{sWS}:{sWS+3}], s{sT+8} offen
buffer_load_dwordx2 {vr(K2,2)}, v{vK2}, s[{sWS}:{sWS+3}], s{sT+8} offen
buffer_load_dwordx4 {vr(V0,4)}, v{vL16}, s[{sWS}:{sWS+3}], s{sT+8} offen offset:1024
buffer_load_dwordx2 {vr(V1[0],2)}, v{SS[1]}, s[{sWS}:{sWS+3}], s{sT+8} offen offset:2048
v_cmp_gt_u32 vcc, 32, v{vLANE}
v_mov_b32 v{vT}, 0x3f803f80
s_waitcnt vmcnt(0)
v_cndmask_b32 v{K2}, v{vT}, v{K2}, vcc
v_cndmask_b32 v{K2+1}, v{vT}, v{K2+1}, vcc
ds_write_b128 v{vK1}, {vr(V0,4)} offset:1024
ds_write_b64 v{SS[1]+1}, {vr(V1[0],2)} offset:2048
v_mfma_f32_32x32x16_bf16 {vr(X,16)}, {vr(K1,4)}, {vr(Q1,4)}, 0
v_mfma_f32_32x32x8_bf16 {vr(X,16)}, {vr(K2,2)}, {vr(Q2,2)}, {vr(X,16)}
s_waitcnt lgkmcnt(0)
ds_read_b64_tr_b16 {vr(V0,2)}, v{vV0}
ds_read_b64_tr_b16 {vr(V0+2,2)}, v{vV1}
ds_read_b64_tr_b16 {vr(V1[0],2)}, v{vV0} offset:256
ds_read_b64_tr_b16 {vr(V1[0]+2,2)}, v{vV1} offset:256
s_nop 12
""")
        for k in range(16): a(f"v_exp_f32 v{X+k}, v{X+k}")
        a("s_nop 0")
        for k in range(8): a(f"v_cvt_pk_bf16_f32 v{P+k}, v{X+2*k}, v{X+2*k+1}")
        a(f"""
s_waitcnt lgkmcnt(0)
s_nop 1
v_mfma_f32_32x32x16_bf16 {vr(O,16)}, {vr(V0,4)}, {vr(P,4)}, {vr(O,16)}
v_mfma_f32_32x32x16_bf16 {vr(O,16)}, {vr(V1[0],4)}, {vr(P+4,4)}, {vr(O,16)}
s_add_u32 s{sT+8}, s{sT+8}, 2560
s_sub_u32 s{sT+9}, s{sT+9}, 1
s_cmp_lg_u32 s{sT+9}, 0
s_cbranch_scc1 L_fb_pv
s_nop 15
s_branch L_att_fin
""")

    def prof_store(self):
        a = self.a
        if not self.prof: return
        a(f"""
s_waitcnt lgkmcnt(0)
s_memtime s[{sPROF+22}:{sPROF+23}]
s_lshl_b32 s{sT}, s{sKID}, 8
s_add_u32 s{sT}, s{sT}, s2
s_lshl_b32 s{sT}, s{sT}, 3
s_add_u32 s{sT}, s{sT}, s{sWAVE}
s_lshl_b32 s{sT}, s{sT}, 6
s_add_u32 s{sT}, s{sT}, {PROF}
v_mov_b32 v{vT}, 0
s_waitcnt lgkmcnt(0)
s_mov_b64 exec, 1""")
        for i in range(12):
            a(f"v_mov_b32 v{vT+1}, s{sPROF+2*i}\nbuffer_store_dword v{vT+1}, v{vT}, s[{sWS}:{sWS+3}], s{sT} offen offset:{4*i}")
        a(f"v_mov_b32 v{vT+1}, s99\nbuffer_store_dword v{vT+1}, v{vT}, s[{sWS}:{sWS+3}], s{sT} offen offset:48")
        a(f"v_mov_b32 v{vT+1}, s{sSLOW}\nbuffer_store_dword v{vT+1}, v{vT}, s[{sWS}:{sWS+3}], s{sT} offen offset:52")


def gen_main(a, prof=False):
    g = Gen(a, prof)
    def entry(name, kid, k, qin, qout, res, last, stq, actq, nopoll, of, x1f, hf, st1):
        kernel_begin(a, name)
        for r, v in ((sKID, kid), (sQIN, qin), (sQOUT, qout), (sRES, res), (sFLG, FLAGS + k*32768), (sXCA, XCC + k*1024),
                     (sLAST, last), (sSTQ, stq), (sACTQ, actq), (sNOPOLL, nopoll), (sOF, of), (sX1F, x1f), (sHF, hf), (sST1, st1)):
            a(f"s_mov_b32 s{r}, {v:#x}")
        a("s_branch L_common")
    entry("qkv_kernel", 1, 0, 0, QKV[0], 0, 0, STAT[0], XF0, 1, 0, 0, 0, 0)
    entry("l2_kernel", 3, 1, QKV[1], 0, X2F, 1, 0, 0, 0, OF[1], X1F[1], HF[1], STAT[3])
    entry("l1_kernel", 2, 0, QKV[0], QKV[1], XF0, 0, STAT[2], X2F, 0, OF[0], X1F[0], HF[0], STAT[1])
    a(f"""
L_common:
s_cmp_ge_u32 s2, 256
s_cbranch_scc1 L_end
s_load_dwordx2 s[{sT}:{sT+1}], s[0:1], 80
s_load_dwordx4 s[{sT+2}:{sT+5}], s[0:1], 56
""")
    if prof:
        for i in range(12): a(f"s_mov_b64 s[{sPROF+2*i}:{sPROF+2*i+1}], 0")
        a("s_memtime s[100:101]")
    a(f"""
v_and_b32 v{vLANE}, 63, v0
v_lshrrev_b32 v{vT}, 6, v0
v_lshrrev_b32 v{vH}, 5, v{vLANE}
v_readfirstlane_b32 s{sWAVE}, v{vT}
v_lshlrev_b32 v{vL16}, 4, v{vLANE}
v_lshlrev_b32 v{vT}, 7, v{vH}
v_xor_b32 v{vSW}, v{vT}, v{vL16}
v_and_b32 v{vT}, 31, v{vLANE}
v_xor_b32 v{vT}, 4, v{vT}
v_lshlrev_b32 v{vT}, 4, v{vT}
v_add_u32 v{vTL}, 2048, v{vT}
s_getreg_b32 s{sXCC}, hwreg(HW_REG_XCC_ID)
s_and_b32 s{sXCC}, s{sXCC}, 15
s_or_b32 s{sXCC}, s{sXCC}, 0x80
s_and_b32 s{sG}, s2, 7
s_lshr_b32 s{sJ}, s2, 3
s_and_b32 s{sCB}, s{sJ}, 7
s_lshr_b32 s{sRB}, s{sJ}, 3
s_and_b32 s{sCB2}, s{sJ}, 15
s_lshr_b32 s{sRB2}, s{sJ}, 4
s_and_b32 s{sT2}, s{sWAVE}, 1
s_bfe_u32 s{sKH}, s{sWAVE}, 0x10001
s_and_b32 s{sLDW}, s{sWAVE}, 3
s_mul_i32 s{sLDW}, s{sLDW}, 5120
s_lshl_b32 s{sT+6}, s{sG}, 10
s_add_u32 s{sFLG}, s{sFLG}, s{sT+6}
s_lshl_b32 s{sT+6}, s{sG}, 7
s_add_u32 s{sXCA}, s{sXCA}, s{sT+6}
s_mul_i32 s{sWO}, s{sCB}, 102400
s_add_u32 s{sWO}, s{sWO}, {WO_F}
s_add_u32 s{sWO}, s{sWO}, s{sLDW}
s_mul_i32 s{sW1}, s{sCB2}, 122880
s_add_u32 s{sW1}, s{sW1}, {W1_F}
s_add_u32 s{sW1}, s{sW1}, s{sLDW}
s_mul_i32 s{sW2}, s{sCB}, 245760
s_add_u32 s{sW2}, s{sW2}, {W2_F}
s_add_u32 s{sW2}, s{sW2}, s{sLDW}
s_mul_i32 s{sWQ}, s{sCB2}, 163840
s_add_u32 s{sWQ}, s{sWQ}, {WQKV_F}
s_add_u32 s{sWQ}, s{sWQ}, s{sLDW}
s_mov_b32 s{sSLOW}, 0
s_waitcnt lgkmcnt(0)
""")
    if prof: a("s_mov_b32 s99, s100")
    srd(a, sWS, sT, 0x10000000)
    srd(a, sB2, sT+2, D*2)
    srd(a, sOUT, sT+4, S*D*2)
    a(f"""
s_cmp_lg_u32 s{sNOPOLL}, 0
s_cbranch_scc1 L_qkv_entry
""")
    g.attention()
    g.left = {7: 0}
    a(f"s_cmp_ge_u32 s{sWAVE}, 4\ns_cbranch_scc1 L_loader_main")
    g.barrier()
    g.phase_n80(0, 8, 5)
    g.phase_w1(13)
    g.phase_n80(1, 19, 12)
    nb_last = len(g.bar)
    a("L_qkv_phase:")
    g.vm.drain()
    g.phase_qkv(31)
    a("L_done:")
    g.prof_store()
    a("L_end:\ns_endpgm")
    g.final_out()
    a("s_branch L_done")
    g.att_fallback()
    a(f"L_loader_main:\ns_cmp_lg_u32 s{sLAST}, 0\ns_cbranch_scc1 L_loader_last")
    g.loader(g.bar, range(14), 38)
    a("s_branch L_done\nL_loader_last:")
    g.loader(g.bar[:nb_last], range(14), 30)
    a("s_branch L_done")
    a(f"L_qkv_entry:\ns_cmp_lt_u32 s{sWAVE}, 4\ns_cbranch_scc1 L_qkv_phase")
    for n in range(31, 38): g.dma_chunk_static(n)
    g.loader(g.bar[nb_last:], range(31, 38), 38)
    a("s_branch L_done")
    return g
```

```python
from dsl import *
from layout import *

OOB = 0x40000000

def gen_prep(a):
    kernel_begin(a, "prep_kernel")
    a(f"""
s_cmp_ge_u32 s2, 256
s_cbranch_scc1 L_prep_end
s_load_dwordx16 s[16:31], s[0:1], 0
s_load_dwordx2 s[32:33], s[0:1], 80
v_and_b32 v1, 63, v0
v_lshrrev_b32 v4, 6, v0
v_lshrrev_b32 v5, 5, v1            ; h
v_readfirstlane_b32 s34, v4        ; wave
v_bfe_u32 v6, v1, 4, 1             ; b4
v_bfe_u32 v7, v1, 2, 2             ; r
v_and_b32 v8, 1, v1
v_lshlrev_b32 v8, 1, v8
v_bfe_u32 v9, v1, 1, 1
v_or_b32 v8, v8, v9
v_and_b32 v9, 31, v1               ; i
v_lshl_add_u32 v10, v5, 3, v7      ; 8h + r
v_mov_b32 v11, 0x3f803f80
s_waitcnt lgkmcnt(0)
""")
    srd(a, 8, 32, 0x10000000)
    srd(a, 12, 26, 3072)
    srd(a, 4, 16, S*D*2)
    a(f"""
s_cmp_lt_u32 s2, 64
s_cbranch_scc1 L_prep_qkv
s_cmp_lt_u32 s2, 112
s_cbranch_scc1 L_prep_w1
s_cmp_lt_u32 s2, 136
s_cbranch_scc1 L_prep_wo
s_cmp_lt_u32 s2, 184
s_cbranch_scc1 L_prep_w2
s_cmp_lt_u32 s2, 248
s_cbranch_scc1 L_prep_x
""")
    a(f"""
s_sub_u32 s35, s2, 248
s_lshl_b32 s35, s35, 13
v_lshlrev_b32 v2, 4, v0
v_mov_b32 v12, 0
v_mov_b32 v13, 0
v_mov_b32 v14, 0
v_mov_b32 v15, 0
buffer_store_dwordx4 v[12:15], v2, s[8:11], s35 offen
s_mov_b32 s35, {XCC}
v_lshlrev_b32 v2, 2, v0
buffer_store_dword v12, v2, s[8:11], s35 offen
s_endpgm
""")
    a(f"""
L_prep_x:
s_sub_u32 s35, s2, 184             ; tt
s_mul_i32 s36, s35, {32*1280}
s_mul_i32 s37, s34, 160
s_add_u32 s36, s36, s37
v_mul_u32_u24 v2, 1280, v9
v_lshl_add_u32 v2, v5, 4, v2
""")
    for j in range(5):
        a(f"buffer_load_dwordx4 {vr(16+4*j,4)}, v2, s[4:7], s36 offen offset:{32*j}")
    a(f"""
s_mul_i32 s36, s35, 40960
s_mul_i32 s37, s34, 5120
s_add_u32 s36, s36, s37
s_add_u32 s36, s36, {XF0}
s_add_u32 s37, s36, 4096
v_lshlrev_b32 v3, 4, v1
v_mov_b32 v12, 0
v_mov_b32 v14, 0
s_waitcnt vmcnt(0)
""")
    for j in range(4):
        a(f"buffer_store_dwordx4 {vr(16+4*j,4)}, v3, s[8:11], s36 offen offset:{1024*j}")
    a(f"buffer_store_dwordx4 {vr(32,4)}, v3, s[8:11], s37 offen")
    for k in range(20):
        a(f"v_dot2_f32_bf16 v12, v{16+k}, v11, v12")
        a(f"v_dot2_f32_bf16 v14, v{16+k}, v{16+k}, v14")
    a(f"""
s_nop 3
v_permlane32_swap_b32 v12, v14
s_nop 1
v_add_f32 v12, v12, v14
v_mov_b32 v13, 0
s_lshl_b32 s36, s35, 12            ; tt*4096
s_lshr_b32 s37, s34, 1             ; (2cb)/4
s_lshl_b32 s37, s37, 10
s_add_u32 s36, s36, s37
s_and_b32 s37, s34, 1
s_lshl_b32 s37, s37, 3
s_add_u32 s36, s36, s37
s_add_u32 s36, s36, {STAT[0]}
buffer_store_dwordx2 v[12:13], v3, s[8:11], s36 offen
s_endpgm
""")

    def strip(tag, nks, stride, wo, aux):
        a(f"v_mul_u32_u24 v12, {stride}, v10")
        a("v_add_u32 v12, v12, v2")
        if wo:
            a(f"""
v_mul_u32_u24 v13, 40, v5
v_add_u32 v13, v13, v7
v_mul_u32_u24 v13, {stride}, v13
v_add_u32 v13, v13, v2""")
        for j in range(nks):
            if wo:
                a(f"""
s_add_u32 s41, s36, {j}
s_mul_i32 s42, s41, {20*stride}          ; main p=0
s_add_u32 s43, s42, {4*stride}           ; main p=1
s_sub_u32 s44, s41, 32
s_mul_i32 s44, s44, {80*stride}
s_add_u32 s44, s44, {16*stride}          ; tail p=0
s_add_u32 s45, s44, {20*stride}          ; tail p=1
s_cmp_lt_u32 s41, 32
s_cselect_b32 s42, s42, s44
s_cselect_b32 s43, s43, s45
s_cselect_b64 vcc, -1, 0
s_nop 1
v_cndmask_b32 v14, v13, v12, vcc
buffer_load_dwordx2 {vr(16+4*j,2)}, v14, s[4:7], s42 offen
buffer_load_dwordx2 {vr(18+4*j,2)}, v14, s[4:7], s43 offen""")
            else:
                a(f"""
s_add_u32 s41, s36, {j}
s_mul_i32 s42, s41, {16*stride}
s_add_u32 s43, s42, {4*stride}
buffer_load_dwordx2 {vr(16+4*j,2)}, v12, s[4:7], s42 offen
buffer_load_dwordx2 {vr(18+4*j,2)}, v12, s[4:7], s43 offen""")
        a(f"""
s_mul_i32 s41, s34, 6144
v_lshlrev_b32 v14, 3, v1
v_add_u32 v14, s41, v14
s_waitcnt vmcnt(0)""")
        for k in range(2*nks):
            a(f"ds_write_b64 v14, {vr(16+2*k,2)} offset:{512*k}")
        a("s_waitcnt lgkmcnt(0)")
        for k in range(2*nks):
            a(f"ds_read_b64_tr_b16 {vr(16+2*k,2)}, v14 offset:{512*k}")
        a("s_waitcnt lgkmcnt(0)")
        for j in range(nks):
            a(f"buffer_store_dwordx4 {vr(16+4*j,4)}, v3, s[8:11], s37 offen")
            a(f"s_add_u32 s37, s37, s38")
        if aux is None:
            a("s_endpgm")
            return
        a("v_mov_b32 v12, 0")
        for k in range(4*nks):
            a(f"v_dot2_f32_bf16 v12, v{16+k}, v11, v12")
        a(f"""
v_lshlrev_b32 v14, 2, v0
v_add_u32 v14, 49152, v14
s_nop 3
ds_write_b32 v14, v12
s_waitcnt lgkmcnt(0)
s_barrier
s_cmp_lg_u32 s34, 0
s_cbranch_scc1 L_prep_end
v_lshlrev_b32 v14, 2, v9
v_add_u32 v14, 49152, v14""")
        for k in range(16):
            a(f"ds_read_b32 v{16+k}, v14 offset:{128*k}")
        if aux == 'w1':
            a(f"""
v_and_b32 v40, 19, v9
v_bfe_u32 v41, v9, 2, 1
v_lshl_or_b32 v40, v41, 3, v40
v_bfe_u32 v41, v9, 3, 1
v_lshl_or_b32 v40, v41, 2, v40
v_add_u32 v40, s40, v40
v_lshlrev_b32 v40, 1, v40
buffer_load_ushort v41, v40, s[12:15], 0 offen""")
        else:
            a("v_mov_b32 v41, 0")
        a("s_waitcnt lgkmcnt(0)")
        for k in range(1, 16):
            a(f"v_add_f32 v16, v16, v{16+k}")
        a(f"""
v_and_b32 v17, 0xffff0000, v16      ; hi
v_sub_f32 v18, v16, v17             ; rest
v_lshrrev_b32 v19, 16, v17
v_or_b32 v20, v19, v17
v_lshrrev_b32 v21, 16, v18          ; [lo, 0]
s_waitcnt vmcnt(0)
v_lshl_or_b32 v22, v41, 16, v41     ; [b, b]
v_cmp_gt_u32 vcc, 32, v1
s_nop 1
v_cndmask_b32 v20, v22, v20, vcc
v_cndmask_b32 v21, 0, v21, vcc
v_lshlrev_b32 v14, 3, v1
buffer_store_dwordx2 v[20:21], v14, s[8:11], s39 offen
s_endpgm""")

    a("L_prep_qkv:")
    srd(a, 4, 18, D*3*D*2)
    a(f"""
s_lshr_b32 s46, s2, 2              ; cb
s_and_b32 s47, s2, 3               ; tile
s_mul_i32 s36, s34, 5
s_mul_i32 s37, s46, 163840
s_mul_i32 s41, s34, 20480
s_add_u32 s37, s37, s41
s_add_u32 s37, s37, {WQKV_F}
s_lshl_b32 s39, s2, 9
s_add_u32 s39, s39, {AUXQ}
s_mul_i32 s42, s46, 120
s_cmp_eq_u32 s47, 3
s_cbranch_scc1 L_prep_qkv3
s_mul_i32 s41, s47, 40
s_add_u32 s42, s42, s41
v_mul_u32_u24 v2, 20, v6
v_lshl_add_u32 v2, v8, 2, v2
v_add_u32 v2, s42, v2
v_lshlrev_b32 v2, 1, v2
v_lshlrev_b32 v3, 4, v1
s_lshl_b32 s41, s47, 10
s_add_u32 s37, s37, s41
s_mov_b32 s38, 3072
s_branch L_prep_qkvgo
L_prep_qkv3:
v_and_b32 v2, 3, v1
v_lshl_add_u32 v2, v6, 2, v2       ; q
v_cmp_gt_u32 vcc, 6, v2
s_nop 1
v_cndmask_b32 v2, 0, v2, vcc
v_mul_u32_u24 v2, 20, v2
v_add_u32 v2, s42, v2
v_add_u32 v2, 16, v2
v_lshlrev_b32 v2, 1, v2
v_mul_u32_u24 v3, 384, v5
v_lshl_add_u32 v3, v9, 4, v3
v_mov_b32 v12, {OOB}
v_cmp_gt_u32 vcc, 24, v9
s_nop 1
v_cndmask_b32 v3, v12, v3, vcc
s_add_u32 s37, s37, 15360
s_mov_b32 s38, 768
L_prep_qkvgo:""")
    strip("qkv", 5, 3840, False, 'q')

    a("L_prep_w1:")
    srd(a, 4, 24, D*F*2)
    a(f"""
s_sub_u32 s45, s2, 64
s_mul_i32 s46, s45, 0x5556
s_lshr_b32 s46, s46, 16            ; cb
s_mul_i32 s47, s46, 3
s_sub_u32 s47, s45, s47            ; tile
s_mul_i32 s36, s34, 5
s_mul_i32 s37, s46, 122880
s_mul_i32 s41, s34, 15360
s_add_u32 s37, s37, s41
s_lshl_b32 s41, s47, 10
s_add_u32 s37, s37, s41
s_add_u32 s37, s37, {W1_F}
s_mov_b32 s38, 3072
s_lshl_b32 s39, s46, 2
s_add_u32 s39, s39, s47
s_lshl_b32 s39, s39, 9
s_add_u32 s39, s39, {AUX1}
s_lshl_b32 s40, s45, 5
v_lshlrev_b32 v2, 4, v6
v_lshl_add_u32 v2, v8, 2, v2
v_add_u32 v2, s40, v2
v_lshlrev_b32 v2, 1, v2
v_lshlrev_b32 v3, 4, v1""")
    strip("w1", 5, 3072, False, 'w1')

    def n80(tag):
        a(f"""
s_mul_i32 s46, s45, 0x5556
s_lshr_b32 s46, s46, 16            ; cb
s_mul_i32 s47, s46, 3
s_sub_u32 s47, s45, s47            ; tile
s_mul_i32 s40, s46, 80
s_lshl_b32 s41, s47, 5
s_add_u32 s40, s40, s41
s_mov_b32 s38, 2560
s_cmp_eq_u32 s47, 2
s_cbranch_scc1 L_prep_{tag}_h
v_lshlrev_b32 v2, 4, v6
v_lshl_add_u32 v2, v8, 2, v2
v_lshlrev_b32 v3, 4, v1
s_branch L_prep_{tag}_go
L_prep_{tag}_h:
v_lshlrev_b32 v2, 2, v8
v_lshlrev_b32 v3, 8, v5
v_lshl_add_u32 v3, v9, 4, v3
v_mov_b32 v12, {OOB}
v_cmp_gt_u32 vcc, 16, v9
s_nop 1
v_cndmask_b32 v3, v12, v3, vcc
L_prep_{tag}_go:
v_add_u32 v2, s40, v2
v_lshlrev_b32 v2, 1, v2""")

    a("L_prep_wo:")
    srd(a, 4, 20, D*D*2)
    a("s_sub_u32 s45, s2, 112")
    n80("wo")
    a(f"""
s_mul_i32 s36, s34, 5
s_mul_i32 s37, s46, 102400
s_mul_i32 s41, s36, 2560
s_add_u32 s37, s37, s41
s_lshl_b32 s41, s47, 10
s_add_u32 s37, s37, s41
s_add_u32 s37, s37, {WO_F}""")
    strip("wo", 5, 1280, True, None)

    a("L_prep_w2:")
    srd(a, 4, 28, F*D*2)
    a(f"""
s_sub_u32 s45, s2, 136
s_cmp_ge_u32 s45, 24
s_cselect_b32 s44, 48, 0
s_cselect_b32 s43, 24, 0
s_sub_u32 s45, s45, s43""")
    n80("w2")
    a(f"""
s_mul_i32 s36, s34, 6
s_add_u32 s36, s36, s44
s_mul_i32 s37, s46, 245760
s_mul_i32 s41, s36, 2560
s_add_u32 s37, s37, s41
s_lshl_b32 s41, s47, 10
s_add_u32 s37, s37, s41
s_add_u32 s37, s37, {W2_F}""")
    strip("w2", 6, 1280, False, None)
    a("L_prep_end:\ns_endpgm")
```

```python
import sys
from dsl import *
from layout import *
from prep import gen_prep
from main import gen_main
NAME = "interleave_layers__softmax_full_mha__mixer_channel_mlp__prompt"
def build(prof=False):
    hdr = open(f"cdna_kernels/{NAME}.s.ref").read().split("\n")
    hdr = [l for l in hdr if l.startswith(";") and "@launch" not in l and "Override" not in l and "grid=ceil" not in l]
    hdr = hdr[:12]
    launches = [("prep_kernel", 51200), ("qkv_kernel", LDS_BYTES), ("l1_kernel", LDS_BYTES), ("l2_kernel", LDS_BYTES)]
    out = "\n".join(hdr) + "\n"
    for k, lds in launches:
        out += f"; @launch kernel={k} grid=(256,1,1) block=(512,1,1) lds={lds}\n"
    a = Asm()
    a('.amdgcn_target "amdgcn-amd-amdhsa--gfx950"\n.text')
    gen_prep(a)
    g = gen_main(a, prof)
    out += a.text()
    out += '.section .rodata,"a"\n'
    out += ".p2align 6\n" + kd("prep_kernel", 64, 64)
    for k in ("qkv_kernel", "l1_kernel", "l2_kernel"):
        out += ".p2align 6\n" + kd(k, 256, 102)
    return out
if __name__ == "__main__":
    open(f"cdna_kernels/{NAME}.s", "w").write(build(False))
    open(f"prof.s", "w").write(build(True))
    print("written")
```

```python
from main import *

FS = 32768
FSCR = 4*FS
FAUX = FSCR + 22528
sXS, sQS = 8, 12
sKC, sXB, sWB, sM0, sRB128, sW4 = 30+2, 33, 34, 35, 37, 38
sDst = 43
sWP, sEX, sMK = 96, 22, 8
SQ = 160
XA, WA = 128, 136
XF = [144, 148, 152]
FNB = int(os.environ.get("FNB", 6))

def gen_front(a, prof):
    g = Gen(a, prof)
    kernel_begin(a, "front_kernel")
    a(f"""
s_cmp_ge_u32 s2, 256
s_cbranch_scc1 L_front_end
s_load_dwordx4 s[84:87], s[0:1], 0
s_load_dwordx2 s[{sWP}:{sWP+1}], s[0:1], 80
s_mov_b32 s{sKID}, 1
s_mov_b32 s{sSLOW}, 0
""")
    if prof:
        for i in range(12): a(f"s_mov_b64 s[{sPROF+2*i}:{sPROF+2*i+1}], 0")
        a("s_memrealtime s[100:101]\ns_waitcnt lgkmcnt(0)\ns_mov_b32 s3, s100\ns_memtime s[100:101]")
    a(f"""
v_lshrrev_b32 v{vT}, 6, v0
v_and_b32 v{vLANE}, 63, v0
s_and_b32 s{sG}, s2, 7
v_readfirstlane_b32 s{sWAVE}, v{vT}
s_lshr_b32 s{sJ}, s2, 3
s_lshr_b32 s{sT+2}, s{sG}, 1             ; g>>1
s_and_b32 s{sT+3}, s{sG}, 1              ; g&1
s_lshr_b32 s{sT+4}, s{sJ}, 3             ; jr
s_and_b32 s{sT+5}, s{sJ}, 7              ; jc
s_cmp_lt_u32 s{sWAVE}, 4
s_cbranch_scc1 L_front_np
s_setprio 3
L_front_np:
s_lshl2_add_u32 s{sRB128}, s{sT+2}, s{sT+4}
s_lshl3_add_u32 s{sCB2}, s{sT+3}, s{sT+5}
s_mul_i32 s{sKC}, s{sT+4}, 3
s_add_u32 s{sKC}, s{sKC}, s{sT+5}
s_mul_i32 s{sT+3}, s{sT+3}, 5
s_add_u32 s{sKC}, s{sKC}, s{sT+3}
s_add_u32 s{sKC}, s{sKC}, s{sT+2}        ; 0..24
s_mul_i32 s{sT+2}, s{sKC}, 26
s_lshr_b32 s{sT+2}, s{sT+2}, 8
s_mul_i32 s{sT+2}, s{sT+2}, 10
s_sub_u32 s{sKC}, s{sKC}, s{sT+2}
s_and_b32 s{sW4}, s{sWAVE}, 3
s_lshl2_add_u32 s{sTL}, s{sRB128}, s{sW4}
""")
    def lane_common():
        a(f"""v_lshrrev_b32 v{vH}, 5, v{vLANE}
v_lshlrev_b32 v{vL16}, 4, v{vLANE}
v_bfe_u32 v6, v{vLANE}, 4, 1             ; b4
v_bfe_u32 v7, v{vLANE}, 2, 2             ; r
v_and_b32 v8, 1, v{vLANE}
v_lshlrev_b32 v8, 1, v8
v_bfe_u32 v9, v{vLANE}, 1, 1
v_or_b32 v8, v8, v9                      ; sw
v_and_b32 v9, 31, v{vLANE}               ; i / tok
v_lshl_add_u32 v10, v{vH}, 3, v7         ; 8h+r
v_mov_b32 v11, 0x3f803f80""")
    def srds_more():
        srd(a, sWS, sWP, 0x10000000)

    def wa_calc(dst, j):
        if j < 3:
            a(f"""v_mul_u32_u24 v{vT}, 5, v6
v_add_u32 v{vT}, v{vT}, v8               ; u8
v_and_b32 v{vT+1}, 14, v{vT}             ; 2t
v_mov_b32 v{vT+2}, 0x3b4
v_bfe_u32 v{vT+2}, v{vT+2}, v{vT+1}, 2   ; cls
v_add_u32 v{vT+2}, {j}, v{vT+2}
v_and_b32 v{vT+2}, 3, v{vT+2}            ; m
v_lshrrev_b32 v{vT+1}, 3, v{vT}
v_mul_u32_u24 v{vT+1}, {3-j}, v{vT+1}
v_add_u32 v{vT+1}, {j}, v{vT+1}          ; level
v_and_b32 v{vT}, 1, v{vT}                ; half""")
        else:
            a(f"""v_and_b32 v{vT}, 1, v{vLANE}
v_bfe_u32 v{vT+3}, v{vLANE}, 1, 1
v_lshl_add_u32 v{vT+3}, v6, 1, v{vT+3}
v_add_u32 v{vT+2}, 3, v{vT+3}
v_and_b32 v{vT+2}, 3, v{vT+2}            ; m
v_mul_u32_u24 v{vT+1}, 3, v{vT}
v_max_u32 v{vT+1}, v{vT+1}, v{vT+3}      ; level""")
        a(f"""v_lshl_add_u32 v{vT+2}, v7, 2, v{vT+2}
v_lshlrev_b32 v{vT+2}, 4, v{vT+2}
v_lshl_add_u32 v{vT+2}, v{vT+1}, 8, v{vT+2}
v_lshl_add_u32 v{vT+2}, v{vT}, 3, v{vT+2}
v_lshl_add_u32 v{vT+2}, v{vH}, 11, v{vT+2}
v_add_u32 v{dst}, 16384, v{vT+2}""")

    a(f"s_cmp_lt_u32 s{sWAVE}, 4\ns_cbranch_scc1 L_front_compute")
    mark0 = len(a.L)
    a("L_front_compute:")
    lane_common()
    a(f"""v_lshrrev_b32 v{vT}, 2, v{vLANE}
v_lshlrev_b32 v{vT}, 10, v{vT}
v_and_b32 v{vT+1}, 3, v{vLANE}
v_lshl_add_u32 v{vT}, v{vT+1}, 6, v{vT}
s_lshl_b32 s{sT}, s{sW4}, 15
s_add_u32 s{sT}, s{sT}, {16384 + 768 + 32}
v_add_u32 v{vT}, s{sT}, v{vT}
v_mov_b32 v16, v11
v_mov_b32 v17, v11
ds_write_b64 v{vT}, v[16:17]
ds_write_b64 v{vT}, v[16:17] offset:8
s_waitcnt lgkmcnt(0)""")
    if prof: a("s_mov_b32 s99, s100" if prof == 1 else "s_mov_b32 s99, s3")
    srds_more()
    g.tpos(vTL, vLANE, vT)
    a(f"""v_lshlrev_b32 v{vT}, 7, v{vH}
v_xor_b32 v{vSW}, v{vT}, v{vL16}
s_mov_b32 s{sQOUT}, {QKV[0]}
s_lshl_b32 s{sT}, s{sW4}, 12
v_lshlrev_b32 v{vT+2}, 7, v9
v_add_u32 v{vT+2}, s{sT}, v{vT+2}
v_bfe_u32 v{vT+1}, v9, 1, 3
v_xor_b32 v{vT+1}, v{vT+1}, v{vH}""")
    for u in range(4):
        a(f"""v_xor_b32 v{vT}, {2*u}, v{vT+1}
v_lshl_add_u32 v{XA+u}, v{vT}, 4, v{vT+2}
v_add_u32 v{XA+4+u}, 65536, v{XA+u}""")
    for j in range(4):
        wa_calc(WA+j, j)
        a(f"v_add_u32 v{WA+4+j}, 65536, v{WA+j}")
    g.qkv_addr()
    a(f"""s_sub_u32 s{sT}, s{sKC}, 1
s_cselect_b32 s{sT}, 9, s{sT}
s_lshl_b32 s{sT}, s{sT}, 12
s_lshr_b32 s{sT+1}, s{sTL}, 3
s_mul_i32 s{sT+1}, s{sT+1}, {AST}
s_add_u32 s{sT}, s{sT}, s{sT+1}
s_and_b32 s{sT+1}, s{sTL}, 7
s_mul_i32 s{sT+1}, s{sT+1}, 40960
s_add_u32 s{sT}, s{sT}, s{sT+1}
s_add_u32 s{sDst}, s{sT}, {ARENA + XF0}
v_lshlrev_b32 v30, 3, v{vLANE}
v_add_u32 v30, {FAUX}, v30""")
    a(f"v_mov_b32 v{SQ}, 0\nv_mov_b32 v{SQ+1}, 0")
    if 'tlb' in XP:
        a("s_mov_b64 exec, 1")
        for jj in range(3):
            for hf in range(2):
                a(f"buffer_load_dword v{SQ+4}, v{vL16}, s[{sWS}:{sWS+3}], s{sQA+1+4*jj+hf} offen")
        a("s_mov_b64 exec, -1")
    ops = [(s, j) for s in range(40) for j in range(4)]
    dsq = []
    seen = set()
    def reads(k):
        s, j = ops[k]; c, u = divmod(s, 4); slot = c % 4
        if c not in seen:
            seen.add(c); a("s_barrier")
            if c == 0: g.stamp("F0")
        hi = 4*(slot >> 1); im = (slot & 1)*FS
        if j == 0:
            a(f"ds_read_b128 {vr(XF[s%3],4)}, v{XA+hi+u} offset:{im}"); dsq.append(("x", s))
        w = WFR[k % FNB]
        for p in range(2):
            a(f"ds_read_b64_tr_b16 {vr(w+2*p,2)}, v{WA+hi+j} offset:{im + (16*u+4*p)*256}"); dsq.append(("w", k))
    def need(tag):
        nonlocal dsq
        if tag in dsq:
            i = len(dsq) - 1 - dsq[::-1].index(tag)
            n = len(dsq) - 1 - i
            assert n <= 15
            a(f"s_waitcnt lgkmcnt({n})"); dsq = dsq[i+1:]
    for k in range(FNB): reads(k)
    for k, (s, j) in enumerate(ops):
        need(("w", k))
        x = XF[s % 3]
        c = "0" if s == 0 else vr(ACC+16*j, 16)
        a(f"v_mfma_f32_32x32x16_bf16 {vr(ACC+16*j,16)}, {vr(WFR[k%FNB],4)}, {vr(x,4)}, {c}")
        g.stamp(f"g{k}")
        if k + FNB < len(ops): reads(k + FNB)
        if 'nosq' not in XP: a(f"""v_and_b32 v{SQ+2}, 0xffff0000, v{x+j}
v_lshlrev_b32 v{SQ+3}, 16, v{x+j}
v_fmac_f32 v{SQ}, v{SQ+2}, v{SQ+2}
v_fmac_f32 v{SQ+1}, v{SQ+3}, v{SQ+3}""")
        if s >= 36 and j == 0 and 'noxf' not in XP:
            a(f"buffer_store_dwordx4 {vr(x,4)}, v{vL16}, s[{sWS}:{sWS+3}], s{sDst} offen offset:{(s-36)*1024}")
    g.stamp("FM")
    a(f"""s_barrier
ds_read_b64 {vr(AUXA,2)}, v30
ds_read_b64 {vr(AUXA+2,2)}, v30 offset:512
ds_read_b64 {vr(AUXA+4,2)}, v30 offset:1024
ds_read_b64 {vr(AUXA+6,2)}, v30 offset:1536
v_add_f32 v{SQ}, v{SQ}, v{SQ+1}
v_cmp_gt_u32 vcc, 32, v{vLANE}
v_mov_b32 v{SQ+1}, v{SQ}
s_nop 1
v_permlane32_swap_b32 v{SQ}, v{SQ+1}
s_nop 1
v_add_f32 v{SQ}, v{SQ}, v{SQ+1}
v_cndmask_b32 v{STT}, v{SQ}, v{ACC+48+12}, vcc""")
    for l in g.stats_math(False, summed=True): a(l)
    for jj in range(3): a(f"v_mul_f32 v{20+2*jj}, v{20+2*jj}, v16")
    a("s_waitcnt lgkmcnt(0)")
    for j in range(4): g.aux_mfma(ACC+16*j, j, False)
    a("s_nop 10")
    g.qkv_epilogue()
    g.stamp("FE")
    a("L_front_done:")
    g.prof_store()
    a("L_front_end:\ns_endpgm")

    comp = a.L[mark0:]; del a.L[mark0:]
    vX0, vX1, vWv, vCS, vLA, vSO, vSD, vBI = 16, 17, 18, 19, 20, 22, 23, 24
    vCS2 = 30
    vWq, vXq, ONE, CSA = 48, 52, 56, 112
    LW, SR = 32, 64
    a(f"""L_front_loader:
v_lshrrev_b32 v{vT}, 3, v{vLANE}
v_mul_u32_u24 v{vT}, 1280, v{vT}
v_lshrrev_b32 v{vT+1}, 4, v{vLANE}       ; level
v_and_b32 v{vT+2}, 7, v{vLANE}
v_xor_b32 v{vT+2}, v{vT+2}, v{vT+1}
v_lshl_add_u32 v{vX0}, v{vT+2}, 4, v{vT}
v_xor_b32 v{vT+2}, 4, v{vT+2}
v_lshl_add_u32 v{vX1}, v{vT+2}, 4, v{vT}
v_and_b32 v{vT}, 3, v{vLANE}
v_lshl_add_u32 v{vT}, v{vT+1}, 2, v{vT}  ; 4*level + m
v_lshlrev_b32 v{vT}, 2, v{vT}
v_mov_b32 v{vT+2}, 0x86572310
v_mov_b32 v{vT+3}, 0x40e9bacd
v_lshrrev_b64 v[{vT+2}:{vT+3}], v{vT}, v[{vT+2}:{vT+3}]
v_and_b32 v{vT+2}, 15, v{vT+2}           ; piece
v_bfe_u32 v{vT}, v{vLANE}, 2, 2
v_mul_u32_u24 v{vT}, 3840, v{vT}
v_lshl_add_u32 v{vWv}, v{vT+2}, 4, v{vT}
s_mul_i32 s{sXB}, s{sTL}, {32*1280}
s_mul_i32 s{sWB}, s{sW4}, {16*3840}
s_mul_i32 s{sT}, s{sCB2}, 240
s_add_u32 s{sWB}, s{sWB}, s{sT}
s_lshl_b32 s{sM0}, s{sW4}, 12
""")
    for q in range(4):
        a(f"v_add_u32 v{vWq+q}, {q*(4*3840-1024)}, v{vWv}")
    for q in range(4):
        a(f"v_add_u32 v{vXq+q}, {q*(10240-1024)}, v{vX0+(q&1)}")
    a(f"""s_mov_b32 s{sEX}, -1
s_mov_b32 s{sEX+1}, 0xbbbbffff
s_waitcnt lgkmcnt(0)
""")
    if prof: a("s_mov_b32 s99, s100" if prof == 1 else "s_mov_b32 s99, s3")
    srd(a, sXS, 84, S*D*2)
    srd(a, sQS, 86, D*3*D*2)
    def csops(k):
        if k % 4 == 0:
            a(f"v_mfma_f32_32x32x16_bf16 {vr(CSA,16)}, {vr(ONE,4)}, {vr(LW+k,4)}, {vr(CSA,16)}")
    def dma(c, with_cs=False):
        slot = c % 4
        a(f"""s_mov_b64 exec, s[{sEX}:{sEX+1}]
s_add_u32 m0, s{sM0}, {slot*FS + 16384}
s_mul_i32 s{sT+1}, s{sKC}, {64*3840}
s_add_u32 s{sT+1}, s{sT+1}, s{sWB}""")
        for q in range(4):
            a(f"buffer_load_dwordx4 v{vWq+q}, s[{sQS}:{sQS+3}], s{sT+1} offen offset:{q*1024} lds")
        a(f"""s_mov_b64 exec, -1
s_add_u32 m0, s{sM0}, {slot*FS}
s_lshl_b32 s{sT}, s{sKC}, 7
s_add_u32 s{sT}, s{sT}, s{sXB}""")
        if with_cs: a("s_waitcnt lgkmcnt(0)")
        for q in range(4):
            if with_cs:
                for k in range(4*q, 4*q+4): csops(k)
            a(f"buffer_load_dwordx4 v{vXq+q}, s[{sXS}:{sXS+3}], s{sT} offen offset:{q*1024} lds")
        if c < 9:
            a(f"""s_add_u32 s{sKC}, s{sKC}, 1
s_cmp_eq_u32 s{sKC}, 10
s_cselect_b32 s{sKC}, 0, s{sKC}""")
    g.stamp('L0'); dma(0); g.stamp('L1')
    lane_common(); srds_more()
    for j in range(4):
        l = a.label("wa")
        a(f"s_cmp_lg_u32 s{sW4}, {j}\ns_cbranch_scc1 {l}")
        wa_calc(vLA, j)
        a(f"{l}:")
    dma(1); g.stamp('L2')
    a(f"v_add_u32 v{vLA+1}, 65536, v{vLA}\n")
    for k in range(16): a(f"v_mov_b32 v{CSA+k}, 0")
    for k in range(4): a(f"v_mov_b32 v{ONE+k}, v11")
    def rd(c):
        slot = c % 4
        for u in range(4):
            for p in range(2):
                a(f"ds_read_b64_tr_b16 {vr(LW+4*u+2*p,2)}, v{vLA + (slot>>1)} offset:{(slot&1)*FS + (16*u+4*p)*256}")
    def cs():
        a("s_waitcnt lgkmcnt(0)")
        for k in range(16): csops(k)
    for c in range(8):
        a("s_waitcnt vmcnt(8)")
        g.stamp(f"W{c}")
        a("s_barrier")
        if c == 0 and 'hp' not in XP: a("s_setprio 0")
        rd(c); dma(c+2, True)
        g.stamp(f"D{c}")
    def tail(y):
        a(f"s_waitcnt vmcnt({8+y})\ns_barrier")
        rd(8); cs()
        a(f"s_waitcnt vmcnt({y})\ns_barrier")
        rd(9)
        a(f"""v_mul_u32_u24 v{vT}, 384, v{vH}
v_lshl_add_u32 v{vT}, v9, 4, v{vT}
v_mov_b32 v{vT+1}, {OOB}
v_cmp_gt_u32 vcc, 24, v9
s_mul_i32 s{sT+4}, s{sCB2}, 163840
s_add_u32 s{sT+4}, s{sT+4}, {WQKV_F}
v_cndmask_b32 v{vT}, v{vT+1}, v{vT}, vcc
s_cmp_eq_u32 s{sW4}, 3
s_cselect_b64 vcc, -1, 0
s_cselect_b32 s{sT+5}, 768, 3072
s_lshl_b32 s{sT+6}, s{sW4}, 10
s_cmp_eq_u32 s{sW4}, 3
s_cselect_b32 s{sT+6}, 15360, s{sT+6}
s_add_u32 s{sT+4}, s{sT+4}, s{sT+6}
v_cndmask_b32 v{vT}, v{vL16}, v{vT}, vcc""".replace("s_cselect_b32 s55, 768, 3072", "s_movk_i32 s55, 3072\ns_cselect_b32 s55, 768, s55"))
        cs()
        a(f"""s_nop 12
v_and_b32 v{vT+1}, 0xffff0000, v{CSA}
v_sub_f32 v{vT+3}, v{CSA}, v{vT+1}
v_lshrrev_b32 v{vT+2}, 16, v{vT+1}
v_cmp_gt_u32 vcc, 32, v{vLANE}
v_or_b32 v{vT+2}, v{vT+2}, v{vT+1}
v_lshrrev_b32 v{vT+3}, 16, v{vT+3}
v_cndmask_b32 v{vT+2}, 0, v{vT+2}, vcc
v_cndmask_b32 v{vT+3}, 0, v{vT+3}, vcc
s_lshl_b32 s{sT+6}, s{sW4}, 9
v_lshlrev_b32 v{vT+1}, 3, v{vLANE}
v_add_u32 v{vT+1}, s{sT+6}, v{vT+1}
v_add_u32 v25, {FAUX}, v{vT+1}
ds_write_b64 v25, {vr(vT+2,2)}
s_waitcnt lgkmcnt(0)
s_barrier""")
        l = a.label("noaux")
        a(f"""s_cmp_lg_u32 s{sRB128}, 0
s_cbranch_scc1 {l}
s_lshl_b32 s{sT+6}, s{sCB2}, 11
s_add_u32 s{sT+6}, s{sT+6}, {AUXQ}
buffer_store_dwordx2 {vr(vT+2,2)}, v{vT+1}, s[{sWS}:{sWS+3}], s{sT+6} offen
{l}:""")
        for u in range(0 if 'noxf' in XP else 4):
            a(f"""s_lshl_b32 s{sT}, s{sKC}, 2
s_add_u32 s{sT}, s{sT}, {u}              ; ks
s_mul_i32 s{sT+1}, s{sT}, 0x3334
s_lshr_b32 s{sT+1}, s{sT+1}, 16          ; ks/5
s_mul_i32 s{sT+2}, s{sT+1}, 5
s_sub_u32 s{sT}, s{sT}, s{sT+2}
s_mul_i32 s{sT}, s{sT}, s{sT+5}
s_mul_i32 s{sT+1}, s{sT+1}, 20480
s_add_u32 s{sT}, s{sT}, s{sT+1}
s_add_u32 s{sT}, s{sT}, s{sT+4}
buffer_store_dwordx4 {vr(LW+4*u,4)}, v{vT}, s[{sWS}:{sWS+3}], s{sT} offen""")
    a("L_ft_idle:")
    tail(0)
    a(f"""s_cmp_lt_u32 s2, 240
s_cbranch_scc1 L_front_done
s_cmp_lg_u32 s{sW4}, 0
s_cbranch_scc1 L_front_done
s_cmp_ge_u32 s2, 248
s_cbranch_scc1 L_front_done
s_sub_u32 s{sT}, s2, 240
s_lshl_b32 s{sT+1}, s{sT}, 9
s_add_u32 s{sT+1}, s{sT+1}, {XCC}
s_mul_i32 s{sT}, s{sT}, {AST}
s_add_u32 s{sT}, s{sT}, {ARENA + A_FL}
s_add_u32 s{sT+2}, s{sT}, 4096
v_mov_b32 v28, 0
v_mov_b32 v29, 0
v_mov_b32 v30, 0
v_mov_b32 v31, 0
v_lshlrev_b32 v25, 3, v{vLANE}""")
    for q in range(8):
        a(f"buffer_store_dwordx4 v[28:31], v{vL16}, s[{sWS}:{sWS+3}], s{sT + 2*(q//4)} offen offset:{(q%4)*1024}")
    a(f"buffer_store_dwordx2 v[28:29], v25, s[{sWS}:{sWS+3}], s{sT+1} offen\ns_branch L_front_done")

    a.L.extend(comp)
```

```python
import os
DEBUG_SEP = int(os.environ.get("DEBUG_SEP", "0"))
S, D, F, H, DH = 2048, 640, 1536, 32, 20
WFL    = 0x000000
XCC    = 0x000400
QF     = 0x010000
AUXQ   = 0x040000
AUX1   = 0x048000
WQKV_F = 0x200000
WO_F   = 0x480000
W1_F   = 0x580000
W2_F   = 0x780000
ARENA  = 0xA00000
AST    = 0x400000 if DEBUG_SEP else 0x180000
A_O    = 0x000000
A_H    = 0x050000
A_ST   = 0x110000
A_FL   = 0x118000
TOUCH_BYTES = 0x11A000
A_X    = 0x120000
if DEBUG_SEP:
    XF0, X1F, X2F = A_X, [0x180000, 0x1D0000], 0x220000
    STAT = [A_ST, 0x270000, 0x278000, 0x280000]
    OF, HF = [A_O, 0x290000], [A_H, 0x2E0000]
else:
    XF0, X1F, X2F = A_X, [A_X, A_X], A_X
    STAT = [A_ST]*4
    OF, HF = [A_O, A_O], [A_H, A_H]
QKV    = [ARENA + 8*AST, ARENA + 8*AST + 0x780000]
PROF   = 0x4000000
CH = 20480
NSLOT = 7
MISC = NSLOT*CH
LDS_BYTES = 163840
```

```python
import math, struct, os
from dsl import *
from layout import *

OOB = 0x40000000
def f2u(x): return struct.unpack("<I", struct.pack("<f", x))[0]
QSCALE = DH ** -0.5 * math.log2(math.e)
EPS = 1e-5

sWS, sOUT, sB2 = 4, 8, 12
sWAVE, sG, sJ, sSLOW = 16, 17, 18, 19
sQIN, sQOUT, sRES, sFLG, sXCA, sLAST = 20, 21, 22, 23, 24, 25
sSTQ, sACTQ, sNOPOLL, sXCC = 26, 27, 28, 29
sOF, sX1F, sHF, sST1 = 30, 31, 32, 33
sCB, sRB, sCB2, sRB2 = 34, 35, 36, 37
sKH, sT2, sTL = 38, 39, 40
sSRC, sC, sSLOT, sLDW = 41, 42, 43, 44
sWO, sW1, sW2, sWQ = 45, 46, 47, 48
sT = 50
sPROF = 60
sQA = 84
sKID = 98
sWRM = 49
sAR1 = 96
sWRM2, sWRM3, sDST, sN, sAR = 93, 94, 95, 97, 92
vLANE, vL16, vSW, vTL, vH = 1, 2, 3, 4, 5
vK1, vK2, vVA = 6, 7, 8
vB0, vB1, vB2 = 6, 7, 8
vP0, vP1, vP2 = 9, 10, 11
vT = 12
Q1, Q2, K1, K2, V0, V1, P, SS, O = 16, 20, 24, 28, 32, [36, 40], 44, [52, 68], 84
vBK1, vBK2, vBV, vMK, vMV, vXC = 100, 101, 102, 106, 107, 108
vWRM, vDUM = 110, 111
SR, vSO, vSD, vBI, vSC, ONE, CSA = 128, 168, 169, 170, 171, 172, 176
sA, sBp, sSo, sDs, sSt, sAx, sQd, sTy, sSS, sBS = 41, 44, 45, 46, 47, 48, 42, 28, 84, 88
WFL = XCC + 0x800
vPL = 252
AUXB, AUXA, WF, ACC, ACT, STT = 38, 40, 48, 64, 128, 192
RA0, RA2, RA1 = 208, 224, 240
AUXB16, AUXA16 = 32, 36
NACT = 12
WFR = [48, 52, 56, 60, 176, 180, 184, 188]
NB3, NB4 = int(os.environ.get('NB3', 6)), int(os.environ.get('NB4', 8))
NPRE, ADEPTH, STAT_AT = int(os.environ.get('NPRE', 7)), int(os.environ.get('ADEPTH', 11)), 8
RAMP = int(os.environ.get('RAMP', 4))
GDEF = int(os.environ.get('GDEF', 3))
PRE13 = int(os.environ.get('PRE13', 1))
C13 = 140
N80_TAIL = 8
WR_LAG = 1
F0 = 13
NF = 7
FB = [int(os.environ.get('FB0', 26)), int(os.environ.get('FB1', 24))]
LSCHED = eval(os.environ.get('LSCHED', '{0: 1, 2: 2, 8: 3, 12: -6, 16: 4, 19: -7, 23: 5, 26: 6, 28: 7, 30: 8, 33: 9, 36: -1, 38: 10, 42: -2, 45: -3, 48: 11, 50: -4, 52: -5, 55: 12}'))
HALF0 = int(os.environ.get('HALF0', 1))
S_LD, S_WR, S_FLAG, S_POLL = eval(os.environ.get('SS', '(3, 11, 22, 28)'))
CSCHED = eval(os.environ.get('CSCHED', "{44: [(0,'ar0')], 47: [(1,'ar0')], 50: [(2,'ar0')], 53: [(3,'ar0')], 54: [(0,'ar1')], 57: [(None,'res')]}"))
if PRE13: CSCHED.update(eval(os.environ.get('C13S', "{40: [(None, 'c13')], 59: [(None, 'c14')]}")))
XC_AT = 40
PRIO = {}
for _c in range(8):
    PRIO.update({8*_c+6: 3, 8*_c: 2, 8*_c+2: 1, 8*_c+4: 0})
PRIO.pop(62); PRIO.update({54: 3, 56: 3, 58: 2, 60: 1, 62: 0})
FIFO_ATT = eval(os.environ.get('FIFO_ATT', '{4: [0, 1], 5: [2, 3], 6: [4, 5], 7: [6]}'))
SYNC = eval(os.environ.get('SYNC', '{9: 0, 10: 0, 11: 0, 13: 14, 14: 0, 15: 15, 16: 16, 17: 17, 18: 18, 19: 21, 20: 0, 21: 0, 22: 22, 23: 23, 24: 24, 25: 25, 26: 26, 27: 27, 28: 28, 29: 29, 30: 30, 31: 33, 32: 0, 33: 0, 34: 34, 35: 35, 36: 36, 37: 37, 38: 38}'))
XFIFO = eval(os.environ.get('XFIFO', '{"E0": [17, 18]}'))
PLAN = eval(os.environ.get('PLAN', '{"def": 1, "wdef": 5, "B10": 2, "B11": 2, "X0": 3, "B13": 0, "B14": 3, "B15": 3, "B16": 2, "B17": 3, "B18": 3, "E1": 12, "B19": 0, "B20": 2, "B21": 2, "B22": 2, "B23": 3, "B24": 3, "B28": 2, "B29": 2, "B30": 1, "X1": 3, "B31": 0, "B32": 4, "B33": 4, "B34": 5, "B35": 5, "B36": 4}'))
WPACE = int(os.environ.get('WPACE', 0))
DRIP = 2
PKR = 112
import os
STD = ["att0", "attE", "woP", "woM", "w1P", "w1M", "w2P", "w2M", "qP", "qM", "qE"]
STAMPS = os.environ.get("STAMPS", ",".join(STD)).split(",")
SIDE = eval(os.environ.get('SIDE', "{3: ['w2a'], 4: ['w2b'], 5: ['ar0'], 6: ['ar1', 'res']}"))
XP = os.environ.get('XP', '')
QST = os.environ.get('QST', ' sc0 sc1')
CHAIN_TOUCH = 0
KV_NT = int(os.environ.get("KV_NT", 0))

class VM:
    def __init__(self): self.q = []
    def issue(self, tag): self.q.append(tag)
    def need(self, tag):
        if tag not in self.q: return None
        i = len(self.q) - 1 - self.q[::-1].index(tag)
        n = len(self.q) - 1 - i
        self.q = self.q[i+1:]
        return n
    def drain(self): self.q = []

class Gen:
    def __init__(self, a, prof):
        self.a = a; self.prof = prof
        self.bar = []
        self.acq = 8
        self.left = {}
        self.dsq = []
        self.freed = set()
        self.vm = VM()
        self.basechunk = {}
        self.seen = set()
        self.drip = []

    def stamp(self, name):
        if isinstance(name, int): name = STD[name]
        name = {"F0": "att0", "g0": "attE", "g32": "woP", "g64": "woM", "g96": "w1P", "g128": "w1M", "FM": "qM", "FE": "qE"}.get(name, name) if name not in STAMPS else name
        if self.prof and name in STAMPS:
            i = STAMPS.index(name)
            self.a(f"{'s_memrealtime' if self.prof == 2 else 's_memtime'} s[{sPROF+2*i}:{sPROF+2*i+1}]")

    def barrier(self, need=None, tag=None):
        busy = {c for c, _ in self.dsq}
        fr = [c for c, n in sorted(self.left.items()) if n == 0 and c not in busy and c not in self.freed]
        self.freed |= set(fr)
        self.bar.append(dict(need=need, free=fr, tag=tag if tag else f"B{need}"))
        self.a("s_barrier")
        if need is not None: self.acq = need
    def lgkm(self, n):
        self.a(f"s_waitcnt lgkmcnt({n})")
        if len(self.dsq) > n: self.dsq = self.dsq[len(self.dsq)-n:] if n else []
    def dsneed(self, tag):
        tags = [t for _, t in self.dsq]
        if tag in tags:
            self.lgkm(len(tags) - 1 - tags.index(tag))
    def wread(self, dst, chunk, kind, off, tag=None):
        a = self.a
        if chunk not in self.seen:
            self.seen.add(chunk)
            if chunk in SYNC:
                self.barrier(max(SYNC[chunk], self.acq), tag=f"B{chunk}")
            assert chunk <= self.acq, (chunk, self.acq)
        if self.basechunk.get(kind) != chunk:
            a(f"v_add_u32 v{vB0+kind}, {(chunk % NSLOT)*CH}, v{vP0+kind}")
            self.basechunk[kind] = chunk
        a(f"ds_read_b128 {vr(dst,4)}, v{vB0+kind} offset:{off}")
        self.left[chunk] -= 1
        self.dsq.append((chunk, tag))

    def poll(self, phase, nslots):
        a = self.a
        lp, ld = a.label("poll"), a.label("polld")
        mask = (1 << nslots) - 1
        a(f"""
s_lshl_b32 s{sT}, s{sTL}, 7
s_add_u32 s{sT}, s{sT}, s{sFLG}
s_add_u32 s{sT}, s{sT}, {phase*1024}
v_and_b32 v{vT}, 31, v{vLANE}
v_lshlrev_b32 v{vT}, 2, v{vT}
s_mov_b32 s{sT+1}, 0x100000
{lp}:
buffer_load_dword v{vT+1}, v{vT}, s[{sWS}:{sWS+3}], s{sT} offen sc1
s_sub_u32 s{sT+1}, s{sT+1}, 1
s_cbranch_scc1 {ld}
s_waitcnt vmcnt(0)
v_cmp_eq_u32 vcc, 0, v{vT+1}
s_and_b32 s{sT+2}, vcc_lo, {mask:#x}
s_cbranch_scc1 {lp}
{ld}:
s_waitcnt vmcnt(0)
""")
        ls = a.label("noinv")
        a(f"""
s_cmp_eq_u32 s{sSLOW}, 0
s_cbranch_scc1 {ls}
buffer_inv sc1
s_waitcnt vmcnt(0)
{ls}:
""")
        self.vm.drain()

    def publish(self, phase, slot_sreg, vmn=0):
        a = self.a
        l1, l2 = a.label("pubslow"), a.label("pubdone")
        a(f"""
s_lshl_b32 s{sT}, s{sTL}, 7
s_add_u32 s{sT}, s{sT}, s{sFLG}
s_add_u32 s{sT}, s{sT}, {phase*1024}
s_lshl_b32 s{sT+1}, s{slot_sreg}, 2
s_add_u32 s{sT}, s{sT}, s{sT+1}
v_mov_b32 v{vT}, 0
v_mov_b32 v{vT+1}, 1
s_cmp_lg_u32 s{sSLOW}, 0
s_cbranch_scc1 {l1}
s_waitcnt vmcnt({vmn})
s_mov_b64 exec, 1
buffer_store_dword v{vT+1}, v{vT}, s[{sWS}:{sWS+3}], s{sT} offen
s_branch {l2}
{l1}:
s_waitcnt vmcnt(0)
buffer_wbl2 sc1
s_waitcnt vmcnt(0)
s_mov_b64 exec, 1
buffer_store_dword v{vT+1}, v{vT}, s[{sWS}:{sWS+3}], s{sT} offen sc1
{l2}:
s_mov_b64 exec, -1
""")
        self.vm.drain(); self.vm.issue("flag")

    def make_ops(self, nsteps, nt, tail=0, tail_order=None):
        ops = [(s, j) for s in range(nsteps - tail) for j in range(nt)]
        for j in (tail_order or range(nt)):
            ops += [(s, j) for s in range(nsteps - tail, nsteps)]
        return ops

    def first_w(self, ops, nb, frag):
        for k in range(nb):
            self.wread(WFR[k], *frag(*ops[k]), tag=k)

    def gemm(self, ops, nb, accs, frag, act_ks, sact, cinit, hooks, pre_stats=None, nm="", pre=()):
        a = self.a
        nsteps = max(s for s, _ in ops) + 1
        lastuse = {}
        for k, (s, j) in enumerate(ops): lastuse[s] = k
        cur = [None]; nxt = [0]
        tailn = N80_TAIL if nm in 'ow' else 0
        def aload():
            s = nxt[0]; nxt[0] += 1
            ks = act_ks(s)
            if cur[0] != ks // 4:
                cur[0] = ks // 4
                a(f"s_add_u32 s{sT+3}, s{sact}, {(ks//4)*4096}")
            a(f"buffer_load_dwordx4 {vr(ACT+4*(s%NACT),4)}, v{vL16}, s[{sWS}:{sWS+3}], s{sT+3} offen offset:{(ks%4)*1024} sc1")
            self.vm.issue(("act", s))
        for _ in range(min(NPRE, nsteps)): aload()
        for h in pre: h()
        started = set()
        for k, (s, j) in enumerate(ops):
            n = self.vm.need(("act", s))
            if n is not None: a(f"s_waitcnt vmcnt({n})")
            self.dsneed(k)
            c = vr(accs[j], 16) if (j in started or cinit[j]) else "0"
            started.add(j)
            a(f"v_mfma_f32_32x32x16_bf16 {vr(accs[j],16)}, {vr(WFR[k%nb],4)}, {vr(ACT+4*(s%NACT),4)}, {c}")
            self.stamp(f"{nm}{k}")
            if k + nb < len(ops):
                self.wread(WFR[k%nb], *frag(*ops[k+nb]), tag=k+nb)
            if (j == 0 or (j == 1 and s % RAMP == RAMP-1) or (s >= nsteps - tailn and j == 1)) and nxt[0] < nsteps and (nxt[0] < NACT or lastuse[nxt[0]-NACT] <= k) and nxt[0] <= s + ADEPTH:
                aload()
            if pre_stats and j == 2 and s % 2 == 0 and s // 2 < 4: pre_stats(s // 2)
            for h in hooks.get((s, j), []) + hooks.get(k - len(ops), []):
                h()
            for _ in range(DRIP):
                if self.drip:
                    d = self.drip.pop(0)
                    if callable(d): d()
                    else: a(d)
        assert nxt[0] == nsteps and not self.drip

    def stats_load(self, sbase):
        a = self.a
        def f(q):
            if q == 0: a(f"s_lshl_b32 s{sT+4}, s{sTL}, 12\ns_add_u32 s{sT+4}, s{sT+4}, s{sbase}")
            a(f"buffer_load_dwordx4 {vr(STT+4*q,4)}, v{vL16}, s[{sWS}:{sWS+3}], s{sT+4} offen offset:{1024*q} sc1")
            self.vm.issue(("st", q))
        return f

    def stats_math(self, double, summed=False):
        a = self.a
        L = []
        if not summed:
            def w():
                n = self.vm.need(("st", 3))
                if n is not None: a(f"s_waitcnt vmcnt({n})")
            L = [w]
            for q in range(8): L.append(f"v_add_f32 v{STT+q}, v{STT+q}, v{STT+8+q}")
            for q in range(4): L.append(f"v_add_f32 v{STT+q}, v{STT+q}, v{STT+4+q}")
            L += f"""v_add_f32 v{STT}, v{STT}, v{STT+2}
v_add_f32 v{STT+1}, v{STT+1}, v{STT+3}
v_add_f32 v{STT}, v{STT}, v{STT+1}""".split("\n")
        L += f"""v_mul_f32 v{STT}, {f2u(1.0/D):#x}, v{STT}
v_mov_b32 v{STT+1}, v{STT}
s_nop 1
v_permlane32_swap_b32 v{STT}, v{STT+1}
v_cmp_gt_u32 vcc, 32, v{vLANE}
v_fma_f32 v{STT+1}, -v{STT}, v{STT}, v{STT+1}
v_max_f32 v{STT+1}, 0, v{STT+1}
v_add_f32 v{STT+2}, {f2u(EPS):#x}, v{STT+1}
v_rsq_f32 v16, v{STT+2}
v_sub_f32 v{STT+4}, 0, v{STT}
v_mov_b32 v18, 0xffff0000
v_and_b32 v{STT+5}, 0xffff0000, v{STT+4}
v_sub_f32 v{STT+6}, v{STT+4}, v{STT+5}
v_lshrrev_b32 v{STT+5}, 16, v{STT+5}""".split("\n")
        if not double:
            L += f"""v_and_or_b32 v{AUXB}, v{STT+6}, v18, v{STT+5}
v_mov_b32 v{AUXB+1}, v{STT+5}""".split("\n")
            return L
        L += f"""v_mul_f32 v{STT+3}, v16, v16
v_mul_f32 v{STT+3}, v{STT+3}, v{STT+1}
v_add_f32 v{STT+3}, {f2u(EPS):#x}, v{STT+3}
v_rsq_f32 v{STT+3}, v{STT+3}
v_and_or_b32 v{AUXB16}, v{STT+6}, v18, v{STT+5}
v_mul_f32 v16, v16, v{STT+3}
v_rcp_f32 v17, v16
v_mov_b32 v{AUXB16+2}, v{AUXB16}
v_cndmask_b32 v{STT+7}, v17, 0, vcc
v_and_b32 v{STT+8}, 0xffff0000, v{STT+7}
v_sub_f32 v{STT+9}, v{STT+7}, v{STT+8}
v_or_b32 v{AUXB16+1}, v{STT+8}, v{STT+5}
v_and_or_b32 v{AUXB16+3}, v{STT+9}, v18, v{STT+5}""".split("\n")
        return L

    def aux_load(self, w1):
        a = self.a
        if w1:
            a(f"s_lshl_b32 s{sT}, s{sCB2}, 12\ns_add_u32 s{sT}, s{sT}, {AUX1}")
            for j in range(3):
                a(f"buffer_load_dwordx4 {vr(AUXA16+4*j,4)}, v{vL16}, s[{sWS}:{sWS+3}], s{sT} offen offset:{1024*j}")
                self.vm.issue(("aux", j))
        else:
            a(f"s_lshl_b32 s{sT}, s{sCB2}, 11\ns_add_u32 s{sT}, s{sT}, {AUXQ}\nv_lshlrev_b32 v{vT}, 3, v{vLANE}")
            for j in range(4):
                a(f"buffer_load_dwordx2 {vr(AUXA+2*j,2)}, v{vT}, s[{sWS}:{sWS+3}], s{sT} offen offset:{512*j}")
                self.vm.issue(("aux", j))

    def aux_mfma(self, acc, j, double):
        if double:
            self.a(f"v_mfma_f32_32x32x16_bf16 {vr(acc,16)}, {vr(AUXA16+4*j,4)}, {vr(AUXB16,4)}, {vr(acc,16)}")
        else:
            self.a(f"v_mfma_f32_32x32x8_bf16 {vr(acc,16)}, {vr(AUXA+2*j,2)}, {vr(AUXB,2)}, {vr(acc,16)}")

    def aux_hooks(self, hooks, nt, accs, double, s0, extra=()):
        L = self.stats_math(double) + list(extra)
        hooks.setdefault((s0, 0), []).append(lambda: self.drip.extend(L))
        sa = s0 + (len(L) + DRIP*nt - 1) // (DRIP*nt) + 1
        for j in range(nt):
            def mk(j):
                def f():
                    assert not self.drip
                    self.aux_mfma(accs[j], j, double)
                return f
            hooks.setdefault((sa, j), []).append(mk(j))

    def set_tl_128(self):
        a = self.a
        a(f"""s_lshl_b32 s{sTL}, s{sRB2}, 2
s_add_u32 s{sTL}, s{sTL}, s{sWAVE}""")
    def set_tl_64(self):
        a = self.a
        a(f"""s_lshl_b32 s{sTL}, s{sRB}, 1
s_add_u32 s{sTL}, s{sTL}, s{sT2}""")
    def tt_off(self, dst, base_sreg, tile_bytes):
        a = self.a
        a(f"""s_mul_i32 s{dst}, s{sTL}, {tile_bytes}
s_add_u32 s{dst}, s{dst}, s{base_sreg}""")

    def phase_qkv(self, c0):
        a = self.a
        a.c("================ QKV phase")
        for c in range(8): self.left[c0+c] = 20
        self.basechunk = {}
        def frag(s, j):
            c, u = divmod(s, 5)
            return (c0+c, 0, (u*3+j)*1024) if j < 3 else (c0+c, 1, 15360 + u*768)
        self.set_tl_128()
        a(f"""v_mov_b32 v{vP0}, v{vL16}
v_and_b32 v{vT}, 31, v{vLANE}
v_subrev_u32 v{vT+1}, 24, v{vT}
v_min_u32 v{vT}, v{vT}, v{vT+1}
v_lshlrev_b32 v{vT}, 4, v{vT}
v_mul_u32_u24 v{vP1}, 384, v{vH}
v_add_u32 v{vP1}, v{vP1}, v{vT}""")
        ops = self.make_ops(40, 4)
        self.stamp("x1e")
        self.first_w(ops, NB4, frag)
        self.stamp("x1f")
        self.poll(3, 16)
        self.stamp(8)
        self.tt_off(sT+6, sACTQ, 40960)
        accs = [ACC+16*j for j in range(4)]
        hooks = {}
        self.aux_hooks(hooks, 4, accs, False, 14, [f"v_mul_f32 v{20+2*jj}, v{20+2*jj}, v16" for jj in range(3)])
        self.gemm(ops, NB4, accs, frag, lambda s: s, sT+6, [False]*4, hooks, pre_stats=self.stats_load(sSTQ), nm='q', pre=[self.qkv_addr])
        self.stamp(9)
        a("s_nop 7")
        self.qkv_epilogue()
        self.stamp(10)

    def qkv_addr(self):
        a = self.a
        self.tt_off(sQA, sQOUT, 2560)
        for jj in range(3):
            b = sQA + 1 + 4*jj
            a(f"""s_mul_i32 s{sT+7}, s{sCB2}, 6
s_add_u32 s{sT+7}, s{sT+7}, {2*jj}
s_lshr_b32 s{sT+8}, s{sT+7}, 1
s_add_u32 s{sT+8}, s{sT+8}, 32
s_and_b32 s{sT+9}, s{sT+7}, 31
s_cmp_lt_u32 s{sT+7}, 32
s_cselect_b32 s{sT+8}, s{sT+8}, s{sT+9}
s_mov_b32 s{b+1}, 163840
s_cselect_b32 s{b+3}, 256, s{b+1}
s_cselect_b32 s{b+1}, 1024, s{b+1}
s_cselect_b32 s{sT+9}, {f2u(QSCALE):#x}, 1.0
v_mov_b32 v{20+2*jj}, s{sT+9}
s_mul_i32 s{sT+8}, s{sT+8}, 163840
s_add_u32 s{sT+8}, s{sT+8}, s{sQA}
s_cmp_ge_u32 s{sT+7}, 64
s_cselect_b32 s{b}, 1024, 0
s_cselect_b32 s{b+2}, 256, 0
s_add_u32 s{b}, s{b}, s{sT+8}
s_add_u32 s{b+2}, s{b+2}, s{sT+8}
s_add_u32 s{b+1}, s{b+1}, s{b}
v_mul_lo_u32 v{26+jj}, s{b+3}, v{vH}
v_add_u32 v{26+jj}, v{26+jj}, v{vTL}""")

    def qkv_epilogue(self):
        a = self.a
        for jj in range(3):
            b = sQA + 1 + 4*jj
            for hf in range(2):
                r = ACC + 16*jj + 8*hf
                for k in range(4):
                    a(f"v_pk_mul_f32 {vr(r+2*k,2)}, {vr(r+2*k,2)}, {vr(20+2*jj,2)} op_sel_hi:[1,0]")
                for k in range(4):
                    a(f"v_cvt_pk_bf16_f32 v{r+k}, v{r+2*k}, v{r+2*k+1}")
                a(f"buffer_store_dwordx4 {vr(r,4)}, v{vSW}, s[{sWS}:{sWS+3}], s{b+hf} offen{QST}")
        for jj in range(3):
            b = sQA + 1 + 4*jj
            r = ACC + 48 + 4*jj
            for k in range(2):
                a(f"v_pk_mul_f32 {vr(r+2*k,2)}, {vr(r+2*k,2)}, {vr(20+2*jj,2)} op_sel_hi:[1,0]")
            for k in range(2):
                a(f"v_cvt_pk_bf16_f32 v{r+k}, v{r+2*k}, v{r+2*k+1}")
            a(f"buffer_store_dwordx2 {vr(r,2)}, v{26+jj}, s[{sWS}:{sWS+3}], s{b+2} offen{QST}")

    def unpack(self, dst, src, n):
        a = self.a
        for k in range(n):
            a(f"v_lshlrev_b32 v{dst+2*k}, 16, v{src+k}")
            a(f"v_and_b32 v{dst+2*k+1}, 0xffff0000, v{src+k}")

    def n80_patterns(self):
        a = self.a
        a(f"""s_mul_i32 s{sT}, s{sKH}, {10240+1024}
s_mul_i32 s{sT+1}, s{sKH}, {10240-1024}
s_add_u32 s{sT+1}, s{sT+1}, 1024
s_mul_i32 s{sT+2}, s{sKH}, 10240
s_add_u32 s{sT+2}, s{sT+2}, 2048
v_add_u32 v{vP0}, s{sT}, v{vL16}
v_add_u32 v{vP1}, s{sT+1}, v{vL16}
v_and_b32 v{vT}, 15, v{vLANE}
v_lshlrev_b32 v{vT}, 4, v{vT}
v_lshl_add_u32 v{vT}, v{vH}, 8, v{vT}
v_add_u32 v{vP2}, s{sT+2}, v{vT}""")

    def b2load(self):
        self.a(f"""s_mul_i32 s{sT}, s{sCB}, 160
s_lshl_b32 s{sT+1}, s{sKH}, 6
s_add_u32 s{sT+1}, s{sT+1}, s{sT}
v_lshlrev_b32 v{vT}, 4, v{vH}
buffer_load_dwordx4 v[24:27], v{vT}, s[{sB2}:{sB2+3}], s{sT+1} offen
buffer_load_dwordx4 v[28:31], v{vT}, s[{sB2}:{sB2+3}], s{sT+1} offen offset:32
buffer_load_dwordx4 v[32:35], v{vT}, s[{sB2}:{sB2+3}], s{sT} offen offset:128""")

    def phase_n80(self, which, c0, nchunks):
        a = self.a
        a.c(f"================ {'WO' if which == 0 else 'W2'} phase")
        for c in range(nchunks): self.left[c0+c] = 12
        self.basechunk = {}
        def frag(s, j):
            c, u = divmod(s, 4)
            return (c0+c, j, u*2560)
        self.set_tl_64()
        self.n80_patterns()
        ops = self.make_ops(nchunks*4, 3, N80_TAIL, [1, 2, 0])
        self.first_w(ops, NB3, frag)
        self.poll(0 if which == 0 else 2, 32 if which == 0 else 16)
        self.stamp(2 if which == 0 else 6)
        self.tt_off(sT+6, sOF if which == 0 else sHF, 40960 if which == 0 else 98304)
        a(f"s_lshl_b32 s{sT}, s{sKH}, 12\ns_add_u32 s{sT+6}, s{sT+6}, s{sT}")
        accs = [RA0, RA1, RA2]
        hooks = {}
        def xaddr():
            a(f"""s_lshl_b32 s{sT}, s{sWAVE}, 12
s_add_u32 s{sT}, s{sT}, {MISC}
v_add_u32 v20, s{sT}, v{vL16}
s_lshl_b32 s{sT}, s{sT2}, 11
s_add_u32 s{sT}, s{sT}, {MISC+16384}
v_add_u32 v22, s{sT}, v{vL16}""")
        def xaddr2():
            a(f"""s_xor_b32 s{sT}, s{sWAVE}, 2
s_lshl_b32 s{sT}, s{sT}, 12
s_add_u32 s{sT}, s{sT}, {MISC}
v_add_u32 v21, s{sT}, v{vL16}""")
        pre = [xaddr, xaddr2]
        def oaddr():
            self.tt_off(sQA, sX1F if which == 0 else sACTQ, 40960)
            a(f"""s_mul_i32 s{sT}, s{sCB}, 5120
s_add_u32 s{sQA}, s{sQA}, s{sT}
s_add_u32 s{sQA+1}, s{sQA}, 4096
s_lshl_b32 s{sT}, s{sKH}, 11
s_add_u32 s{sQA}, s{sQA}, s{sT}""")
        def saddr():
            self.tt_off(sQA+2, sST1 if which == 0 else sSTQ, 4096)
            a(f"""s_lshl_b32 s{sQA+3}, s{sCB}, 1
s_add_u32 s{sQA+3}, s{sQA+3}, s{sKH}       ; slot
s_lshr_b32 s{sT}, s{sQA+3}, 2
s_lshl_b32 s{sT}, s{sT}, 10
s_add_u32 s{sQA+2}, s{sQA+2}, s{sT}
s_and_b32 s{sT}, s{sQA+3}, 3
s_lshl_b32 s{sT}, s{sT}, 2
s_add_u32 s{sQA+2}, s{sQA+2}, s{sT}""")
        pre += [oaddr, saddr]
        if which == 0:
            pass
        else:
            def outaddr():
                a(f"""v_and_b32 v23, 31, v{vLANE}
v_mul_u32_u24 v23, 1280, v23
v_lshl_add_u32 v23, v{vH}, 4, v23
s_lshl_b32 s{sQA+5}, s{sG}, 3
s_add_u32 s{sQA+5}, s{sQA+5}, s{sTL}
s_mul_i32 s{sQA+5}, s{sQA+5}, 40960
s_mul_i32 s{sT}, s{sCB}, 160
s_add_u32 s{sQA+5}, s{sQA+5}, s{sT}
s_lshl_b32 s{sT}, s{sKH}, 6
s_add_u32 s{sQA+4}, s{sQA+5}, s{sT}""")
            pre.append(outaddr)
        lk0, lk1 = a.label("kh0"), a.label("kh1")
        def wr1(q):
            def f():
                a(f"ds_write_b128 v20, {vr(RA1+4*q,4)} offset:{1024*q}")
                self.dsq.append((None, ("xw", q)))
            return f
        def wr2():
            a(f"s_nop 1\ns_cmp_eq_u32 s{sKH}, 0\ns_cbranch_scc1 {lk0}")
            for q in range(2):
                a(f"ds_write_b128 v22, {vr(RA2+4*q,4)} offset:{1024*q}")
            a(f"{lk0}:")
        for q in range(4):
            hooks.setdefault(-2*N80_TAIL + 4 + q, []).append(wr1(q))
        hooks.setdefault(-N80_TAIL + 5, []).append(wr2)
        self.gemm(ops, NB3, accs, frag, lambda s: (s//4)*8 + s % 4, sT+6, [True, False, True], hooks, nm='ow'[which], pre=pre)
        self.stamp(3 if which == 0 else 7)
        self.lgkm(0)
        self.stamp(f"x{which}a")
        self.barrier(tag=f"X{which}")
        self.stamp(f"x{which}b")
        for q in range(4):
            a(f"ds_read_b128 {vr(RA1+4*q,4)}, v21 offset:{1024*q}")
        for q in range(2):
            a(f"ds_read_b128 {vr(RA2+8+4*q,4)}, v22 offset:{1024*q}")
        a("v_mov_b32 v16, 0\nv_mov_b32 v17, 0\nv_mov_b32 v18, 0\nv_mov_b32 v19, 0")
        lfin = a.label("fin")
        def block(r, src, pk, nwait):
            a(f"s_waitcnt lgkmcnt({nwait})")
            for k in range(4):
                a(f"v_pk_add_f32 {vr(r+2*k,2)}, {vr(r+2*k,2)}, {vr(src+2*k,2)}")
            for k in range(4):
                a(f"v_cvt_pk_bf16_f32 v{pk+k}, v{r+2*k}, v{r+2*k+1}")
        def stats(r):
            for k in range(4):
                a(f"v_pk_add_f32 v[16:17], v[16:17], {vr(r+2*k,2)}")
                a(f"v_pk_fma_f32 v[18:19], {vr(r+2*k,2)}, {vr(r+2*k,2)}, v[18:19]")
        PK = PKR
        block(RA0, RA1, PK, 4)
        if which == 1:
            a(f"s_cmp_lg_u32 s{sLAST}, 0\ns_cbranch_scc1 {lfin}")
        a(f"buffer_store_dwordx4 {vr(PK,4)}, v{vL16}, s[{sWS}:{sWS+3}], s{sQA} offen")
        block(RA0+8, RA1+8, PK+4, 2)
        a(f"buffer_store_dwordx4 {vr(PK+4,4)}, v{vL16}, s[{sWS}:{sWS+3}], s{sQA} offen offset:1024")
        a(f"s_cmp_lg_u32 s{sKH}, 0\ns_cbranch_scc1 {lk1}")
        block(RA2, RA2+8, PK+8, 0)
        a(f"buffer_store_dwordx4 {vr(PK+8,4)}, v{vL16}, s[{sWS}:{sWS+3}], s{sQA+1} offen")
        stats(RA2)
        a(f"{lk1}:")
        stats(RA0); stats(RA0+8)
        a(f"""v_add_f32 v16, v16, v17
v_add_f32 v18, v18, v19
s_nop 1
v_permlane32_swap_b32 v16, v18
s_nop 1
v_add_f32 v16, v16, v18
buffer_store_dword v16, v{vL16}, s[{sWS}:{sWS+3}], s{sQA+2} offen
s_waitcnt lgkmcnt(0)""")
        self.stamp(f"x{which}c")
        self.publish(1 if which == 0 else 3, sQA+3)
        self.stamp(f"x{which}d")
        if which == 0:
            D_ = []
            for k in range(12):
                def mk(k):
                    def f():
                        r = RA0 + 2*k if k < 8 else RA2 + 2*(k-8)
                        self.unpack(r, PK+k, 1)
                        self.unpack(RA1, 24+k, 1)
                        a(f"v_pk_add_f32 {vr(r,2)}, {vr(r,2)}, {vr(RA1,2)}")
                    return f
                D_.append(mk(k))
            def zero():
                lz = a.label("nz")
                a(f"s_cmp_eq_u32 s{sKH}, 0\ns_cbranch_scc1 {lz}")
                for k in range(8): a(f"v_mov_b32 v{RA2+k}, 0")
                a(f"{lz}:")
            D_.append(zero)
            self.deferred = D_
        else:
            self.final_label = lfin
            self.final_block = block
        return

    def final_out(self):
        a = self.a
        PK = PKR
        lk1 = a.label("fkh1")
        a(f"{self.final_label}:")
        a(f"buffer_store_dwordx4 {vr(PK,4)}, v23, s[{sOUT}:{sOUT+3}], s{sQA+4} offen")
        self.final_block(RA0+8, RA1+8, PK+4, 2)
        a(f"buffer_store_dwordx4 {vr(PK+4,4)}, v23, s[{sOUT}:{sOUT+3}], s{sQA+4} offen offset:32")
        a(f"s_cmp_lg_u32 s{sKH}, 0\ns_cbranch_scc1 {lk1}")
        self.final_block(RA2, RA2+8, PK+8, 0)
        a(f"buffer_store_dwordx4 {vr(PK+8,4)}, v23, s[{sOUT}:{sOUT+3}], s{sQA+5} offen offset:128")
        a(f"{lk1}:")
        self.stamp(8)

    def phase_w1(self, c0):
        a = self.a
        a.c("================ W1 phase")
        for c in range(6): self.left[c0+c] = 20
        self.basechunk = {}
        def frag(s, j):
            c, u = divmod(3*s+j, 20)
            return (c0+c, 0, u*1024)
        self.set_tl_128()
        a(f"v_mov_b32 v{vP0}, v{vL16}")
        ops = self.make_ops(40, 3)
        self.stamp("x0e")
        self.first_w(ops, NB3, frag)
        self.stamp("x0f")
        self.poll(1, 16)
        self.stamp(4)
        self.tt_off(sT+6, sX1F, 40960)
        accs = [ACC+16*j for j in range(3)]
        hooks = {}
        k1 = -2.0*math.sqrt(2.0/math.pi)*math.log2(math.e)
        k3 = k1*0.044715
        consts = f"""v_mul_f32 v20, {f2u(k1):#x}, v16
v_mul_f32 v22, v16, v16
v_mul_f32 v22, v22, v16
v_mul_f32 v22, {f2u(k3):#x}, v22
v_mov_b32 v24, v17""".split("\n")
        self.aux_hooks(hooks, 3, accs, True, 14, consts)
        def oaddr():
            self.tt_off(sQA, sHF, 98304)
            a(f"""s_mul_i32 s{sT}, s{sCB2}, 6144
s_add_u32 s{sQA}, s{sQA}, s{sT}
s_add_u32 s{sQA+1}, s{sQA}, 4096""")
        self.gemm(ops, NB3, accs, frag, lambda s: s, sT+6, [False]*3, hooks, pre_stats=self.stats_load(sST1), nm='f', pre=[oaddr] + self.deferred)
        self.stamp(5)
        self.barrier(tag="E1")
        self.aux_load(False)
        a("s_nop 3")
        T = ACT
        for blk in range(6):
            r = ACC + 8*blk
            t = T + 8*(blk % 2)
            for k in range(4):
                a(f"v_pk_mul_f32 {vr(t+2*k,2)}, {vr(r+2*k,2)}, {vr(r+2*k,2)}")
            for k in range(4):
                a(f"v_pk_fma_f32 {vr(t+2*k,2)}, {vr(t+2*k,2)}, v[22:23], v[20:21] op_sel_hi:[1,0,0]")
            for k in range(4):
                a(f"v_pk_mul_f32 {vr(t+2*k,2)}, {vr(t+2*k,2)}, {vr(r+2*k,2)}")
            for k in range(8):
                a(f"v_exp_f32 v{t+k}, v{t+k}")
            for k in range(4):
                a(f"v_pk_fma_f32 {vr(t+2*k,2)}, {vr(t+2*k,2)}, v[24:25], v[24:25] op_sel_hi:[1,0,0]")
            for k in range(8):
                a(f"v_rcp_f32 v{t+k}, v{t+k}")
            for k in range(4):
                a(f"v_pk_mul_f32 {vr(t+2*k,2)}, {vr(t+2*k,2)}, {vr(r+2*k,2)}")
            for k in range(4):
                a(f"v_cvt_pk_bf16_f32 v{r+k}, v{t+2*k}, v{t+2*k+1}")
            if blk >= GDEF:
                for b2 in (range(blk+1) if blk == GDEF else [blk]):
                    a(f"buffer_store_dwordx4 {vr(ACC+8*b2,4)}, v{vL16}, s[{sWS}:{sWS+3}], s{sQA + b2//4} offen offset:{(b2%4)*1024}")
        self.stamp("y1c")
        self.publish(2, sCB2)
        self.stamp("y1d")

    def dma_chunk_static(self, n):
        a = self.a
        if n < 8: base, k = sSRC, n
        elif n < 13: base, k = sWO, n-8
        elif n < 19: base, k = sW1, n-13
        elif n < 31: base, k = sW2, n-19
        else: base, k = sWQ, n-31
        a(f"s_add_u32 m0, s{sLDW}, {(n % NSLOT)*CH}\ns_add_u32 s{sT}, s{base}, {k*CH}")
        self.dma5(sT, " nt" if (n < 8 and KV_NT) else "")
    def dma5(self, so, fl=""):
        a = self.a
        for q in range(4):
            a(f"buffer_load_dwordx4 v{vL16}, s[{sWS}:{sWS+3}], s{so} offen offset:{1024*q} lds{fl}" if False else
              f"buffer_load_dwordx4 v{vL16}, s[{sWS}:{sWS+3}], s{so} offen offset:{1024*q}{fl} lds")
        a(f"s_add_u32 m0, m0, 4096\ns_add_u32 s{sT+1}, s{so}, 4096")
        a(f"buffer_load_dwordx4 v{vL16}, s[{sWS}:{sWS+3}], s{sT+1} offen{fl} lds")

    def loader(self, bars, issued, last, touches=None):
        a = self.a
        issued = list(issued)
        touches = touches or {}
        for bi, b in enumerate(bars):
            if b["need"] is not None:
                assert b["need"] in issued, (b, issued)
                n = 5*(len(issued) - 1 - issued.index(b["need"]))
                a(f"s_waitcnt vmcnt({n})")
            a("s_barrier")
            for f in b["free"]:
                nx = f + NSLOT
                if nx <= last and nx not in issued:
                    self.dma_chunk_static(nx); issued.append(nx)
            if bi in touches:
                w, base, off = touches[bi]
                l = a.label("tch")
                a(f"""s_cmp_lg_u32 s{sWAVE}, {w}
s_cbranch_scc1 {l}
s_add_u32 s{sT}, s{base}, {off}
buffer_load_dword v{vDUM}, v{vWRM}, s[{sWS}:{sWS+3}], s{sT} offen
{l}:""")

    def chunk_src(self, n):
        if n < 13: return sWO, n-8
        if n < 19: return sW1, n-13
        if n < 31: return sW2, n-19
        return sWQ, n-31
    def fifo_reg(self, e):
        return 112 + 20*e if e < 7 else 16 + 20*(e-7)
    def fifo_load(self, n, e):
        a = self.a
        r = self.fifo_reg(e)
        (b0, k0), (b1, k1) = self.chunk_src(FB[0]+e), self.chunk_src(FB[1]+e)
        a(f"s_add_u32 s{sT}, s{b0}, {k0*CH}")
        if (b0, k0) != (b1, k1):
            a(f"s_add_u32 s{sT+1}, s{b1}, {k1*CH}\ns_cmp_lg_u32 s{sLAST}, 0\ns_cselect_b32 s{sT}, s{sT+1}, s{sT}")
        a(f"s_add_u32 s{sT+1}, s{sT}, 4096")
        for q in range(4):
            a(f"buffer_load_dwordx4 {vr(r+4*q,4)}, v{vL16}, s[{sWS}:{sWS+3}], s{sT} offen offset:{1024*q}")
        a(f"buffer_load_dwordx4 {vr(r+16,4)}, v{vL16}, s[{sWS}:{sWS+3}], s{sT+1} offen")

    def loader2(self, bars, last, plan, npre):
        a = self.a
        vm = VM()
        a(f"v_add_u32 v{vT}, s{sLDW}, v{vL16}")
        NE = 11
        ent = {F0+e: e for e in range(npre)}
        loadbar = {F0+e: -10 for e in range(npre)}
        free_e = list(range(npre, NE))
        nload = F0 + npre; nwrite = F0
        slotfree = set(); inlds = set(range(F0))
        wq = []
        log = []
        def wdone(c):
            nonlocal wq, free_e
            if c in wq:
                i = wq.index(c)
                n = 5*(len(wq) - 1 - i)
                a(f"s_waitcnt lgkmcnt({min(n, 15) if n <= 15 else 15})" if n <= 15 else "s_waitcnt lgkmcnt(15)")
                if n > 15:
                    i = len(wq) - 4
                for x in wq[:i+1]: free_e.append(ent[x])
                wq = wq[i+1:]
        for bi, b in enumerate(bars):
            if b["need"] is not None:
                nd = min(b["need"], last)
                assert all(c in inlds for c in range(nd+1)), (b, sorted(inlds), log)
                wdone(nd)
            a("s_barrier")
            acts = []
            for f in b["free"]: slotfree.add(f + NSLOT)
            k = plan.get(b["tag"], 0)
            def loads(k):
                nonlocal nload
                while k > 0 and nload <= last:
                    if not free_e:
                        if not wq: break
                        wdone(wq[0])
                    e = free_e.pop(0)
                    self.fifo_load(nload, e)
                    for q in range(5): vm.issue(("c", nload))
                    ent[nload] = e; loadbar[nload] = bi
                    acts.append(f"L{nload}"); nload += 1; k -= 1
                return k
            k0 = min(k, len(free_e))
            k -= k0; loads(k0)
            nw = 0
            while nwrite <= last and nwrite in slotfree and nwrite in ent and bi - loadbar[nwrite] >= WR_LAG and nw < plan.get("w" + b["tag"], 2):
                n = vm.need(("c", nwrite))
                if n is not None: a(f"s_waitcnt vmcnt({n})")
                r = self.fifo_reg(ent[nwrite])
                a(f"v_add_u32 v{vT+1}, {(nwrite % NSLOT)*CH}, v{vT}")
                for q in range(5):
                    a(f"ds_write_b128 v{vT+1}, {vr(r+4*q,4)} offset:{1024*q}")
                wq.append(nwrite); inlds.add(nwrite)
                acts.append(f"w{nwrite}"); nwrite += 1; nw += 1
            loads(k)
            log.append(f"{b['tag']}:{','.join(acts)}")
        assert nwrite == last + 1, (nwrite, last, log)
        if os.environ.get("VERBOSE"): print(" ".join(log))

    def loader3(self, bars, last, plan, f0):
        a = self.a
        vm = VM()
        a(f"v_add_u32 v{vT}, s{sLDW}, v{vL16}")
        ent = {f0+e: e for e in range(NF)}
        xl = {}
        for tag, cs in XFIFO.items():
            for c in cs: xl[c] = tag; ent[c] = NF + len(xl) - 1
        loaded = set(range(f0, f0+NF))
        slotfree = set(); prog = {c: 5 for c in range(15 if PRE13 else 13)}; wq = []; log = []
        for bi, b in enumerate(bars):
            if b["need"] is not None:
                nd = min(b["need"], last)
                assert all(prog.get(c, 0) == 5 for c in range(nd+1)), (b, prog, log)
                for c in range(nd, 12, -1):
                    n = vm.need(("c", c))
                    if n is not None: a(f"s_waitcnt vmcnt({n})")
                if any(c <= nd for c in wq):
                    i = max(i for i, c in enumerate(wq) if c <= nd)
                    a(f"s_waitcnt lgkmcnt({min(15, len(wq)-1-i)})")
                    wq = wq[i+1:]
            a("s_barrier")
            acts = []
            for f in b["free"]: slotfree.add(f + NSLOT)
            k = plan.get(b["tag"], plan["def"]); nw = plan.get("w" + b["tag"], plan["wdef"])
            thr = plan.get("t" + b["tag"], plan.get("tdef"))
            items = []
            for c in sorted(slotfree):
                if c > last or c in ent: continue
                while k > 0 and prog.get(c, 0) < 5:
                    q = prog.get(c, 0); items.append(("D", c, q)); prog[c] = q + 1; k -= 1
            witems = []
            for c in sorted(slotfree):
                if c > last or c not in loaded: continue
                while nw > 0 and prog.get(c, 0) < 5:
                    q = prog.get(c, 0); witems.append(("w", c, q)); prog[c] = q + 1; nw -= 1
            cur = None; curw = None
            def emit(it):
                nonlocal cur, curw
                kind, c, q = it
                if kind == "D":
                    base, kk = self.chunk_src(c)
                    if cur != (c, q // 4):
                        cur = (c, q // 4)
                        a(f"s_add_u32 m0, s{sLDW}, {(c % NSLOT)*CH + (q//4)*4096}\ns_add_u32 s{sT}, s{base}, {kk*CH + (q//4)*4096}")
                    if thr is not None and len(vm.q) > thr:
                        a(f"s_waitcnt vmcnt({thr})"); vm.q = vm.q[len(vm.q)-thr:] if thr else []
                    a(f"buffer_load_dwordx4 v{vL16}, s[{sWS}:{sWS+3}], s{sT} offen offset:{1024*(q%4)} lds")
                    vm.issue(("c", c))
                else:
                    if curw != c:
                        curw = c
                        n = vm.need(("x", c))
                        if n is not None: a(f"s_waitcnt vmcnt({n})")
                        a(f"v_add_u32 v{vT+1}, {(c % NSLOT)*CH}, v{vT}")
                    a(f"ds_write_b128 v{vT+1}, {vr(self.fifo_reg(ent[c])+4*q,4)} offset:{1024*q}")
                    wq.append(c)
                acts.append(f"{kind}{c}")
            for it in items + witems: emit(it)
            for c in XFIFO.get(b["tag"], []):
                if c > last: continue
                base, kk = self.chunk_src(c); r = self.fifo_reg(ent[c])
                a(f"s_add_u32 s{sT}, s{base}, {kk*CH}\ns_add_u32 s{sT+1}, s{base}, {kk*CH+4096}")
                for q in range(5):
                    a(f"buffer_load_dwordx4 {vr(r+4*q,4)}, v{vL16}, s[{sWS}:{sWS+3}], s{sT + q//4} offen offset:{1024*(q%4)}")
                    vm.issue(("x", c))
                loaded.add(c); acts.append(f"L{c}")
            import itertools
            log.append(f"{b['tag']}:" + ",".join(f"{k_}x{len(list(g_))}" for k_, g_ in itertools.groupby(acts)))
        assert all(prog.get(c, 0) == 5 for c in range(last+1)), log
        if os.environ.get("VERBOSE"): print(" ".join(log))

    def att_tile(self, t):
        a = self.a
        u = t % 8; cc = t // 8
        X, Y = SS[u % 2], SS[(u+1) % 2]
        e = lambda k: a(f"v_exp_f32 v{X+k}, v{X+k}")
        c = lambda k: a(f"v_cvt_pk_bf16_f32 v{P+k}, v{X+2*k}, v{X+2*k+1}")
        kt, vt = (u+2) % 8, (u+1) % 8
        vb = V1[(u+1) % 2]
        last = t == 63
        self.stamp(f"t{t}")
        upd = lambda q: a(f"v_mad_u32_u24 v{vVA+q}, s{sSLOT}, v{vMV}, v{vBV+q}")
        if u == 7 and not last: upd(2)
        e(0)
        a(f"v_cvt_pk_bf16_f32 v{P+7}, v{Y+14}, v{Y+15}")
        if u == 7 and not last: upd(3)
        e(1); e(2)
        a(f"v_mfma_f32_32x32x16_bf16 {vr(O,16)}, {vr(vb,4)}, {vr(P+4,4)}, {vr(O,16)}")
        if not last:
            a(f"ds_read_b64_tr_b16 {vr(vb,2)}, v{vVA+2} offset:{vt*2560}")
            a(f"ds_read_b64_tr_b16 {vr(vb+2,2)}, v{vVA+3} offset:{vt*2560}")
        if u == 7 and not last: upd(0); upd(1)
        c(0); e(3); e(4); c(1); e(5); e(6)
        a(f"s_waitcnt lgkmcnt({0 if last else 2})")
        if not last:
            a(f"v_mfma_f32_32x32x16_bf16 {vr(Y,16)}, {vr(K1,4)}, {vr(Q1,4)}, 0")
        if u == 6 and cc < 7:
            a(f"""s_mov_b32 s{sSLOT}, {((cc+1) % NSLOT)*CH}
v_add_u32 v{vK1}, s{sSLOT}, v{vBK1}
v_mad_u32_u24 v{vK2}, s{sSLOT}, v{vMK}, v{vBK2}""")
            n = self.avm.need(("c", cc+1))
            if n is not None: self.lwait(n, t)
            if t == S_FLAG:
                l = a.label("sf")
                a(f"s_cbranch_vccz {l}\ns_waitcnt vmcnt(0)\n{l}:")
            a("s_barrier")
        if t == 2 and HALF0:
            n = self.avm.need(("c", 0))
            if n is not None: self.lwait(n, t)
            a("s_barrier")
        if t < 62:
            a(f"ds_read_b128 {vr(K1,4)}, v{vK1} offset:{kt*2560}")
        if t in PRIO: a(f"s_setprio {PRIO[t]}")
        c(2); e(7); e(8); c(3); e(9); e(10)
        if not last:
            a(f"v_mfma_f32_32x32x8_bf16 {vr(Y,16)}, {vr(K2,2)}, {vr(Q2,2)}, {vr(Y,16)}")
        if t < 62:
            a(f"ds_read_b64 {vr(K2,2)}, v{vK2} offset:{kt*2560}")
        self.att_side(t)
        c(4); e(11); e(12); c(5); e(13); e(14)
        a(f"v_mfma_f32_32x32x16_bf16 {vr(O,16)}, {vr(V0,4)}, {vr(P,4)}, {vr(O,16)}")
        if not last:
            a(f"ds_read_b64_tr_b16 {vr(V0,2)}, v{vVA} offset:{vt*2560}")
            a(f"ds_read_b64_tr_b16 {vr(V0+2,2)}, v{vVA+1} offset:{vt*2560}")
        c(6); e(15)

    def lwait(self, n, t):
        a = self.a
        if t < S_FLAG:
            l = a.label("lw")
            a(f"s_cbranch_vccnz {l}\ns_waitcnt vmcnt({n})\n{l}:")
        else:
            a(f"s_waitcnt vmcnt({n})")

    def att_side(self, t):
        a = self.a
        if 'noside' in XP: return
        if t == XC_AT:
            a(f"buffer_load_dword v{vXC}, v{vXC+1}, s[{sWS}:{sWS+3}], s{sXCA} offen sc1")
            self.avm.issue("xc")
        self.strip_side(t)
        if t in LSCHED:
            l = a.label("ls")
            a(f"s_cbranch_vccnz {l}")
            n = LSCHED[t]
            if n >= 8 or (n < 0 and FB[0]-n-1 < 31): assert t >= S_POLL + 2, (t, n)
            if n in (5, 6): assert t >= S_FLAG
            if n >= 0:
                if n >= NSLOT: assert t >= 8*(n - NSLOT + 1) + 6, (t, n)
                self.dma_chunk_static(n)
            else:
                self.fifo_load(n, -n-1)
            for q in range(5): self.avm.issue(("c", n))
            a(f"{l}:")
        for w, job in CSCHED.get(t, []):
            l = a.label("cj")
            if w is None: a(f"s_cbranch_vccz {l}")
            else: a(f"s_cmp_lg_u32 s{sWAVE}, {w}\ns_cbranch_scc1 {l}")
            def touch(base, off):
                a(f"s_add_u32 s{sT+3}, s{base}, {off}\nbuffer_load_dword v{vDUM}, v{vWRM}, s[{sWS}:{sWS+3}], s{sT+3} offen")
            if job == "res":
                self.set_tl_64()
                self.tt_off(sT, sRES, 40960)
                a(f"""s_mul_i32 s{sT+1}, s{sCB}, 5120
s_add_u32 s{sT}, s{sT}, s{sT+1}
s_add_u32 s{sT+2}, s{sT}, 4096
s_lshl_b32 s{sT+1}, s{sKH}, 11
s_add_u32 s{sT}, s{sT}, s{sT+1}
buffer_load_dwordx4 {vr(ACT,4)}, v{vL16}, s[{sWS}:{sWS+3}], s{sT} offen
buffer_load_dwordx4 {vr(ACT+4,4)}, v{vL16}, s[{sWS}:{sWS+3}], s{sT} offen offset:1024
buffer_load_dwordx4 {vr(ACT+8,4)}, v{vL16}, s[{sWS}:{sWS+3}], s{sT+2} offen
s_mov_b32 s{sTL}, s{sWAVE}""")
            elif job in ("c13", "c14"):
                assert t >= 38
                k = int(job[1:]) - 13; r = C13 + 20*k
                a(f"""s_mul_i32 s{sT}, s{sCB2}, 122880
s_mul_i32 s{sT+1}, s{sWAVE}, 5120
s_add_u32 s{sT}, s{sT}, s{sT+1}
s_add_u32 s{sT}, s{sT}, {W1_F + k*CH}
s_add_u32 s{sT+1}, s{sT}, 4096""")
                for q in range(4):
                    a(f"buffer_load_dwordx4 {vr(r+4*q,4)}, v{vL16}, s[{sWS}:{sWS+3}], s{sT} offen offset:{1024*q}")
                a(f"buffer_load_dwordx4 {vr(r+16,4)}, v{vL16}, s[{sWS}:{sWS+3}], s{sT+1} offen")
            elif job == "ar1":
                a(f"s_cmp_ge_u32 s{sJ}, {(TOUCH_BYTES - 0x100000)//8192}\ns_cbranch_scc1 {l}")
                touch(sAR1, 0)
            else:
                base, off = {"w2a": (sWRM2, 0), "w2b": (sWRM2, 122880), "ar0": (sAR, 0), "w1a": (sWRM, 0), "w1b": (sWRM, 61440), "wqa": (sWRM3, 0), "wqb": (sWRM3, 65536)}[job]
                touch(base, off)
            a(f"{l}:")

    def strip_side(self, t):
        a = self.a
        def two(f4, f10):
            l = a.label("st")
            a(f"s_cmp_eq_u32 s{sTy}, 0\ns_cbranch_scc1 {l}")
            f4()
            a(f"s_cmp_eq_u32 s{sTy}, 1\ns_cbranch_scc1 {l}")
            f10()
            a(f"{l}:")
        def loads(js):
            for j in js:
                a(f"""s_add_u32 s{sT+1}, s{sSo}, s{sBp}
buffer_load_dwordx2 {vr(SR+4*j,2)}, v{vSO}, s[{sSS}:{sSS+3}], s{sSo} offen
buffer_load_dwordx2 {vr(SR+4*j+2,2)}, v{vSO}, s[{sSS}:{sSS+3}], s{sT+1} offen
s_add_u32 s{sSo}, s{sSo}, s{sA}""")
        def w1rest():
            loads(range(4, 10))
            a(f"buffer_load_ushort v{vBI}, v{vBI}, s[{sBS}:{sBS+3}], 0 offen")
        wr = lambda ks: [a(f"ds_write_b64 v{vSC}, {vr(SR+2*k,2)} offset:{512*k}") for k in ks]
        rd = lambda ks: [a(f"ds_read_b64_tr_b16 {vr(SR+2*k,2)}, v{vSC} offset:{512*k}") for k in ks]
        def st(js):
            for j in js:
                a(f"buffer_store_dwordx4 {vr(SR+4*j,4)}, v{vSD}, s[{sWS}:{sWS+3}], s{sDs} offen sc0 sc1\ns_add_u32 s{sDs}, s{sDs}, s{sSt}")
        def cs():
            st(range(4, 10))
            for j in range(10):
                a(f"v_mfma_f32_32x32x16_bf16 {vr(CSA,16)}, {vr(ONE,4)}, {vr(SR+4*j,4)}, {'0' if j == 0 else vr(CSA,16)}")
        def aux():
            a(f"""s_cmp_ge_u32 s{sQd}, 2
s_cselect_b32 s{sT}, -1, 0
v_and_b32 v{CSA+1}, 0xffff0000, v{CSA}
v_sub_f32 v{CSA+3}, v{CSA}, v{CSA+1}
v_lshrrev_b32 v{CSA+2}, 16, v{CSA+1}
v_or_b32 v{CSA+2}, v{CSA+2}, v{CSA+1}
v_lshrrev_b32 v{CSA+3}, 16, v{CSA+3}
v_and_b32 v{vBI}, s{sT}, v{vBI}
v_lshl_or_b32 v{CSA+3}, v{vBI}, 16, v{CSA+3}
v_lshlrev_b32 v{CSA}, 30, v{vH}
v_add_u32 v{CSA}, v{CSA}, v{vL16}
buffer_store_dwordx2 {vr(CSA+2,2)}, v{CSA}, s[{sWS}:{sWS+3}], s{sAx} offen sc0 sc1""")
        def only(ty, f):
            l = a.label("so")
            a(f"s_cmp_lt_u32 s{sTy}, {ty}\ns_cbranch_scc1 {l}")
            f()
            a(f"{l}:")
        mf = lambda js: [a(f"v_mfma_f32_32x32x16_bf16 {vr(CSA,16)}, {vr(ONE,4)}, {vr(SR+4*j,4)}, {'0' if j == 0 else vr(CSA,16)}") for j in js]
        k = t - S_LD
        if k in (0, 1): only(1, lambda: loads([2*k, 2*k+1]))
        if k in (2, 3): only(2, lambda: loads([2*k, 2*k+1]))
        if k == 4: only(2, lambda: (loads([8, 9]), a(f"buffer_load_ushort v{vBI}, v{vBI}, s[{sBS}:{sBS+3}], 0 offen")))
        k = t - S_WR
        if k == 0: only(1, lambda: (a("s_waitcnt vmcnt(0)"), wr(range(8))))
        if k == 1: two(lambda: rd(range(8)), lambda: wr(range(8, 14)))
        if k == 2: two(lambda: st(range(4)), lambda: (wr(range(14, 20)), rd(range(8, 14))))
        if k == 3: only(2, lambda: (rd(range(14, 20)), st(range(4, 7)), mf(range(0, 3))))
        if k == 4: only(2, lambda: (st(range(7, 10)), mf(range(3, 6))))
        if k == 5: only(2, lambda: mf(range(6, 10)))
        if k == 6: only(2, aux)
        if t == S_FLAG:
            l = a.label("fl")
            a(f"""s_or_b32 s{sT}, s{sWAVE}, s{sLAST}
s_cbranch_scc1 {l}
s_lshl_b32 s{sT}, s2, 2
s_add_u32 s{sT}, s{sT}, {WFL}
s_mov_b64 exec, 1
buffer_store_dword v{vMK}, v{vL16}, s[{sWS}:{sWS+3}], s{sT} offen sc0 sc1
s_mov_b64 exec, -1
{l}:""")
        if t == S_POLL:
            l = a.label("pl")
            a(f"""s_cbranch_vccnz {l}
s_mov_b32 s{sT}, {WFL}
buffer_load_dwordx4 {vr(vPL,4)}, v{vL16}, s[{sWS}:{sWS+3}], s{sT} offen sc0 sc1
{l}:""")
            self.avm.issue("pl")
        if t == S_POLL + 2:
            l, lp = a.label("pd"), a.label("pp")
            sav = list(self.avm.q)
            n = self.avm.need("pl")
            self.avm.q = sav
            a(f"""s_cbranch_vccnz {l}
s_cmp_lg_u32 s{sLAST}, 0
s_cbranch_scc1 {l}
s_mov_b32 s{sT}, {WFL}
s_mov_b32 s{sT+1}, 0x100000
s_waitcnt vmcnt({n})
{lp}:
v_and_b32 v{vPL}, v{vPL}, v{vPL+1}
v_and_b32 v{vPL+2}, v{vPL+2}, v{vPL+3}
v_and_b32 v{vPL}, v{vPL}, v{vPL+2}
v_cmp_eq_u32 s[{sT+2}:{sT+3}], 0, v{vPL}
s_cmp_eq_u64 s[{sT+2}:{sT+3}], 0
s_cbranch_scc1 {l}
s_sub_u32 s{sT+1}, s{sT+1}, 1
s_cbranch_scc1 {l}
buffer_load_dwordx4 {vr(vPL,4)}, v{vL16}, s[{sWS}:{sWS+3}], s{sT} offen sc0 sc1
s_waitcnt vmcnt(0)
s_branch {lp}
{l}:""")

    def strip_setup(self):
        a = self.a
        b4, r, sw, i, t0, t1 = 192, 193, 194, 195, 196, 197
        u = 88
        a(f"""s_load_dwordx2 s[52:53], s[0:1], 16
s_load_dwordx2 s[54:55], s[0:1], 48
s_load_dwordx4 s[56:59], s[0:1], 32
v_bfe_u32 v{b4}, v{vLANE}, 4, 1
v_bfe_u32 v{r}, v{vLANE}, 2, 2
v_and_b32 v{sw}, 1, v{vLANE}
v_lshlrev_b32 v{sw}, 1, v{sw}
v_bfe_u32 v{i}, v{vLANE}, 1, 1
v_or_b32 v{sw}, v{sw}, v{i}
v_and_b32 v{i}, 31, v{vLANE}
s_lshl_b32 s{sT}, s{sWAVE}, 12
s_add_u32 s{sT}, s{sT}, {5*CH + 10240 - 4096}
s_cmp_eq_u32 s{sWAVE}, 0
s_cselect_b32 s{sT}, {5*CH}, s{sT}
v_lshlrev_b32 v{vSC}, 3, v{vLANE}
v_add_u32 v{vSC}, s{sT}, v{vSC}
v_mov_b32 v{ONE}, 0x3f803f80
v_mov_b32 v{ONE+1}, 0x3f803f80
v_mov_b32 v{ONE+2}, 0x3f803f80
v_mov_b32 v{ONE+3}, 0x3f803f80
s_waitcnt lgkmcnt(0)
s_cmp_lg_u32 s{sWAVE}, 0
s_cbranch_scc1 L_st_n80a
s_cmp_ge_u32 s2, 240
s_cbranch_scc1 L_st_done
s_cmp_ge_u32 s2, 192
s_cbranch_scc1 L_st_n80b
s_mov_b32 s{sTy}, 2
s_mov_b32 s{sSS}, s56
s_and_b32 s{sSS+1}, s57, 0xffff
s_mov_b32 s{sSS+2}, {D*F*2}
s_lshr_b32 s{u}, s2, 2                   ; strip
s_and_b32 s{sQd}, s2, 3
s_mul_i32 s{u+1}, s{u}, 0x5556
s_lshr_b32 s{u+1}, s{u+1}, 16            ; cb
s_mul_i32 s{u+2}, s{u+1}, 3
s_sub_u32 s{u+2}, s{u}, s{u+2}           ; tile
s_lshl_b32 s{u}, s{u}, 5                 ; col0
v_lshlrev_b32 v{t0}, 4, v{b4}
v_lshl_add_u32 v{t0}, v{sw}, 2, v{t0}
v_add_u32 v{t0}, s{u}, v{t0}
v_lshl_add_u32 v{t1}, v{vH}, 3, v{r}
v_mul_u32_u24 v{vSO}, 3072, v{t1}
v_lshl_add_u32 v{vSO}, v{t0}, 1, v{vSO}
s_mov_b32 s{sA}, {16*3072}
s_mov_b32 s{sBp}, {4*3072}
s_mul_i32 s{sSo}, s{sQd}, {160*3072}
v_and_b32 v{t0}, 19, v{i}
v_bfe_u32 v{t1}, v{i}, 2, 1
v_lshl_or_b32 v{t0}, v{t1}, 3, v{t0}
v_bfe_u32 v{t1}, v{i}, 3, 1
v_lshl_or_b32 v{t0}, v{t1}, 2, v{t0}
v_add_u32 v{t0}, s{u}, v{t0}
v_lshlrev_b32 v{vBI}, 1, v{t0}
v_mov_b32 v{vSD}, v{vL16}
s_mul_i32 s{sDs}, s{u+1}, 122880
s_mul_i32 s{sT}, s{sQd}, 30720
s_add_u32 s{sDs}, s{sDs}, s{sT}
s_lshl_b32 s{sT}, s{u+2}, 10
s_add_u32 s{sDs}, s{sDs}, s{sT}
s_add_u32 s{sDs}, s{sDs}, {W1_F}
s_mov_b32 s{sSt}, 3072
s_lshl_b32 s{sAx}, s{u+1}, 12
s_add_u32 s{sAx}, s{sAx}, s{sT}
s_lshr_b32 s{sT}, s{sQd}, 1
s_lshl_b32 s{sT}, s{sT}, 9
s_add_u32 s{sAx}, s{sAx}, s{sT}
s_and_b32 s{sT}, s{sQd}, 1
s_lshl_b32 s{sT}, s{sT}, 3
s_add_u32 s{sAx}, s{sAx}, s{sT}
s_add_u32 s{sAx}, s{sAx}, {AUX1}
s_branch L_st_done
L_st_n80b:
s_sub_u32 s{sT}, s2, 192
s_mul_i32 s{u}, s{sT}, 0x5556
s_lshr_b32 s{u}, s{u}, 16
s_mul_i32 s{u+1}, s{u}, 3
s_sub_u32 s{u+1}, s{sT}, s{u+1}          ; tile
s_add_u32 s{u}, s{u}, 256                ; gid
s_branch L_st_n80
L_st_n80a:
s_mov_b32 s{u}, s2
s_sub_u32 s{u+1}, s{sWAVE}, 1
L_st_n80:
s_mov_b32 s{sTy}, 1
s_mov_b32 s{sBp}, {4*1280}
s_mov_b32 s{sQd}, 8
s_cmp_lt_u32 s{u}, 80
s_cbranch_scc1 L_st_wo
s_sub_u32 s{u}, s{u}, 80
s_mul_i32 s{u+2}, s{u}, 0xaab
s_lshr_b32 s{u+2}, s{u+2}, 16            ; cb
s_mul_i32 s{u+3}, s{u+2}, 24
s_sub_u32 s{u+3}, s{u}, s{u+3}           ; ksg
s_mov_b32 s{sSS}, s54
s_and_b32 s{sSS+1}, s55, 0xffff
s_mov_b32 s{sSS+2}, {F*D*2}
s_mov_b32 s{sA}, {16*1280}
s_mul_i32 s{sSo}, s{u+3}, {64*1280}
s_mul_i32 s{sDs}, s{u+2}, 245760
s_add_u32 s{sDs}, s{sDs}, {W2_F}
s_branch L_st_go
L_st_wo:
s_mul_i32 s{u+2}, s{u}, 0x199a
s_lshr_b32 s{u+2}, s{u+2}, 16            ; cb
s_mul_i32 s{u+3}, s{u+2}, 10
s_sub_u32 s{u+3}, s{u}, s{u+3}           ; ksg
s_mov_b32 s{sSS}, s52
s_and_b32 s{sSS+1}, s53, 0xffff
s_mov_b32 s{sSS+2}, {D*D*2}
s_mul_i32 s{sDs}, s{u+2}, 102400
s_add_u32 s{sDs}, s{sDs}, {WO_F}
s_mov_b32 s{sA}, {20*1280}
s_mul_i32 s{sSo}, s{u+3}, {80*1280}
s_cmp_lt_u32 s{u+3}, 8
s_cbranch_scc1 L_st_go
s_mov_b32 s{sA}, {80*1280}
s_mov_b32 s{sBp}, {20*1280}
s_sub_u32 s{sSo}, s{u+3}, 8
s_mul_i32 s{sSo}, s{sSo}, {320*1280}
s_add_u32 s{sSo}, s{sSo}, {16*1280}
s_mov_b32 s{sQd}, 40
L_st_go:
v_mul_lo_u32 v{vSO}, s{sQd}, v{vH}
v_add_u32 v{vSO}, v{vSO}, v{r}
v_mul_u32_u24 v{vSO}, 1280, v{vSO}
s_mul_i32 s{sT}, s{u+2}, 80
s_lshl_b32 s{sT+1}, s{u+1}, 5
s_add_u32 s{sT}, s{sT}, s{sT+1}          ; col0
s_cmp_eq_u32 s{u+1}, 2
s_cselect_b32 s{sT+1}, 0, 16
v_mul_lo_u32 v{t0}, s{sT+1}, v{b4}
v_lshl_add_u32 v{t0}, v{sw}, 2, v{t0}
v_add_u32 v{t0}, s{sT}, v{t0}
v_lshl_add_u32 v{vSO}, v{t0}, 1, v{vSO}
v_lshlrev_b32 v{t0}, 8, v{vH}
v_lshl_add_u32 v{t0}, v{i}, 4, v{t0}
v_mov_b32 v{t1}, {OOB}
v_cmp_gt_u32 vcc, 16, v{i}
s_mul_i32 s{u+3}, s{u+3}, 10240
s_add_u32 s{sDs}, s{sDs}, s{u+3}
v_cndmask_b32 v{t0}, v{t1}, v{t0}, vcc
s_lshl_b32 s{sT}, s{u+1}, 10
s_add_u32 s{sDs}, s{sDs}, s{sT}
s_mov_b32 s{sSt}, 2560
s_cmp_eq_u32 s{u+1}, 2
s_cselect_b64 vcc, -1, 0
s_nop 1
v_cndmask_b32 v{vSD}, v{vL16}, v{t0}, vcc
L_st_done:
""")
        srd(a, sBS, 58, F*2)

    def split3(self, m):
        a = self.a
        a(f"""
v_sub_f32 v{vT}, 0, v{m}
v_and_b32 v{vT+1}, 0xffff0000, v{vT}
v_sub_f32 v{vT}, v{vT}, v{vT+1}
v_and_b32 v{vT+2}, 0xffff0000, v{vT}
v_sub_f32 v{vT}, v{vT}, v{vT+2}
v_lshrrev_b32 v{vT+1}, 16, v{vT+1}
v_cmp_gt_u32 vcc, 32, v{vLANE}
v_or_b32 v{vT+1}, v{vT+1}, v{vT+2}
v_lshrrev_b32 v{vT}, 16, v{vT}
v_cndmask_b32 v{Q2}, v{vT+1}, v{Q2}, vcc
v_cndmask_b32 v{Q2+1}, v{vT}, v{Q2+1}, vcc
""")

    def rowmax16(self, X, dst, init=None):
        a = self.a
        if init is None:
            a(f"v_max3_f32 v{dst}, v{X}, v{X+1}, v{X+2}")
            a(f"v_max_f32 v{dst}, v{dst}, v{X+3}")
            k0 = 4
        else:
            k0 = 0
        for k in range(k0, 16, 2):
            a(f"v_max3_f32 v{dst}, v{dst}, v{X+k}, v{X+k+1}")
    def crosshalf_max(self, m):
        a = self.a
        a(f"""v_mov_b32 v{vT}, v{m}
s_nop 1
v_permlane32_swap_b32 v{m}, v{vT}
s_nop 1
v_max_f32 v{m}, v{m}, v{vT}""")

    def tpos(self, dst, tok, tmp):
        self.a(f"""v_and_b32 v{dst}, 3, v{tok}
v_bfe_u32 v{tmp}, v{tok}, 3, 1
v_lshl_or_b32 v{dst}, v{tmp}, 2, v{dst}
v_bfe_u32 v{tmp}, v{tok}, 2, 1
v_lshl_or_b32 v{dst}, v{tmp}, 3, v{dst}
v_and_b32 v{tmp}, 16, v{tok}
v_or_b32 v{dst}, v{dst}, v{tmp}
v_xor_b32 v{dst}, {8 + 256}, v{dst}
v_lshlrev_b32 v{dst}, 3, v{dst}""")

    def att_early(self):
        a = self.a
        a(f"""
s_mul_i32 s{sSRC}, s{sJ}, 163840
s_add_u32 s{sSRC}, s{sSRC}, s{sQIN}
s_lshr_b32 s{sT+6}, s{sJ}, 1
s_add_u32 s{sT+6}, s{sT+6}, 32
s_mul_i32 s{sT+6}, s{sT+6}, 163840
s_lshl3_add_u32 s{sT+7}, s{sG}, s{sWAVE}
s_mul_i32 s{sT+7}, s{sT+7}, 2560
s_add_u32 s{sT+6}, s{sT+6}, s{sT+7}
s_add_u32 s{sT+6}, s{sT+6}, s{sQIN}
s_and_b32 s{sT+7}, s{sJ}, 1
s_lshl_b32 s{sT+8}, s{sT+7}, 10
s_add_u32 s{sT+8}, s{sT+8}, s{sT+6}          ; Q main
s_lshl_b32 s{sT+7}, s{sT+7}, 8
s_add_u32 s{sT+7}, s{sT+7}, s{sT+6}          ; Q tail
v_and_b32 v{vT}, 19, v{vLANE}
v_bfe_u32 v{vT+1}, v{vLANE}, 2, 1
v_lshl_or_b32 v{vT}, v{vT+1}, 3, v{vT}
v_bfe_u32 v{vT+1}, v{vLANE}, 3, 1
v_lshl_or_b32 v{vT}, v{vT+1}, 2, v{vT}        ; pi
v_lshlrev_b32 v{vT+1}, 3, v{vH}
v_xor_b32 v{vT+1}, v{vT+1}, v{vT}
v_lshlrev_b32 v{vT+1}, 4, v{vT+1}
v_lshl_add_u32 v{vBK1}, v{vH}, 9, v{vT+1}      ; K1 base
""")
        self.tpos(vBK2, vT, vT+1)
        a(f"""v_lshlrev_b32 v{vT}, 30, v{vH}
v_add_u32 v{vT+1}, v{vT}, v{vBK2}
v_add_u32 v{vT}, v{vT}, v{vTL}""")

    def attention(self, late_setup):
        a = self.a
        a.c("================ attention")
        a(f"""
buffer_load_dwordx4 {vr(Q1,4)}, v{vSW}, s[{sWS}:{sWS+3}], s{sT+8} offen
buffer_load_dwordx4 {vr(K1,4)}, v{vBK1}, s[{sWS}:{sWS+3}], s{sSRC} offen
buffer_load_dwordx2 {vr(Q2,2)}, v{vT}, s[{sWS}:{sWS+3}], s{sT+7} offen
buffer_load_dwordx2 {vr(K2,2)}, v{vT+1}, s[{sWS}:{sWS+3}], s{sSRC} offen
s_add_u32 s{sSRC}, s{sSRC}, s{sLDW}
""")
        l1, l2, l3 = a.label("p1"), a.label("p2"), a.label("p3")
        if HALF0:
            a(f"s_and_b32 s{sT+6}, s{sWAVE}, 6\ns_cmp_lg_u32 s{sT+6}, 4\ns_cbranch_scc1 {l1}")
        else:
            a(f"s_cmp_lt_u32 s{sWAVE}, 4\ns_cbranch_scc1 {l1}")
        a(f"s_mov_b32 m0, s{sLDW}\ns_add_u32 s{sT+6}, s{sSRC}, 4096")
        def dma0():
            for q in range(4):
                a(f"buffer_load_dwordx4 v{vL16}, s[{sWS}:{sWS+3}], s{sSRC} offen offset:{1024*q} lds")
            a(f"s_add_u32 m0, m0, 4096\ns_nop 0\nbuffer_load_dwordx4 v{vL16}, s[{sWS}:{sWS+3}], s{sT+6} offen lds")
        dma0()
        a(f"{l1}:")
        late_setup()
        a(f"""
s_mov_b32 s{sTL}, s{sWAVE}
s_mul_i32 s{sT}, s{sWAVE}, 2560
s_add_u32 s{sT}, s{sT}, {MISC}
v_lshlrev_b32 v{vT}, 3, v{vLANE}
v_add_u32 v{vT}, s{sT}, v{vT}
v_and_b32 v{vT+1}, 7, v{vLANE}
v_cmp_eq_u32 vcc, 2, v{vT+1}
v_mov_b32 v22, 0x3f803f80
v_mov_b32 v23, 0x3f80
v_cndmask_b32 v{vT+3}, 0, v22, vcc
v_cmp_eq_u32 vcc, 0, v{vT+1}
v_and_b32 v{vXC+1}, 31, v{vLANE}
v_lshlrev_b32 v{vXC+1}, 2, v{vXC+1}
v_cndmask_b32 v{vT+2}, v{vT+3}, v23, vcc
ds_write_b64 v{vT}, {vr(vT+2,2)}
v_mov_b32 v{vT+1}, {MISC + 16}
v_cmp_gt_u32 vcc, 32, v{vLANE}
v_sub_u32 v{vMK}, 1, v{vH}
s_nop 0
v_cndmask_b32 v{vBK2}, v{vT+1}, v{vBK2}, vcc     ; K2 base
""")
        if HALF0:
            a(f"s_cmp_lt_u32 s{sWAVE}, 6\ns_cbranch_scc1 {l2}\ns_mov_b32 m0, s{sLDW}\ns_add_u32 s{sT+6}, s{sSRC}, 4096")
            dma0()
            a(f"{l2}:")
        a(f"""
v_bfe_u32 v{vT}, v{vLANE}, 2, 2               ; r
v_and_b32 v{vT+1}, 1, v{vLANE}                 ; c&1
v_xor_b32 v{vT+2}, v{vT+1}, v{vH}
v_lshl_add_u32 v{vT+2}, v{vT+2}, 3, v{vT}
v_lshlrev_b32 v{vT+2}, 4, v{vT+2}
v_lshl_add_u32 v{vT+2}, v{vT+1}, 9, v{vT+2}
v_bfe_u32 v{vT+1}, v{vLANE}, 1, 1
v_lshl_add_u32 v{vT+2}, v{vT+1}, 3, v{vT+2}    ; main (m=0,p=0) - 1024
v_lshlrev_b32 v{vT}, 3, v{vT}
v_lshl_add_u32 v{vT}, v{vH}, 5, v{vT}
v_xor_b32 v{vT+1}, 1, v{vT+1}
v_lshlrev_b32 v{vT+1}, 3, v{vT+1}
v_and_b32 v{vT+3}, 16, v{vLANE}
v_cmp_eq_u32 s[{sT}:{sT+1}], 0, v{vT+3}
v_and_b32 v{vT+3}, 19, v{vLANE}
v_cmp_lt_u32 vcc, 16, v{vT+3}
v_mov_b32 v{vT+3}, 1
s_nop 0
v_cndmask_b32 v{vMV}, v{vT+3}, 0, vcc
""")
        for m in range(2):
            for p in range(2):
                d = vBV + 2*m + p
                a(f"""v_add_u32 v22, {1024 + 256*m + 64*p}, v{vT+2}
v_add_u32 v23, {2048 + 256 + 128*m + 64*(1-p)}, v{vT}
v_add_u32 v{vT+3}, {MISC + 64*(1-p) + 128*(1-m)}, v{vT+1}
v_cndmask_b32 v{d}, v23, v22, s[{sT}:{sT+1}]
v_cndmask_b32 v{d}, v{d}, v{vT+3}, vcc
v_mov_b32 v{vVA+2*m+p}, v{d}""")
        a(f"v_mov_b32 v{vK1}, v{vBK1}\nv_mov_b32 v{vK2}, v{vBK2}")
        for k in range(16): a(f"v_mov_b32 v{O+k}, 0")
        for k in range(4): a(f"v_mov_b32 v{V1[1]+k}, 0")
        for k in range(4): a(f"v_mov_b32 v{P+4+k}, 0")
        a(f"v_mov_b32 v{SS[1]+14}, 0\nv_mov_b32 v{SS[1]+15}, 0")
        a(f"""
s_and_b32 s{sT+1}, s{sWAVE}, 3
s_lshl2_add_u32 s{sT}, s{sJ}, s{sT+1}          ; q
s_lshl_b32 s{sT+1}, s{sJ}, 13
s_add_u32 s{sAR1}, s{sAR}, s{sT+1}
s_add_u32 s{sAR1}, s{sAR1}, 0x100000
s_lshl_b32 s{sT+1}, s{sT}, 13
s_add_u32 s{sAR}, s{sAR}, s{sT+1}
s_lshr_b32 s{sT+1}, s{sT}, 3
s_and_b32 s{sT+2}, s{sT}, 7
s_lshl_b32 s{sT+2}, s{sT+2}, 13
s_mul_i32 s{sWRM}, s{sT+1}, 122880
s_add_u32 s{sWRM}, s{sWRM}, s{sT+2}
s_add_u32 s{sWRM}, s{sWRM}, {W1_F}
s_mul_i32 s{sWRM3}, s{sT+1}, 163840
s_add_u32 s{sWRM3}, s{sWRM3}, s{sT+2}
s_add_u32 s{sWRM3}, s{sWRM3}, {WQKV_F}
s_lshr_b32 s{sT+1}, s{sT}, 4
s_and_b32 s{sT+2}, s{sT}, 15
s_lshl_b32 s{sT+2}, s{sT+2}, 13
s_mul_i32 s{sWRM2}, s{sT+1}, 245760
s_add_u32 s{sWRM2}, s{sWRM2}, s{sT+2}
s_add_u32 s{sWRM2}, s{sWRM2}, {W2_F}
v_lshlrev_b32 v{vWRM}, 7, v{vLANE}
s_mov_b32 s{sTy}, 0
s_lshr_b32 s{sT}, s{sWAVE}, 2
s_or_b32 s{sT}, s{sT}, s{sLAST}
s_cbranch_scc1 {l3}
""")
        self.strip_setup()
        lw = a.label("w")
        a(f"""{l3}:
v_cmp_gt_u32 vcc, 32, v{vLANE}
v_mov_b32 v22, 0x3f803f80
s_waitcnt vmcnt(5)
s_cmp_ge_u32 s{sWAVE}, 4
s_cbranch_scc1 {lw}
s_waitcnt vmcnt(0)
{lw}:
v_cndmask_b32 v{K2}, v22, v{K2}, vcc
v_cndmask_b32 v{K2+1}, v22, v{K2+1}, vcc
v_mfma_f32_32x32x16_bf16 {vr(SS[0],16)}, {vr(K1,4)}, {vr(Q1,4)}, 0
s_nop 0
v_mfma_f32_32x32x8_bf16 {vr(SS[0],16)}, {vr(K2,2)}, {vr(Q2,2)}, {vr(SS[0],16)}
s_cmp_lg_u32 s{sWAVE}, 0
s_cbranch_scc1 {lw}x
s_lshl_b32 s{sT}, s{sJ}, 2
v_mov_b32 v{vT}, s{sT}
v_mov_b32 v{vT+1}, s{sXCC}
s_mov_b64 exec, 1
buffer_store_dword v{vT+1}, v{vT}, s[{sWS}:{sWS+3}], s{sXCA} offen sc1
s_mov_b64 exec, -1
{lw}x:
s_nop 12
""")
        self.rowmax16(SS[0], 22)
        self.crosshalf_max(22)
        self.split3(22)
        a(f"""
s_nop 1
v_mfma_f32_32x32x16_bf16 {vr(SS[0],16)}, {vr(K1,4)}, {vr(Q1,4)}, 0
v_mfma_f32_32x32x8_bf16 {vr(SS[0],16)}, {vr(K2,2)}, {vr(Q2,2)}, {vr(SS[0],16)}
""")
        self.stamp("attP")
        self.avm = VM()
        if HALF0:
            a(f"s_and_b32 s{sT}, s{sWAVE}, 6\ns_cmp_lg_u32 s{sT}, 4\ns_cbranch_scc1 {lw}y\ns_waitcnt vmcnt(0)\n{lw}y:")
            for q in range(5): self.avm.issue(("c", 0))
        else:
            a(f"s_cmp_lt_u32 s{sWAVE}, 4\ns_cbranch_scc1 {lw}y\ns_waitcnt vmcnt(0)\n{lw}y:")
        a("s_waitcnt lgkmcnt(0)\ns_barrier")
        self.stamp(0)
        a(f"""
ds_read_b64_tr_b16 {vr(V1[0],2)}, v{vVA+2}
ds_read_b64_tr_b16 {vr(V1[0]+2,2)}, v{vVA+3}
ds_read_b128 {vr(K1,4)}, v{vK1} offset:2560
ds_read_b64 {vr(K2,2)}, v{vK2} offset:2560
ds_read_b64_tr_b16 {vr(V0,2)}, v{vVA}
ds_read_b64_tr_b16 {vr(V0+2,2)}, v{vVA+1}
s_setprio 3
s_nop 3
""")
        a(f"s_cmp_lt_u32 s{sWAVE}, 4\ns_cselect_b64 vcc, -1, 0")
        self.stamp("attL")
        for t in range(64): self.att_tile(t)
        a("s_nop 0")
        self.stamp("attX")
        a(f"""v_cvt_pk_bf16_f32 v{P+7}, v{SS[1]+14}, v{SS[1]+15}
s_setprio 0
s_nop 0
v_mfma_f32_32x32x16_bf16 {vr(O,16)}, {vr(V1[1],4)}, {vr(P+4,4)}, {vr(O,16)}
""")
        self.tt_off(sT+4, sOF, 40960)
        a(f"""
s_lshl_b32 s{sT+5}, s{sJ}, 10
s_add_u32 s{sT+5}, s{sT+5}, s{sT+4}
s_lshr_b32 s{sT+6}, s{sJ}, 1
s_lshl_b32 s{sT+6}, s{sT+6}, 9               ; (head/4)*1024 + ((head%4)/2)*512
s_add_u32 s{sT+4}, s{sT+4}, s{sT+6}
s_and_b32 s{sT+6}, s{sJ}, 1
s_lshl_b32 s{sT+6}, s{sT+6}, 3
s_add_u32 s{sT+4}, s{sT+4}, s{sT+6}
s_add_u32 s{sT+4}, s{sT+4}, 32768
v_lshlrev_b32 v23, 30, v{vH}
v_add_u32 v23, v23, v{vL16}
s_mov_b32 s{sT+6}, {f2u(2.0**64):#x}
s_nop 5
v_cmp_lt_f32 vcc, v{O+12}, s{sT+6}
s_cmp_eq_u64 vcc, -1
{'s_nop 0' if XP else 's_cbranch_scc0 L_att_fallback'}
L_att_fin:
v_rcp_f32 v22, v{O+12}
s_nop 0
""")
        for k in range(6):
            a(f"v_pk_mul_f32 {vr(O+2*k,2)}, {vr(O+2*k,2)}, v[22:23] op_sel_hi:[1,0]")
        for k in range(6):
            a(f"v_cvt_pk_bf16_f32 v{O+k}, v{O+2*k}, v{O+2*k+1}")
        lx, lxd = a.label("xpoll"), a.label("xdone")
        a(f"""
buffer_store_dwordx4 {vr(O,4)}, v{vL16}, s[{sWS}:{sWS+3}], s{sT+5} offen
buffer_store_dwordx2 {vr(O+4,2)}, v23, s[{sWS}:{sWS+3}], s{sT+4} offen
s_waitcnt vmcnt(2)
s_mov_b32 s{sT+1}, 0x100000
{lx}:
v_cmp_eq_u32 vcc, 0, v{vXC}
s_cbranch_vccz {lxd}
s_sub_u32 s{sT+1}, s{sT+1}, 1
s_cbranch_scc1 {lxd}
buffer_load_dword v{vXC}, v{vXC+1}, s[{sWS}:{sWS+3}], s{sXCA} offen sc1
s_waitcnt vmcnt(0)
s_branch {lx}
{lxd}:
v_cmp_ne_u32 vcc, s{sXCC}, v{vXC}
s_cmp_lg_u64 vcc, 0
s_cselect_b32 s{sSLOW}, 1, 0
s_waitcnt lgkmcnt(0)
""")
        self.publish(0, sJ)
        self.stamp(1)

    def att_fallback(self):
        a = self.a
        X = SS[0]
        a(f"""
L_att_fallback:
s_waitcnt vmcnt(0) lgkmcnt(0)
s_mul_i32 s{sT+7}, s{sJ}, 163840
s_add_u32 s{sT+7}, s{sT+7}, s{sQIN}
v_cmp_gt_u32 vcc, 32, v{vLANE}
v_mov_b32 v{vT}, 0
s_nop 0
v_cndmask_b32 v{Q2}, v{vT}, v{Q2}, vcc
v_cndmask_b32 v{Q2+1}, v{vT}, v{Q2+1}, vcc
v_lshlrev_b32 v{vK2}, 30, v{vH}
v_add_u32 v{vK2}, v{vK2}, v{vBK2}              ; lower: tail offset in tile, upper: out of range
v_mov_b32 v22, 0xff800000
s_mov_b32 s{sT+8}, s{sT+7}
s_mov_b32 s{sT+9}, 64
L_fb_max:
buffer_load_dwordx4 {vr(K1,4)}, v{vBK1}, s[{sWS}:{sWS+3}], s{sT+8} offen
buffer_load_dwordx2 {vr(K2,2)}, v{vK2}, s[{sWS}:{sWS+3}], s{sT+8} offen
s_waitcnt vmcnt(0)
v_mfma_f32_32x32x16_bf16 {vr(X,16)}, {vr(K1,4)}, {vr(Q1,4)}, 0
v_mfma_f32_32x32x8_bf16 {vr(X,16)}, {vr(K2,2)}, {vr(Q2,2)}, {vr(X,16)}
s_nop 15
""")
        self.rowmax16(X, 22, init=True)
        a(f"""
s_add_u32 s{sT+8}, s{sT+8}, 2560
s_sub_u32 s{sT+9}, s{sT+9}, 1
s_cmp_lg_u32 s{sT+9}, 0
s_cbranch_scc1 L_fb_max
""")
        self.crosshalf_max(22)
        self.split3(22)
        a(f"""
s_mul_i32 s{sT+8}, s{sWAVE}, 2560
s_add_u32 s{sT+8}, s{sT+8}, {MISC + 512 - 1024}
v_mad_u32_u24 v{vVA}, s{sT+8}, v{vMV}, v{vBV}
v_mad_u32_u24 v{vVA+1}, s{sT+8}, v{vMV}, v{vBV+1}
v_mad_u32_u24 v{vVA+2}, s{sT+8}, v{vMV}, v{vBV+2}
v_mad_u32_u24 v{vVA+3}, s{sT+8}, v{vMV}, v{vBV+3}
v_add_u32 v{vK1}, s{sT+8}, v{vL16}             ; scratch write address - 1024
v_lshlrev_b32 v{SS[1]}, 3, v{vLANE}
v_add_u32 v{SS[1]+1}, s{sT+8}, v{SS[1]}
s_mov_b32 s{sT+8}, s{sT+7}
s_mov_b32 s{sT+9}, 64
""")
        for k in range(16): a(f"v_mov_b32 v{O+k}, 0")
        a(f"""
L_fb_pv:
buffer_load_dwordx4 {vr(K1,4)}, v{vBK1}, s[{sWS}:{sWS+3}], s{sT+8} offen
buffer_load_dwordx2 {vr(K2,2)}, v{vK2}, s[{sWS}:{sWS+3}], s{sT+8} offen
buffer_load_dwordx4 {vr(V0,4)}, v{vL16}, s[{sWS}:{sWS+3}], s{sT+8} offen offset:1024
buffer_load_dwordx2 {vr(V1[0],2)}, v{SS[1]}, s[{sWS}:{sWS+3}], s{sT+8} offen offset:2048
v_cmp_gt_u32 vcc, 32, v{vLANE}
v_mov_b32 v{vT}, 0x3f803f80
s_waitcnt vmcnt(0)
v_cndmask_b32 v{K2}, v{vT}, v{K2}, vcc
v_cndmask_b32 v{K2+1}, v{vT}, v{K2+1}, vcc
ds_write_b128 v{vK1}, {vr(V0,4)} offset:1024
ds_write_b64 v{SS[1]+1}, {vr(V1[0],2)} offset:2048
v_mfma_f32_32x32x16_bf16 {vr(X,16)}, {vr(K1,4)}, {vr(Q1,4)}, 0
v_mfma_f32_32x32x8_bf16 {vr(X,16)}, {vr(K2,2)}, {vr(Q2,2)}, {vr(X,16)}
s_waitcnt lgkmcnt(0)
ds_read_b64_tr_b16 {vr(V0,2)}, v{vVA}
ds_read_b64_tr_b16 {vr(V0+2,2)}, v{vVA+1}
ds_read_b64_tr_b16 {vr(V1[0],2)}, v{vVA+2}
ds_read_b64_tr_b16 {vr(V1[0]+2,2)}, v{vVA+3}
s_nop 12
""")
        for k in range(16): a(f"v_exp_f32 v{X+k}, v{X+k}")
        a("s_nop 0")
        for k in range(8): a(f"v_cvt_pk_bf16_f32 v{P+k}, v{X+2*k}, v{X+2*k+1}")
        a(f"""
s_waitcnt lgkmcnt(0)
s_nop 1
v_mfma_f32_32x32x16_bf16 {vr(O,16)}, {vr(V0,4)}, {vr(P,4)}, {vr(O,16)}
v_mfma_f32_32x32x16_bf16 {vr(O,16)}, {vr(V1[0],4)}, {vr(P+4,4)}, {vr(O,16)}
s_add_u32 s{sT+8}, s{sT+8}, 2560
s_sub_u32 s{sT+9}, s{sT+9}, 1
s_cmp_lg_u32 s{sT+9}, 0
s_cbranch_scc1 L_fb_pv
s_nop 15
s_branch L_att_fin
""")

    def prof_store(self):
        a = self.a
        if not self.prof: return
        a(f"""
s_waitcnt lgkmcnt(0)
{'s_memrealtime' if self.prof == 2 else 's_memtime'} s[{sPROF+22}:{sPROF+23}]
s_lshl_b32 s{sT}, s{sKID}, 8
s_add_u32 s{sT}, s{sT}, s2
s_lshl_b32 s{sT}, s{sT}, 3
s_add_u32 s{sT}, s{sT}, s{sWAVE}
s_lshl_b32 s{sT}, s{sT}, 6
s_add_u32 s{sT}, s{sT}, {PROF}
v_mov_b32 v{vT}, 0
s_waitcnt lgkmcnt(0)
s_mov_b64 exec, 1""")
        for i in range(12):
            a(f"v_mov_b32 v{vT+1}, s{sPROF+2*i}\nbuffer_store_dword v{vT+1}, v{vT}, s[{sWS}:{sWS+3}], s{sT} offen offset:{4*i}")
        a(f"v_mov_b32 v{vT+1}, s99\nbuffer_store_dword v{vT+1}, v{vT}, s[{sWS}:{sWS+3}], s{sT} offen offset:48")
        a(f"v_mov_b32 v{vT+1}, s{sSLOW}\nbuffer_store_dword v{vT+1}, v{vT}, s[{sWS}:{sWS+3}], s{sT} offen offset:52")
        a(f"s_waitcnt vmcnt(0)\ns_memrealtime s[100:101]\ns_waitcnt lgkmcnt(0)")
        a(f"v_mov_b32 v{vT+1}, s3\nbuffer_store_dword v{vT+1}, v{vT}, s[{sWS}:{sWS+3}], s{sT} offen offset:56")
        a(f"v_mov_b32 v{vT+1}, s100\nbuffer_store_dword v{vT+1}, v{vT}, s[{sWS}:{sWS+3}], s{sT} offen offset:60")


def gen_main(a, prof=False):
    g = Gen(a, prof)
    def entry(name, kid, k, qin, qout, res, last, stq, actq, nopoll, of, x1f, hf, st1):
        kernel_begin(a, name)
        a(f"s_load_dwordx2 s[{sT}:{sT+1}], s[0:1], 80\ns_load_dwordx4 s[{sT+2}:{sT+5}], s[0:1], 56")
        for r, v in ((sKID, kid), (sQIN, qin), (sQOUT, qout), (sRES, res), (sFLG, A_FL + k*4096), (sXCA, XCC + k*1024),
                     (sLAST, last), (sSTQ, stq), (sACTQ, actq), (sOF, of), (sX1F, x1f), (sHF, hf), (sST1, st1)):
            a(f"s_mov_b32 s{r}, {v:#x}")
        a("s_branch L_common")
    entry("l2_kernel", 3, 1, QKV[1], 0, X2F, 1, 0, 0, 0, OF[1], X1F[1], HF[1], STAT[3])
    entry("l1_kernel", 2, 0, QKV[0], QKV[1], XF0, 0, STAT[2], X2F, 0, OF[0], X1F[0], HF[0], STAT[1])
    a(f"""
L_common:
s_cmp_ge_u32 s2, 256
s_cbranch_scc1 L_end
""")
    if prof:
        for i in range(12): a(f"s_mov_b64 s[{sPROF+2*i}:{sPROF+2*i+1}], 0")
        a("s_memrealtime s[100:101]\ns_waitcnt lgkmcnt(0)\ns_mov_b32 s3, s100\ns_memtime s[100:101]")
    a(f"""
v_lshrrev_b32 v{vT}, 6, v0
v_and_b32 v{vLANE}, 63, v0
s_and_b32 s{sG}, s2, 7
v_readfirstlane_b32 s{sWAVE}, v{vT}
s_lshr_b32 s{sJ}, s2, 3
v_lshrrev_b32 v{vH}, 5, v{vLANE}
v_lshlrev_b32 v{vL16}, 4, v{vLANE}
v_lshlrev_b32 v{vT}, 7, v{vH}
v_xor_b32 v{vSW}, v{vT}, v{vL16}
s_and_b32 s{sLDW}, s{sWAVE}, 3
s_mul_i32 s{sLDW}, s{sLDW}, 5120
""")
    g.tpos(vTL, vLANE, vT)
    g.att_early()
    a("s_waitcnt lgkmcnt(0)")
    if prof: a("s_mov_b32 s99, s100" if prof == 1 else "s_mov_b32 s99, s3")
    srd(a, sWS, sT, 0x10000000)
    def late():
        srd(a, sB2, sT+2, D*2)
        srd(a, sOUT, sT+4, S*D*2)
        srd(a, sSS, sT, 0)
        srd(a, sBS, sT, 0)
        a(f"""
s_getreg_b32 s{sXCC}, hwreg(HW_REG_XCC_ID)
s_and_b32 s{sXCC}, s{sXCC}, 15
s_or_b32 s{sXCC}, s{sXCC}, 0x80
s_and_b32 s{sCB}, s{sJ}, 7
s_lshr_b32 s{sRB}, s{sJ}, 3
s_and_b32 s{sCB2}, s{sJ}, 15
s_lshr_b32 s{sRB2}, s{sJ}, 4
s_and_b32 s{sT2}, s{sWAVE}, 1
s_bfe_u32 s{sKH}, s{sWAVE}, 0x10001
s_mul_i32 s{sAR}, s{sG}, {AST}
s_add_u32 s{sAR}, s{sAR}, {ARENA}
s_add_u32 s{sFLG}, s{sFLG}, s{sAR}
s_add_u32 s{sRES}, s{sRES}, s{sAR}
s_add_u32 s{sSTQ}, s{sSTQ}, s{sAR}
s_add_u32 s{sACTQ}, s{sACTQ}, s{sAR}
s_add_u32 s{sOF}, s{sOF}, s{sAR}
s_add_u32 s{sX1F}, s{sX1F}, s{sAR}
s_add_u32 s{sHF}, s{sHF}, s{sAR}
s_add_u32 s{sST1}, s{sST1}, s{sAR}
s_mul_i32 s{sT+6}, s{sG}, {8*2560}
s_add_u32 s{sQOUT}, s{sQOUT}, s{sT+6}
s_lshl_b32 s{sT+6}, s{sG}, 7
s_add_u32 s{sXCA}, s{sXCA}, s{sT+6}
s_mul_i32 s{sWO}, s{sCB}, 102400
s_add_u32 s{sWO}, s{sWO}, {WO_F}
s_add_u32 s{sWO}, s{sWO}, s{sLDW}
s_mul_i32 s{sW1}, s{sCB2}, 122880
s_add_u32 s{sW1}, s{sW1}, {W1_F}
s_add_u32 s{sW1}, s{sW1}, s{sLDW}
s_mul_i32 s{sW2}, s{sCB}, 245760
s_add_u32 s{sW2}, s{sW2}, {W2_F}
s_add_u32 s{sW2}, s{sW2}, s{sLDW}
s_mul_i32 s{sWQ}, s{sCB2}, 163840
s_add_u32 s{sWQ}, s{sWQ}, {WQKV_F}
s_add_u32 s{sWQ}, s{sWQ}, s{sLDW}
s_mov_b32 s{sSLOW}, 0
""")
    g.attention(late)
    g.left = {6: 0, 7: 0}
    g.acq = 7
    a(f"s_cmp_ge_u32 s{sWAVE}, 4\ns_cbranch_scc1 L_loader_main")
    g.b2load(); g.aux_load(True)
    g.unpack(RA0, ACT, 8)
    g.unpack(RA2, ACT+8, 4)
    a(f"s_cmp_eq_u32 s{sKH}, 0\ns_cbranch_scc1 L_res_done")
    for k in range(8): a(f"v_mov_b32 v{RA2+k}, 0")
    a("L_res_done:")
    g.barrier(need=12, tag="E0")
    if PRE13:
        a(f"s_mul_i32 s{sT}, s{sWAVE}, 5120\nv_add_u32 v{vT}, s{sT}, v{vL16}")
        for c in (13, 14):
            a(f"v_add_u32 v{vT+1}, {(c % NSLOT)*CH}, v{vT}")
            for q in range(5):
                a(f"ds_write_b128 v{vT+1}, {vr(C13+20*(c-13)+4*q,4)} offset:{1024*q}")
        a("s_waitcnt lgkmcnt(0)")
    g.phase_n80(0, 8, 5)
    g.phase_w1(13)
    g.phase_n80(1, 19, 12)
    nb_last = len(g.bar)
    a("L_qkv_phase:")
    g.vm.drain()
    g.phase_qkv(31)
    a("L_done:")
    g.prof_store()
    a("L_end:\ns_endpgm")
    g.final_out()
    a("s_branch L_done")
    g.att_fallback()
    a(f"L_loader_main:\ns_cmp_lg_u32 s{sLAST}, 0\ns_cbranch_scc1 L_loader_last")
    g.loader3(g.bar, 38, PLAN, FB[0])
    a("s_branch L_done\nL_loader_last:")
    g.loader3(g.bar[:nb_last], 30, PLAN, FB[1])
    a("s_branch L_done")
    return g
```

```python
import sys
from dsl import *
from layout import *
from front import gen_front
from main import gen_main
NAME = "interleave_layers__softmax_full_mha__mixer_channel_mlp__prompt"
def build(prof=False):
    hdr = open(f"cdna_kernels/{NAME}.s.ref").read().split("\n")
    hdr = [l for l in hdr if l.startswith(";") and "@launch" not in l and "Override" not in l and "grid=ceil" not in l]
    hdr = hdr[:12]
    launches = [("front_kernel", LDS_BYTES), ("l1_kernel", LDS_BYTES), ("l2_kernel", LDS_BYTES)]
    out = "\n".join(hdr) + "\n"
    for k, lds in launches:
        out += f"; @launch kernel={k} grid=(256,1,1) block=(512,1,1) lds={lds}\n"
    if prof:
        import main
        out += "; STAMPS=" + ",".join(main.STAMPS) + "\n"
    a = Asm()
    a('.amdgcn_target "amdgcn-amd-amdhsa--gfx950"\n.text')
    gen_front(a, prof)
    g = gen_main(a, prof)
    out += a.text()
    out += '.section .rodata,"a"\n'
    for k in ("front_kernel", "l1_kernel", "l2_kernel"):
        out += ".p2align 6\n" + kd(k, 256, 102)
    return out
if __name__ == "__main__" and len(sys.argv) > 1:
    open(sys.argv[1], "w").write(build(int(sys.argv[2]) if len(sys.argv) > 2 else 1))
elif __name__ == "__main__" and DEBUG_SEP:
    open(f"dbg.s", "w").write(build(1))
elif __name__ == "__main__":
    open(f"cdna_kernels/{NAME}.s", "w").write(build(False))
    open(f"prof.s", "w").write(build(1))
    open(f"prof2.s", "w").write(build(2))
    print("written")
```

```python
from main import *

FS = 32768
FSCR = 4*FS
FAUX = FSCR
KNAME = 'interleave_layers__softmax_full_mha__mixer_channel_mlp__prompt_kernel'
DBF = os.environ.get('DBF', ' sc0 sc1')
ANN = int(os.environ.get('ANN', -1))
WSEL = sum(1 << (4*gh + jr) for gh in range(4) for jr in range(4) if (jr < 3 and gh < 3) or (jr == 3 and gh == 0))
WX = int(os.environ.get('WX', 0))
sDB = 24
ST0 = int(os.environ.get('ST0', 28))
sXS, sQS = 8, 12
sKC, sXB, sWB, sM0, sRB128, sW4 = 30+2, 33, 34, 35, 37, 38
sDst = 43
sWP, sEX, sMK = 96, 22, 8
SQ = 160
XA, WA = 128, 136
XF = [144, 148, 152]
FNB = int(os.environ.get("FNB", 6))

def gen_front(a, prof):
    g = Gen(a, prof)
    kernel_begin(a, KNAME)
    a(f"""
s_cmp_ge_u32 s2, 256
s_cbranch_scc1 L_end
s_load_dwordx4 s[84:87], s[0:1], 0
s_load_dwordx2 s[{sWP}:{sWP+1}], s[0:1], 80
s_load_dwordx2 s[30:31], s[0:1], 72
s_mov_b32 s{sKID}, 1
s_mov_b32 s{sSLOW}, 0
""")
    if prof:
        for i in range(12): a(f"s_mov_b64 s[{sPROF+2*i}:{sPROF+2*i+1}], 0")
        a("s_memrealtime s[100:101]\ns_waitcnt lgkmcnt(0)\ns_mov_b32 s3, s100\ns_memtime s[100:101]")
    a(f"""
v_lshrrev_b32 v{vT}, 6, v0
v_and_b32 v{vLANE}, 63, v0
s_and_b32 s{sG}, s2, 7
v_readfirstlane_b32 s{sWAVE}, v{vT}
s_lshr_b32 s{sJ}, s2, 3
s_lshr_b32 s{sT+2}, s{sG}, 1             ; g>>1
s_and_b32 s{sT+3}, s{sG}, 1              ; g&1
s_lshr_b32 s{sT+4}, s{sJ}, 3             ; jr
s_and_b32 s{sT+5}, s{sJ}, 7              ; jc
s_xor_b32 s{sWAVE}, s{sWAVE}, {WX}
s_cmp_lt_u32 s{sWAVE}, 4
s_cbranch_scc1 L_front_np
s_setprio 3
L_front_np:
s_lshl2_add_u32 s{sRB128}, s{sT+2}, s{sT+4}
s_lshl3_add_u32 s{sCB2}, s{sT+3}, s{sT+5}
s_mul_i32 s{sKC}, s{sT+4}, 3
s_add_u32 s{sKC}, s{sKC}, s{sT+5}
s_mul_i32 s{sT+3}, s{sT+3}, 5
s_add_u32 s{sKC}, s{sKC}, s{sT+3}
s_add_u32 s{sKC}, s{sKC}, s{sT+2}        ; 0..24
s_mul_i32 s{sT+2}, s{sKC}, 26
s_lshr_b32 s{sT+2}, s{sT+2}, 8
s_mul_i32 s{sT+2}, s{sT+2}, 10
s_sub_u32 s{sKC}, s{sKC}, s{sT+2}
s_and_b32 s{sW4}, s{sWAVE}, 3
s_lshl2_add_u32 s{sTL}, s{sRB128}, s{sW4}
""")
    def lane_common():
        a(f"""v_lshrrev_b32 v{vH}, 5, v{vLANE}
v_lshlrev_b32 v{vL16}, 4, v{vLANE}
v_bfe_u32 v6, v{vLANE}, 4, 1             ; b4
v_bfe_u32 v7, v{vLANE}, 2, 2             ; r
v_and_b32 v8, 1, v{vLANE}
v_lshlrev_b32 v8, 1, v8
v_bfe_u32 v9, v{vLANE}, 1, 1
v_or_b32 v8, v8, v9                      ; sw
v_and_b32 v9, 31, v{vLANE}               ; i / tok
v_lshl_add_u32 v10, v{vH}, 3, v7         ; 8h+r
v_mov_b32 v11, 0x3f803f80""")
    def srds_more():
        srd(a, sWS, sWP, 0x10000000)
        srd(a, sDB, 30, 256)
        a(f"s_getreg_b32 s{sXCC}, hwreg(HW_REG_XCC_ID)\ns_and_b32 s{sXCC}, s{sXCC}, 15\ns_or_b32 s{sXCC}, s{sXCC}, 0x80")
        g.tpos(vTL, vLANE, vT)
        a(f"v_lshlrev_b32 v{vT}, 7, v{vH}\nv_xor_b32 v{vSW}, v{vT}, v{vL16}")

    def wa_calc(dst, j):
        if j < 3:
            a(f"""v_mul_u32_u24 v{vT}, 5, v6
v_add_u32 v{vT}, v{vT}, v8               ; u8
v_and_b32 v{vT+1}, 14, v{vT}             ; 2t
v_mov_b32 v{vT+2}, 0x3b4
v_bfe_u32 v{vT+2}, v{vT+2}, v{vT+1}, 2   ; cls
v_add_u32 v{vT+2}, {j}, v{vT+2}
v_and_b32 v{vT+2}, 3, v{vT+2}            ; m
v_lshrrev_b32 v{vT+1}, 3, v{vT}
v_mul_u32_u24 v{vT+1}, {3-j}, v{vT+1}
v_add_u32 v{vT+1}, {j}, v{vT+1}          ; level
v_and_b32 v{vT}, 1, v{vT}                ; half""")
        else:
            a(f"""v_and_b32 v{vT}, 1, v{vLANE}
v_bfe_u32 v{vT+3}, v{vLANE}, 1, 1
v_lshl_add_u32 v{vT+3}, v6, 1, v{vT+3}
v_add_u32 v{vT+2}, 3, v{vT+3}
v_and_b32 v{vT+2}, 3, v{vT+2}            ; m
v_mul_u32_u24 v{vT+1}, 3, v{vT}
v_max_u32 v{vT+1}, v{vT+1}, v{vT+3}      ; level""")
        a(f"""v_lshl_add_u32 v{vT+2}, v7, 2, v{vT+2}
v_lshlrev_b32 v{vT+2}, 4, v{vT+2}
v_lshl_add_u32 v{vT+2}, v{vT+1}, 8, v{vT+2}
v_lshl_add_u32 v{vT+2}, v{vT}, 3, v{vT+2}
v_lshl_add_u32 v{vT+2}, v{vH}, 11, v{vT+2}
v_add_u32 v{dst}, 16384, v{vT+2}""")

    a(f"s_cmp_lt_u32 s{sWAVE}, 4\ns_cbranch_scc1 L_front_compute")
    mark0 = len(a.L)
    a("L_front_compute:")
    lane_common()
    a(f"""v_lshrrev_b32 v{vT}, 2, v{vLANE}
v_lshlrev_b32 v{vT}, 10, v{vT}
v_and_b32 v{vT+1}, 3, v{vLANE}
v_lshl_add_u32 v{vT}, v{vT+1}, 6, v{vT}
s_lshl_b32 s{sT}, s{sW4}, 15
s_add_u32 s{sT}, s{sT}, {16384 + 768 + 32}
v_add_u32 v{vT}, s{sT}, v{vT}
v_mov_b32 v16, v11
v_mov_b32 v17, v11
ds_write_b64 v{vT}, v[16:17]
ds_write_b64 v{vT}, v[16:17] offset:8
s_waitcnt lgkmcnt(0)""")
    if prof: a("s_mov_b32 s99, s100" if prof == 1 else "s_mov_b32 s99, s3")
    srds_more()
    if 'nocode' not in XP:
        a(f"""s_cmp_lg_u32 s{sWAVE}, 1
s_cbranch_scc1 L_nocw
s_getpc_b64 s[88:89]
L_cw_pc:
s_sub_u32 s88, s88, L_cw_pc-{KNAME}
s_subb_u32 s89, s89, 0
s_and_b32 s89, s89, 0xffff
s_mov_b32 s90, L_code_end-{KNAME}
s_mov_b32 s91, 0x20000
s_lshl_b32 s{sT}, s{sJ}, 7
v_lshlrev_b32 v{vT}, 12, v{vLANE}
s_mov_b64 exec, 0xffff
buffer_load_dword v18, v{vT}, s[88:91], s{sT} offen
s_mov_b64 exec, -1
L_nocw:""")
    if 'az' in XP:
        a(f"""s_lshl2_add_u32 s{sT}, s{sJ}, s{sW4}
s_mul_i32 s{sT}, s{sT}, 12288
s_mul_i32 s{sT+1}, s{sG}, {AST}
s_add_u32 s{sT}, s{sT}, s{sT+1}
s_add_u32 s{sT}, s{sT}, {ARENA}
s_add_u32 s{sT+1}, s{sT}, 4096
s_add_u32 s{sT+2}, s{sT}, 8192
v_mov_b32 v20, 0
v_mov_b32 v21, 0
v_mov_b32 v22, 0
v_mov_b32 v23, 0""")
        for q in range(12):
            a(f"buffer_store_dwordx4 v[20:23], v{vL16}, s[{sWS}:{sWS+3}], s{sT + q//4} offen offset:{(q%4)*1024} sc0 sc1")
    a(f"""s_cmp_lg_u32 s{sWAVE}, 3
s_cbranch_scc1 L_nozero
s_cmp_lg_u32 s{sJ}, 0
s_cbranch_scc1 L_nozero
v_mov_b32 v16, 0
v_mov_b32 v17, 0
v_mov_b32 v18, 0
v_mov_b32 v19, 0
s_mul_i32 s{sT}, s{sG}, {AST}
s_add_u32 s{sT}, s{sT}, {ARENA + A_FL}
s_add_u32 s{sT+1}, s{sT}, 4096
s_lshl_b32 s{sT+2}, s{sG}, 13
s_add_u32 s{sT+2}, s{sT+2}, {QF}
s_lshl_b32 s{sT+3}, s{sG}, 8
v_lshlrev_b32 v{vT}, 7, v{vLANE}
v_lshlrev_b32 v{vT+1}, 2, v{vLANE}""")
    for q in range(8):
        a(f"buffer_store_dwordx4 v[16:19], v{vL16}, s[{sWS}:{sWS+3}], s{sT + q//4} offen offset:{(q%4)*1024} sc0 sc1")
    a(f"s_add_u32 s{sT+4}, s{sT+2}, 4096")
    for q in range(8):
        a(f"buffer_store_dwordx4 v[16:19], v{vL16}, s[{sWS}:{sWS+3}], s{sT + 2 + 2*(q//4)} offen offset:{(q%4)*1024} sc0 sc1")
    a(f"""buffer_store_dword v16, v{vT+1}, s[{sWS}:{sWS+3}], s{sT+3} offen sc0 sc1
L_nozero:""")
    srd(a, sXS, 84, S*D*2)
    srd(a, sQS, 86, D*3*D*2)
    a(f"""s_mov_b32 s{sQOUT}, {QKV[0]}
s_lshl_b32 s{sT}, s{sW4}, 12
v_lshlrev_b32 v{vT+2}, 7, v9
v_add_u32 v{vT+2}, s{sT}, v{vT+2}
v_bfe_u32 v{vT+1}, v9, 1, 3
v_xor_b32 v{vT+1}, v{vT+1}, v{vH}""")
    for u in range(4):
        a(f"""v_xor_b32 v{vT}, {2*u}, v{vT+1}
v_lshl_add_u32 v{XA+u}, v{vT}, 4, v{vT+2}
v_add_u32 v{XA+4+u}, 65536, v{XA+u}""")
    for j in range(4):
        wa_calc(WA+j, j)
        a(f"v_add_u32 v{WA+4+j}, 65536, v{WA+j}")
    g.qkv_addr()
    a(f"""v_lshlrev_b32 v30, 3, v{vLANE}
v_add_u32 v30, {FAUX}, v30""")
    a(f"""v_mov_b32 v{SQ}, 0
v_mov_b32 v{SQ+1}, 0
v_mov_b32 v{SQ+4}, 0
v_mov_b32 v{SQ+5}, 1""")
    def announce():
        a(f"""s_cmp_lg_u32 s{sWAVE}, 3
s_cbranch_scc1 L_noann
s_cmp_lg_u32 s{sJ}, 0
s_cbranch_scc1 L_noann
s_lshl_b32 s{sT}, s{sG}, 2
s_waitcnt vmcnt(0)
s_mov_b64 exec, 1
buffer_store_dword v{SQ+5}, v{SQ+4}, s[{sDB}:{sDB+3}], s{sT} offen sc0 sc1
s_mov_b64 exec, -1
L_noann:""")
    if 'tlb' in XP:
        a("s_mov_b64 exec, 1")
        for jj in range(3):
            for hf in range(2):
                a(f"buffer_load_dword v{SQ+4}, v{vL16}, s[{sWS}:{sWS+3}], s{sQA+1+4*jj+hf} offen")
        a("s_mov_b64 exec, -1")
    ops = [(s, j) for s in range(40) for j in range(4)]
    dsq = []
    seen = set()
    def reads(k):
        s, j = ops[k]; c, u = divmod(s, 4); slot = c % 4
        if c not in seen:
            seen.add(c); a("s_barrier")
            if c == 0: g.stamp("F0")
        hi = 4*(slot >> 1); im = (slot & 1)*FS
        if j == 0:
            a(f"ds_read_b128 {vr(XF[s%3],4)}, v{XA+hi+u} offset:{im}"); dsq.append(("x", s))
        w = WFR[k % FNB]
        for p in range(2):
            a(f"ds_read_b64_tr_b16 {vr(w+2*p,2)}, v{WA+hi+j} offset:{im + (16*u+4*p)*256}"); dsq.append(("w", k))
    def need(tag):
        nonlocal dsq
        if tag in dsq:
            i = len(dsq) - 1 - dsq[::-1].index(tag)
            n = len(dsq) - 1 - i
            assert n <= 15
            a(f"s_waitcnt lgkmcnt({n})"); dsq = dsq[i+1:]
    if ANN < 0: announce()
    if CPRIO: a(f's_setprio {CPRIO}')
    for k in range(FNB): reads(k)
    for k, (s, j) in enumerate(ops):
        need(("w", k))
        x = XF[s % 3]
        c = "0" if s == 0 else vr(ACC+16*j, 16)
        a(f"v_mfma_f32_32x32x16_bf16 {vr(ACC+16*j,16)}, {vr(WFR[k%FNB],4)}, {vr(x,4)}, {c}")
        g.stamp(f"g{k}")
        if k + FNB < len(ops): reads(k + FNB)
        if 'nosq' not in XP: a(f"""v_and_b32 v{SQ+2}, 0xffff0000, v{x+j}
v_lshlrev_b32 v{SQ+3}, 16, v{x+j}
v_fmac_f32 v{SQ}, v{SQ+2}, v{SQ+2}
v_fmac_f32 v{SQ+1}, v{SQ+3}, v{SQ+3}""")
        if k == ANN: announce()
    g.stamp("FM")
    a(f"""s_barrier
ds_read_b64 {vr(AUXA,2)}, v30
ds_read_b64 {vr(AUXA+2,2)}, v30 offset:512
ds_read_b64 {vr(AUXA+4,2)}, v30 offset:1024
ds_read_b64 {vr(AUXA+6,2)}, v30 offset:1536
v_add_f32 v{SQ}, v{SQ}, v{SQ+1}
v_cmp_gt_u32 vcc, 32, v{vLANE}
v_mov_b32 v{SQ+1}, v{SQ}
s_nop 1
v_permlane32_swap_b32 v{SQ}, v{SQ+1}
s_nop 1
v_add_f32 v{SQ}, v{SQ}, v{SQ+1}
v_cndmask_b32 v{STT}, v{SQ}, v{ACC+48+12}, vcc""")
    for l in g.stats_math(False, summed=True): a(l)
    for jj in range(3): a(f"v_mul_f32 v{20+2*jj}, v{20+2*jj}, v16")
    a("s_waitcnt lgkmcnt(0)")
    for j in range(4): g.aux_mfma(ACC+16*j, j, False)
    g.pub_addr(sTL, 0)
    a(f"s_mov_b32 s{sLAST}, 0\ns_nop 2")
    g.qkv_epilogue()
    g.stamp("FE")
    a("s_branch L_layer")

    comp = a.L[mark0:]; del a.L[mark0:]
    vX0, vX1, vWv, vCS, vLA, vSO, vSD, vBI = 16, 17, 18, 19, 20, 22, 23, 24
    vCS2 = 30
    vWq, vXq, ONE, CSA = 48, 52, 56, 112
    LW, SR = 32, 64
    a(f"""L_front_loader:
v_lshrrev_b32 v{vT}, 3, v{vLANE}
v_mul_u32_u24 v{vT}, 1280, v{vT}
v_lshrrev_b32 v{vT+1}, 4, v{vLANE}       ; level
v_and_b32 v{vT+2}, 7, v{vLANE}
v_xor_b32 v{vT+2}, v{vT+2}, v{vT+1}
v_lshl_add_u32 v{vX0}, v{vT+2}, 4, v{vT}
v_xor_b32 v{vT+2}, 4, v{vT+2}
v_lshl_add_u32 v{vX1}, v{vT+2}, 4, v{vT}
v_and_b32 v{vT}, 3, v{vLANE}
v_lshl_add_u32 v{vT}, v{vT+1}, 2, v{vT}  ; 4*level + m
v_lshlrev_b32 v{vT}, 2, v{vT}
v_mov_b32 v{vT+2}, 0x86572310
v_mov_b32 v{vT+3}, 0x40e9bacd
v_lshrrev_b64 v[{vT+2}:{vT+3}], v{vT}, v[{vT+2}:{vT+3}]
v_and_b32 v{vT+2}, 15, v{vT+2}           ; piece
v_bfe_u32 v{vT}, v{vLANE}, 2, 2
v_mul_u32_u24 v{vT}, 3840, v{vT}
v_lshl_add_u32 v{vWv}, v{vT+2}, 4, v{vT}
s_mul_i32 s{sXB}, s{sTL}, {32*1280}
s_mul_i32 s{sWB}, s{sW4}, {16*3840}
s_mul_i32 s{sT}, s{sCB2}, 240
s_add_u32 s{sWB}, s{sWB}, s{sT}
s_lshl_b32 s{sM0}, s{sW4}, 12
""")
    for q in range(4):
        a(f"v_add_u32 v{vWq+q}, {q*(4*3840-1024)}, v{vWv}")
    for q in range(4):
        a(f"v_add_u32 v{vXq+q}, {q*(10240-1024)}, v{vX0+(q&1)}")
    a(f"""s_mov_b32 s{sEX}, -1
s_mov_b32 s{sEX+1}, 0xbbbbffff
s_waitcnt lgkmcnt(0)
""")
    if prof: a("s_mov_b32 s99, s100" if prof == 1 else "s_mov_b32 s99, s3")
    srd(a, sXS, 84, S*D*2)
    srd(a, sQS, 86, D*3*D*2)
    def csops(k):
        if k % 4 == 0:
            a(f"v_mfma_f32_32x32x16_bf16 {vr(CSA,16)}, {vr(ONE,4)}, {vr(LW+k,4)}, {vr(CSA,16)}")
    def dma(c, with_cs=False):
        slot = c % 4
        a(f"""s_mov_b64 exec, s[{sEX}:{sEX+1}]
s_add_u32 m0, s{sM0}, {slot*FS + 16384}
s_mul_i32 s{sT+1}, s{sKC}, {64*3840}
s_add_u32 s{sT+1}, s{sT+1}, s{sWB}""")
        for q in range(4):
            a(f"buffer_load_dwordx4 v{vWq+q}, s[{sQS}:{sQS+3}], s{sT+1} offen offset:{q*1024} lds")
        a(f"""s_mov_b64 exec, -1
s_add_u32 m0, s{sM0}, {slot*FS}
s_lshl_b32 s{sT}, s{sKC}, 7
s_add_u32 s{sT}, s{sT}, s{sXB}""")
        if with_cs: a("s_waitcnt lgkmcnt(0)")
        for q in range(4):
            if with_cs:
                for k in range(4*q, 4*q+4): csops(k)
            a(f"buffer_load_dwordx4 v{vXq+q}, s[{sXS}:{sXS+3}], s{sT} offen offset:{q*1024} lds")
        if c < 9:
            a(f"""s_add_u32 s{sKC}, s{sKC}, 1
s_cmp_eq_u32 s{sKC}, 10
s_cselect_b32 s{sKC}, 0, s{sKC}""")
    def wpre():
        a(f"""v_mul_u32_u24 v{vT}, 384, v{vH}
v_lshl_add_u32 v{vT}, v9, 4, v{vT}
v_mov_b32 v{vT+1}, {OOB}
v_cmp_gt_u32 vcc, 24, v9
s_mul_i32 s{sT+4}, s{sCB2}, 163840
s_add_u32 s{sT+4}, s{sT+4}, {WQKV_F}
v_cndmask_b32 v{vT}, v{vT+1}, v{vT}, vcc
s_movk_i32 s{sT+5}, 3072
s_lshl_b32 s{sT+6}, s{sW4}, 10
s_cmp_eq_u32 s{sW4}, 3
s_cselect_b64 vcc, -1, 0
s_cselect_b32 s{sT+5}, 768, s{sT+5}
s_cselect_b32 s{sT+6}, 15360, s{sT+6}
s_add_u32 s{sT+4}, s{sT+4}, s{sT+6}
v_cndmask_b32 v31, v{vL16}, v{vT}, vcc
s_lshr_b32 s{sT+6}, {WSEL:#x}, s{sRB128}
s_and_b32 s{sT+6}, s{sT+6}, 1
s_cselect_b32 s{sT+4}, s{sT+4}, {OOB}
s_add_u32 s{sT+6}, s{sKC}, 2
s_sub_u32 s{sT+7}, s{sKC}, 8
s_cselect_b32 s{sT+7}, s{sT+6}, s{sT+7}""")
        for u in range(4):
            a(f"""s_lshl_b32 s{sT}, s{sT+7}, 2
s_add_u32 s{sT}, s{sT}, {u}              ; ks
s_mul_i32 s{sT+1}, s{sT}, 0x3334
s_lshr_b32 s{sT+1}, s{sT+1}, 16          ; ks/5
s_mul_i32 s{sT+2}, s{sT+1}, 5
s_sub_u32 s{sT}, s{sT}, s{sT+2}
s_mul_i32 s{sT}, s{sT}, s{sT+5}
s_mul_i32 s{sT+1}, s{sT+1}, 20480
s_add_u32 s{sT}, s{sT}, s{sT+1}
s_add_u32 s{44+u}, s{sT}, s{sT+4}""")
        a(f"v_and_b32 v26, 7, v{vLANE}\nv_lshlrev_b32 v26, 2, v26")
    g.stamp('L0'); dma(0); g.stamp('L1')
    lane_common()
    for j in range(4):
        l = a.label("wa")
        a(f"s_cmp_lg_u32 s{sW4}, {j}\ns_cbranch_scc1 {l}")
        wa_calc(vLA, j)
        a(f"{l}:")
    a(f"v_add_u32 v{vLA+1}, 65536, v{vLA}\n")
    for k in range(16): a(f"v_mov_b32 v{CSA+k}, 0")
    for k in range(4): a(f"v_mov_b32 v{ONE+k}, v11")
    dma(1); g.stamp('L2')
    def rd(c):
        slot = c % 4
        for u in range(4):
            for p in range(2):
                a(f"ds_read_b64_tr_b16 {vr(LW+4*u+2*p,2)}, v{vLA + (slot>>1)} offset:{(slot&1)*FS + (16*u+4*p)*256}")
    def cs():
        a("s_waitcnt lgkmcnt(0)")
        for k in range(16): csops(k)
    for c in range(8):
        a("s_waitcnt vmcnt(8)")
        g.stamp(f"W{c}")
        a("s_barrier")
        if c == 0 and 'hp' not in XP: a("s_setprio 0")
        rd(c); dma(c+2, True)
        g.stamp(f"D{c}")
        if c == 1: srds_more()
        if c == 2: wpre()
    def tail(y):
        a(f"buffer_load_dword v27, v26, s[{sDB}:{sDB+3}], 0 offen{DBF}")
        for u in range(4):
            a(f"buffer_store_dwordx4 {vr(LW+4*u,4)}, v31, s[{sWS}:{sWS+3}], s{44+u} offen sc0 sc1")
        a("s_waitcnt vmcnt(13)\ns_barrier")
        rd(8); cs()
        a("s_waitcnt vmcnt(4)\ns_barrier")
        rd(9)
        cs()
        a(f"""s_nop 12
v_and_b32 v{vT+1}, 0xffff0000, v{CSA}
v_sub_f32 v{vT+3}, v{CSA}, v{vT+1}
v_lshrrev_b32 v{vT+2}, 16, v{vT+1}
v_cmp_gt_u32 vcc, 32, v{vLANE}
v_or_b32 v{vT+2}, v{vT+2}, v{vT+1}
v_lshrrev_b32 v{vT+3}, 16, v{vT+3}
v_cndmask_b32 v{vT+2}, 0, v{vT+2}, vcc
v_cndmask_b32 v{vT+3}, 0, v{vT+3}, vcc
s_lshl_b32 s{sT+6}, s{sW4}, 9
v_lshlrev_b32 v{vT+1}, 3, v{vLANE}
v_add_u32 v{vT+1}, s{sT+6}, v{vT+1}
v_add_u32 v25, {FAUX}, v{vT+1}
ds_write_b64 v25, {vr(vT+2,2)}
s_mov_b32 s{sT+7}, 0x100000
""")
        g.stamp('dbg0')
        a(f"""L_dbg_poll:
v_cmp_eq_u32 vcc, 0, v27
s_cbranch_vccz L_dbg_done
s_sub_u32 s{sT+7}, s{sT+7}, 1
s_cbranch_scc1 L_dbg_done
buffer_load_dword v27, v26, s[{sDB}:{sDB+3}], 0 offen{DBF}
s_waitcnt vmcnt(0)
s_branch L_dbg_poll
L_dbg_done:
""")
        g.stamp('dbg')
        a(f"""s_waitcnt lgkmcnt(0)
s_barrier""")
        a(f"""s_cmp_lg_u32 s{sWAVE}, 7
s_cbranch_scc1 L_noxcc
s_lshl_b32 s{sT+7}, s{sG}, 5
s_add_u32 s{sT+7}, s{sT+7}, s{sJ}
s_lshl_b32 s{sT+7}, s{sT+7}, 2
s_add_u32 s{sT+7}, s{sT+7}, {XCC}
v_mov_b32 v30, s{sXCC}
s_mov_b64 exec, 1
buffer_store_dword v30, v{vL16}, s[{sWS}:{sWS+3}], s{sT+7} offen sc0 sc1
s_mov_b64 exec, -1
L_noxcc:""")
        l = a.label("noaux")
        a(f"""s_cmp_lg_u32 s{sRB128}, 0
s_cbranch_scc1 {l}
s_lshl_b32 s{sT+6}, s{sCB2}, 11
s_add_u32 s{sT+6}, s{sT+6}, {AUXQ}
buffer_store_dwordx2 {vr(vT+2,2)}, v{vT+1}, s[{sWS}:{sWS+3}], s{sT+6} offen sc0 sc1
{l}:""")
    tail(0)
    a(f"s_mov_b32 s{sLAST}, 0\ns_mov_b32 s{sTy}, 0\ns_branch L_layer")
    a.L.extend(comp)
```

```python
import math, struct, os
from dsl import *
from layout import *

OOB = 0x40000000
def f2u(x): return struct.unpack("<I", struct.pack("<f", x))[0]
QSCALE = DH ** -0.5 * math.log2(math.e)
EPS = 1e-5

sWS, sOUT, sB2 = 4, 8, 12
sWAVE, sG, sJ, sSLOW = 16, 17, 18, 19
sQIN, sQOUT, sRES, sFLG, sXCA, sLAST = 20, 21, 22, 23, 24, 25
sSTQ, sACTQ, sNOPOLL, sXCC = 26, 27, 28, 29
sOF, sX1F, sHF, sST1 = 30, 31, 32, 33
sCB, sRB, sCB2, sRB2 = 34, 35, 36, 37
sKH, sT2, sTL = 38, 39, 40
sSRC, sC, sSLOT, sLDW = 41, 42, 43, 44
sWO, sW1, sW2, sWQ = 45, 46, 47, 48
sT = 50
sPROF = 60
sQA = 84
sKID = 98
sWRM = 49
sAR1 = 96
sWRM2, sWRM3, sDST, sN, sAR = 93, 94, 95, 97, 92
vLANE, vL16, vSW, vTL, vH = 1, 2, 3, 4, 5
vK1, vK2, vVA = 6, 7, 8
vB0, vB1, vB2 = 6, 7, 8
vP0, vP1, vP2 = 9, 10, 11
vT = 12
Q1, Q2, K1, K2, V0, V1, P, SS, O = 16, 20, 24, 28, 32, [36, 40], 44, [52, 68], 84
vBK1, vBK2, vBV, vMK, vMV, vXC = 100, 101, 102, 106, 107, 108
vWRM, vDUM = 110, 111
SR, vSO, vSD, vBI, vSC, ONE, CSA = 208, 168, 169, 170, 171, 172, 176
sA, sBp, sSo, sDs, sSt, sAx, sQd, sTy, sSS, sBS = 84, 85, 86, 87, 88, 89, 42, 28, 8, 12
sDP, sFP, sLDR, sROLE = 93, 94, 96, 49
sPUB, sRDY, sQFK, sQFV = 24, 29, 95, 97
vPL = 252
sXP, RX = 90, 112
vL16B = 110
E_RES, E_C13, E_C14, E_T0, E_T1 = 1, 2, 3, 4, 5
AUXB, AUXA, WF, ACC, ACT, STT = 38, 40, 48, 64, 128, 192
RA0, RA2, RA1 = 208, 224, 240
AUXB16, AUXA16 = 32, 36
NACT = 12
WFR = [48, 52, 56, 60, 176, 180, 184, 188]
NB3, NB4 = int(os.environ.get('NB3', 6)), int(os.environ.get('NB4', 8))
NPRE, ADEPTH, STAT_AT = int(os.environ.get('NPRE', 7)), int(os.environ.get('ADEPTH', 11)), 8
RAMP = int(os.environ.get('RAMP', 2))
GDEF = int(os.environ.get('GDEF', 3))
PRE13 = int(os.environ.get('PRE13', 1))
C13 = 152
N80_TAIL = 8
QTAIL = int(os.environ.get('QTAIL', 8))
QRATE = int(os.environ.get('QRATE', 3))
WR_LAG = 1
F0 = 13
NF = 7
FL = [eval(os.environ.get('FL0', '[26, 27, 28, 29, 30, 37, 38]')), [24, 25, 26, 27, 28, 29, 30]]
RS = eval(os.environ.get('RS', """[("S",1,3,1), ("S",2,10,1), ("D",3,26,2), ("D",5,45,2), ("F",0,68,1), ("F",6,73,1), ("D",7,78,1), ("D",9,83,2), ("F",2,84,2), ("F",3,93,1),
      ("F",4,98,1), ("F",5,103,1), ("D",11,108,2), ("F",1,109,2)]"""))
ROUNDS = {}
for _k, _n, _s0, _st in RS:
    for _q in range(3 if _k == 'S' else 5):
        assert _s0 + _q*_st not in ROUNDS
        ROUNDS[_s0 + _q*_st] = (_k, _n, _q)
RESX_AT = 39
HALF0 = int(os.environ.get('HALF0', 1))
S_LD, S_WR, S_FLAG, S_POLL = eval(os.environ.get('SS', '(7, 14, 22, 31)'))
XC_AT = 40
PRIO = {}
_P = eval(os.environ.get('PP', '{0: 3, 6: 2, 11: 1, 14: 0}'))
for _b in (22, 38):
    for _u, _v in _P.items(): PRIO[_b+_u] = _v
PRIO.update(eval(os.environ.get('PE', '{0: 2, 1: 1, 2: 3, 4: 1, 5: 0, 6: 3, 9: 2, 11: 1, 13: 0, 14: 3, 17: 2, 19: 1, 21: 0, 54: 3, 59: 2, 61: 1, 63: 0}')))
FIFO_ATT = eval(os.environ.get('FIFO_ATT', '{4: [0, 1], 5: [2, 3], 6: [4, 5], 7: [6]}'))
SYNC = eval(os.environ.get('SYNC', '{13: 16, 17: 18, 19: 23, 22: 0, 24: 25, 26: 27, 28: 30, 31: 34, 33: 0, 35: 37, 38: 38}'))
XFIFO = eval(os.environ.get('XFIFO', '{"E0": [(24, 9), (25, 10)], "Zo": [(17, 7), (18, 8)], "Zw": [(34, 7)]}'))
PLAN = eval(os.environ.get('PLAN', '{"def": 0, "wdef": 10, "Zo": 10, "Zf": 25, "Zw": 15, "B33": 10, "wX0": 5, "wX1": 5, "wZw": 0}'))
WPACE = int(os.environ.get('WPACE', 0))
DRIP = int(os.environ.get('DRIP', 2))
PKR = 112
import os
STD = ["att0", "attE", "woP", "woM", "w1P", "w1M", "w2P", "w2M", "qP", "qM", "qE"]
STAMPS = os.environ.get("STAMPS", ",".join(STD)).split(",")
SIDE = eval(os.environ.get('SIDE', "{3: ['w2a'], 4: ['w2b'], 5: ['ar0'], 6: ['ar1', 'res']}"))
XP = os.environ.get('XP', '')
ALF = os.environ.get('ALF', ' sc1')
CPRIO = int(os.environ.get('CPRIO', 1))
QST = os.environ.get('QST', ' sc0 sc1')
CHAIN_TOUCH = 0
KV_NT = int(os.environ.get("KV_NT", 0))

class VM:
    def __init__(self): self.q = []
    def issue(self, tag): self.q.append(tag)
    def need(self, tag):
        if tag not in self.q: return None
        i = len(self.q) - 1 - self.q[::-1].index(tag)
        n = len(self.q) - 1 - i
        self.q = self.q[i+1:]
        return n
    def drain(self): self.q = []

class Gen:
    def __init__(self, a, prof):
        self.a = a; self.prof = prof
        self.bar = []
        self.acq = 8
        self.left = {}
        self.dsq = []
        self.freed = set()
        self.vm = VM()
        self.basechunk = {}
        self.seen = set()
        self.drip = []
        self.oolbuf = []
        self.rate = DRIP

    def stamp(self, name):
        if isinstance(name, int): name = STD[name]
        name = {"F0": "att0", "g0": "attE", "g32": "woP", "g64": "woM", "g96": "w1P", "g128": "w1M", "FM": "qM", "FE": "qE"}.get(name, name) if name not in STAMPS else name
        if self.prof and name in STAMPS:
            i = STAMPS.index(name)
            self.a(f"{'s_memrealtime' if self.prof == 2 else 's_memtime'} s[{sPROF+2*i}:{sPROF+2*i+1}]")

    def barrier(self, need=None, tag=None):
        busy = {c for c, _ in self.dsq}
        fr = [c for c, n in sorted(self.left.items()) if n == 0 and c not in busy and c not in self.freed]
        self.freed |= set(fr)
        self.bar.append(dict(need=need, free=fr, tag=tag if tag else f"B{need}"))
        self.a("s_barrier")
        if need is not None: self.acq = need
    def lgkm(self, n):
        self.a(f"s_waitcnt lgkmcnt({n})")
        if len(self.dsq) > n: self.dsq = self.dsq[len(self.dsq)-n:] if n else []
    def dsneed(self, tag):
        tags = [t for _, t in self.dsq]
        if tag in tags:
            self.lgkm(len(tags) - 1 - tags.index(tag))
    def wread(self, dst, chunk, kind, off, tag=None):
        a = self.a
        if chunk not in self.seen:
            self.seen.add(chunk)
            if chunk in SYNC:
                self.barrier(max(SYNC[chunk], self.acq), tag=f"B{chunk}")
            assert chunk <= self.acq, (chunk, self.acq)
        if self.basechunk.get(kind) != chunk:
            a(f"v_add_u32 v{vB0+kind}, {(chunk % NSLOT)*CH}, v{vP0+kind}")
            self.basechunk[kind] = chunk
        a(f"ds_read_b128 {vr(dst,4)}, v{vB0+kind} offset:{off}")
        self.left[chunk] -= 1
        self.dsq.append((chunk, tag))

    def poll(self, phase, nslots):
        a = self.a
        lp, ld = a.label("poll"), a.label("polld")
        mask = (1 << nslots) - 1
        a(f"""
s_lshl_b32 s{sT}, s{sTL}, 7
s_add_u32 s{sT}, s{sT}, s{sFLG}
s_add_u32 s{sT}, s{sT}, {phase*1024}
v_and_b32 v{vT}, 31, v{vLANE}
v_lshlrev_b32 v{vT}, 2, v{vT}
s_mov_b32 s{sT+1}, 0x100000
{lp}:
buffer_load_dword v{vT+1}, v{vT}, s[{sWS}:{sWS+3}], s{sT} offen sc1
s_sub_u32 s{sT+1}, s{sT+1}, 1
s_cbranch_scc1 {ld}
s_waitcnt vmcnt(0)
v_cmp_eq_u32 vcc, 0, v{vT+1}
s_and_b32 s{sT+2}, vcc_lo, {mask:#x}
s_cbranch_scc1 {lp}
{ld}:
s_waitcnt vmcnt(0)
""")
        ls = a.label("noinv")
        a(f"""
s_cmp_eq_u32 s{sSLOW}, 0
s_cbranch_scc1 {ls}
buffer_inv sc1
s_waitcnt vmcnt(0)
{ls}:
""")
        self.vm.drain()

    def publish(self, phase, slot_sreg, vmn=0):
        a = self.a
        l1, l2 = a.label("pubslow"), a.label("pubdone")
        a(f"""
s_lshl_b32 s{sT}, s{sTL}, 7
s_add_u32 s{sT}, s{sT}, s{sFLG}
s_add_u32 s{sT}, s{sT}, {phase*1024}
s_lshl_b32 s{sT+1}, s{slot_sreg}, 2
s_add_u32 s{sT}, s{sT}, s{sT+1}
v_mov_b32 v{vT}, 0
v_mov_b32 v{vT+1}, 1
s_cmp_lg_u32 s{sSLOW}, 0
s_cbranch_scc1 {l1}
s_waitcnt vmcnt({vmn})
s_mov_b64 exec, 1
buffer_store_dword v{vT+1}, v{vT}, s[{sWS}:{sWS+3}], s{sT} offen
s_branch {l2}
{l1}:
s_waitcnt vmcnt(0)
buffer_wbl2 sc1
s_waitcnt vmcnt(0)
s_mov_b64 exec, 1
buffer_store_dword v{vT+1}, v{vT}, s[{sWS}:{sWS+3}], s{sT} offen sc1
{l2}:
s_mov_b64 exec, -1
""")
        self.vm.drain(); self.vm.issue("flag")

    def make_ops(self, nsteps, nt, tail=0, tail_order=None):
        ops = [(s, j) for s in range(nsteps - tail) for j in range(nt)]
        for j in (tail_order or range(nt)):
            ops += [(s, j) for s in range(nsteps - tail, nsteps)]
        return ops

    def first_w(self, ops, nb, frag):
        for k in range(nb):
            self.wread(WFR[k], *frag(*ops[k]), tag=k)

    def gemm(self, ops, nb, accs, frag, act_ks, sact, cinit, hooks, pre_stats=None, nm="", pre=()):
        a = self.a
        nsteps = max(s for s, _ in ops) + 1
        lastuse = {}
        for k, (s, j) in enumerate(ops): lastuse[s] = k
        cur = [None]; nxt = [0]
        tailn = N80_TAIL if nm in 'ow' else 0
        def aload():
            s = nxt[0]; nxt[0] += 1
            ks = act_ks(s)
            if cur[0] != ks // 4:
                cur[0] = ks // 4
                a(f"s_add_u32 s{sT+3}, s{sact}, {(ks//4)*4096}")
            if 'noA' in XP and s >= 2: return
            a(f"buffer_load_dwordx4 {vr(ACT+4*(s%NACT),4)}, v{vL16}, s[{sWS}:{sWS+3}], s{sT+3} offen offset:{(ks%4)*1024}{ALF}")
            self.vm.issue(("act", s))
        for _ in range(min(NPRE, nsteps)): aload()
        for h in pre: h()
        started = set()
        for k, (s, j) in enumerate(ops):
            n = self.vm.need(("act", s))
            if n is not None: a(f"s_waitcnt vmcnt({n})")
            self.dsneed(k)
            c = vr(accs[j], 16) if (j in started or cinit[j]) else "0"
            started.add(j)
            a(f"v_mfma_f32_32x32x16_bf16 {vr(accs[j],16)}, {vr(WFR[k%nb],4)}, {vr(ACT+4*(s%NACT),4)}, {c}")
            self.stamp(f"{nm}{k}")
            if k + nb < len(ops):
                self.wread(WFR[k%nb], *frag(*ops[k+nb]), tag=k+nb)
            if (j == 0 or (j == 1 and s % RAMP == RAMP-1) or (s >= nsteps - tailn and j == 1)) and nxt[0] < nsteps and (nxt[0] < NACT or lastuse[nxt[0]-NACT] <= k) and nxt[0] <= s + ADEPTH:
                aload()
                if nxt[0] == nsteps and ("Z" + nm) in PLAN: self.barrier(tag="Z" + nm)
            if pre_stats and j == 2 and s % 2 == 0 and s // 2 < 4: pre_stats(s // 2)
            for h in hooks.get((s, j), []) + hooks.get(k - len(ops), []):
                h()
            for _ in range(self.rate):
                if self.drip:
                    d = self.drip.pop(0)
                    if callable(d): d()
                    else: a(d)
        assert nxt[0] == nsteps

    def stats_load(self, sbase):
        a = self.a
        def f(q):
            if q == 0: a(f"s_lshl_b32 s{sT+4}, s{sTL}, 12\ns_add_u32 s{sT+4}, s{sT+4}, s{sbase}")
            a(f"buffer_load_dwordx4 {vr(STT+4*q,4)}, v{vL16}, s[{sWS}:{sWS+3}], s{sT+4} offen offset:{1024*q} sc1")
            self.vm.issue(("st", q))
        return f

    def stats_math(self, double, summed=False):
        a = self.a
        L = []
        if not summed:
            def w():
                n = self.vm.need(("st", 3))
                if n is not None: a(f"s_waitcnt vmcnt({n})")
            L = [w]
            for q in range(8): L.append(f"v_add_f32 v{STT+q}, v{STT+q}, v{STT+8+q}")
            for q in range(4): L.append(f"v_add_f32 v{STT+q}, v{STT+q}, v{STT+4+q}")
            L += f"""v_add_f32 v{STT}, v{STT}, v{STT+2}
v_add_f32 v{STT+1}, v{STT+1}, v{STT+3}
v_add_f32 v{STT}, v{STT}, v{STT+1}""".split("\n")
        L += f"""v_mul_f32 v{STT}, {f2u(1.0/D):#x}, v{STT}
v_mov_b32 v{STT+1}, v{STT}
s_nop 1
v_permlane32_swap_b32 v{STT}, v{STT+1}
v_cmp_gt_u32 vcc, 32, v{vLANE}
v_fma_f32 v{STT+1}, -v{STT}, v{STT}, v{STT+1}
v_max_f32 v{STT+1}, 0, v{STT+1}
v_add_f32 v{STT+2}, {f2u(EPS):#x}, v{STT+1}
v_rsq_f32 v16, v{STT+2}
v_sub_f32 v{STT+4}, 0, v{STT}
v_mov_b32 v18, 0xffff0000
v_and_b32 v{STT+5}, 0xffff0000, v{STT+4}
v_sub_f32 v{STT+6}, v{STT+4}, v{STT+5}
v_lshrrev_b32 v{STT+5}, 16, v{STT+5}""".split("\n")
        if not double:
            L += f"""v_and_or_b32 v{AUXB}, v{STT+6}, v18, v{STT+5}
v_mov_b32 v{AUXB+1}, v{STT+5}""".split("\n")
            return L
        L += f"""v_mul_f32 v{STT+3}, v16, v16
v_mul_f32 v{STT+3}, v{STT+3}, v{STT+1}
v_add_f32 v{STT+3}, {f2u(EPS):#x}, v{STT+3}
v_rsq_f32 v{STT+3}, v{STT+3}
v_and_or_b32 v{AUXB16}, v{STT+6}, v18, v{STT+5}
v_mul_f32 v16, v16, v{STT+3}
v_rcp_f32 v17, v16
v_mov_b32 v{AUXB16+2}, v{AUXB16}
v_cndmask_b32 v{STT+7}, v17, 0, vcc
v_and_b32 v{STT+8}, 0xffff0000, v{STT+7}
v_sub_f32 v{STT+9}, v{STT+7}, v{STT+8}
v_or_b32 v{AUXB16+1}, v{STT+8}, v{STT+5}
v_and_or_b32 v{AUXB16+3}, v{STT+9}, v18, v{STT+5}""".split("\n")
        return L

    def aux_load(self, w1):
        a = self.a
        if w1:
            a(f"s_lshl_b32 s{sT}, s{sCB2}, 12\ns_add_u32 s{sT}, s{sT}, {AUX1}")
            for j in range(3):
                a(f"buffer_load_dwordx4 {vr(AUXA16+4*j,4)}, v{vL16}, s[{sWS}:{sWS+3}], s{sT} offen offset:{1024*j}")
                self.vm.issue(("aux", j))
        else:
            a(f"s_lshl_b32 s{sT}, s{sCB2}, 11\ns_add_u32 s{sT}, s{sT}, {AUXQ}\nv_lshlrev_b32 v{vT}, 3, v{vLANE}")
            for j in range(4):
                a(f"buffer_load_dwordx2 {vr(AUXA+2*j,2)}, v{vT}, s[{sWS}:{sWS+3}], s{sT} offen offset:{512*j}")
                self.vm.issue(("aux", j))

    def aux_mfma(self, acc, j, double):
        if double:
            self.a(f"v_mfma_f32_32x32x16_bf16 {vr(acc,16)}, {vr(AUXA16+4*j,4)}, {vr(AUXB16,4)}, {vr(acc,16)}")
        else:
            self.a(f"v_mfma_f32_32x32x8_bf16 {vr(acc,16)}, {vr(AUXA+2*j,2)}, {vr(AUXB,2)}, {vr(acc,16)}")

    def aux_hooks(self, hooks, nt, accs, double, s0, extra=()):
        L = self.stats_math(double) + list(extra)
        hooks.setdefault((s0, 0), []).append(lambda: self.drip.extend(L))
        sa = s0 + (len(L) + DRIP*nt - 1) // (DRIP*nt) + 1
        for j in range(nt):
            def mk(j):
                def f():
                    assert not self.drip
                    self.aux_mfma(accs[j], j, double)
                return f
            hooks.setdefault((sa, j), []).append(mk(j))

    def set_tl_128(self):
        a = self.a
        a(f"""s_lshl_b32 s{sTL}, s{sRB2}, 2
s_add_u32 s{sTL}, s{sTL}, s{sWAVE}""")
    def set_tl_64(self):
        a = self.a
        a(f"""s_lshl_b32 s{sTL}, s{sRB}, 1
s_add_u32 s{sTL}, s{sTL}, s{sT2}""")
    def tt_off(self, dst, base_sreg, tile_bytes):
        a = self.a
        a(f"""s_mul_i32 s{dst}, s{sTL}, {tile_bytes}
s_add_u32 s{dst}, s{dst}, s{base_sreg}""")

    def phase_qkv(self, c0):
        a = self.a
        a.c("================ QKV phase")
        for c in range(8): self.left[c0+c] = 20
        self.basechunk = {}
        def frag(s, j):
            c, u = divmod(s, 5)
            return (c0+c, 0, (u*3+j)*1024) if j < 3 else (c0+c, 1, 15360 + u*768)
        self.set_tl_128()
        a(f"""v_mov_b32 v{vP0}, v{vL16}
v_and_b32 v{vT}, 31, v{vLANE}
v_subrev_u32 v{vT+1}, 24, v{vT}
v_min_u32 v{vT}, v{vT}, v{vT+1}
v_lshlrev_b32 v{vT}, 4, v{vT}
v_mul_u32_u24 v{vP1}, 384, v{vH}
v_add_u32 v{vP1}, v{vP1}, v{vT}""")
        ops = self.make_ops(40, 4, QTAIL)
        self.stamp("x1e")
        self.first_w(ops, NB4, frag)
        self.stamp("x1f")
        self.poll(3, 16)
        self.stamp(8)
        self.tt_off(sT+6, sACTQ, 40960)
        accs = [ACC+16*j for j in range(4)]
        hooks = {}
        self.aux_hooks(hooks, 4, accs, False, 14, [f"v_mul_f32 v{20+2*jj}, v{20+2*jj}, v16" for jj in range(3)])
        if QTAIL:
            def mk(jj):
                def f():
                    self.rate = QRATE
                    b = sQA + 1 + 4*jj
                    for hf in range(2):
                        r = ACC + 16*jj + 8*hf
                        for k in range(4):
                            self.drip.append(f"v_mul_f32 v{r+2*k}, v{r+2*k}, v{20+2*jj}")
                            self.drip.append(f"v_mul_f32 v{r+2*k+1}, v{r+2*k+1}, v{20+2*jj}")
                            self.drip.append(f"v_cvt_pk_bf16_f32 v{r+k}, v{r+2*k}, v{r+2*k+1}")
                        self.drip.append(f"buffer_store_dwordx4 {vr(r,4)}, v{vSW}, s[{sWS}:{sWS+3}], s{b+hf} offen{QST}")
                return f
            for jj in range(3):
                hooks.setdefault(-(3-jj)*QTAIL + 3, []).append(mk(jj))
        self.gemm(ops, NB4, accs, frag, lambda s: s, sT+6, [False]*4, hooks, pre_stats=self.stats_load(sSTQ), nm='q', pre=[self.qkv_addr])
        self.rate = DRIP
        self.stamp(9)
        n = len(self.drip)
        for d in self.drip: a(d)
        self.drip = []
        if n < 12: a(f"s_nop {11 - n}")
        self.qkv_epilogue(range(0 if QTAIL else 3))
        self.stamp(10)

    def qkv_addr(self):
        a = self.a
        self.tt_off(sQA, sQOUT, 2560)
        for jj in range(3):
            b = sQA + 1 + 4*jj
            a(f"""s_mul_i32 s{sT+7}, s{sCB2}, 6
s_add_u32 s{sT+7}, s{sT+7}, {2*jj}
s_lshr_b32 s{sT+8}, s{sT+7}, 1
s_add_u32 s{sT+8}, s{sT+8}, 32
s_and_b32 s{sT+9}, s{sT+7}, 31
s_cmp_lt_u32 s{sT+7}, 32
s_cselect_b32 s{sT+8}, s{sT+8}, s{sT+9}
s_mov_b32 s{b+1}, 163840
s_cselect_b32 s{b+3}, 256, s{b+1}
s_cselect_b32 s{b+1}, 1024, s{b+1}
s_cselect_b32 s{sT+9}, {f2u(QSCALE):#x}, 1.0
v_mov_b32 v{20+2*jj}, s{sT+9}
s_mul_i32 s{sT+8}, s{sT+8}, 163840
s_add_u32 s{sT+8}, s{sT+8}, s{sQA}
s_cmp_ge_u32 s{sT+7}, 64
s_cselect_b32 s{b}, 1024, 0
s_cselect_b32 s{b+2}, 256, 0
s_add_u32 s{b}, s{b}, s{sT+8}
s_add_u32 s{b+2}, s{b+2}, s{sT+8}
s_add_u32 s{b+1}, s{b+1}, s{b}
v_mul_lo_u32 v{26+jj}, s{b+3}, v{vH}
v_add_u32 v{26+jj}, v{26+jj}, v{vTL}""")

    def qkv_epilogue(self, mains=range(3)):
        a = self.a
        for jj in mains:
            b = sQA + 1 + 4*jj
            for hf in range(2):
                r = ACC + 16*jj + 8*hf
                for k in range(4):
                    a(f"v_pk_mul_f32 {vr(r+2*k,2)}, {vr(r+2*k,2)}, {vr(20+2*jj,2)} op_sel_hi:[1,0]")
                for k in range(4):
                    a(f"v_cvt_pk_bf16_f32 v{r+k}, v{r+2*k}, v{r+2*k+1}")
                a(f"buffer_store_dwordx4 {vr(r,4)}, v{vSW}, s[{sWS}:{sWS+3}], s{b+hf} offen{QST}")
        for jj in range(3):
            b = sQA + 1 + 4*jj
            r = ACC + 48 + 4*jj
            for k in range(2):
                a(f"v_pk_mul_f32 {vr(r+2*k,2)}, {vr(r+2*k,2)}, {vr(20+2*jj,2)} op_sel_hi:[1,0]")
            for k in range(2):
                a(f"v_cvt_pk_bf16_f32 v{r+k}, v{r+2*k}, v{r+2*k+1}")
            a(f"buffer_store_dwordx2 {vr(r,2)}, v{26+jj}, s[{sWS}:{sWS+3}], s{b+2} offen{QST}")

    def unpack(self, dst, src, n):
        a = self.a
        for k in range(n):
            a(f"v_lshlrev_b32 v{dst+2*k}, 16, v{src+k}")
            a(f"v_and_b32 v{dst+2*k+1}, 0xffff0000, v{src+k}")

    def n80_patterns(self):
        a = self.a
        a(f"""s_mul_i32 s{sT}, s{sKH}, {10240+1024}
s_mul_i32 s{sT+1}, s{sKH}, {10240-1024}
s_add_u32 s{sT+1}, s{sT+1}, 1024
s_mul_i32 s{sT+2}, s{sKH}, 10240
s_add_u32 s{sT+2}, s{sT+2}, 2048
v_add_u32 v{vP0}, s{sT}, v{vL16}
v_add_u32 v{vP1}, s{sT+1}, v{vL16}
v_and_b32 v{vT}, 15, v{vLANE}
v_lshlrev_b32 v{vT}, 4, v{vT}
v_lshl_add_u32 v{vT}, v{vH}, 8, v{vT}
v_add_u32 v{vP2}, s{sT+2}, v{vT}""")

    def b2load(self):
        self.a(f"""s_mul_i32 s{sT}, s{sCB}, 160
s_lshl_b32 s{sT+1}, s{sKH}, 6
s_add_u32 s{sT+1}, s{sT+1}, s{sT}
v_lshlrev_b32 v{vT}, 4, v{vH}
buffer_load_dwordx4 v[24:27], v{vT}, s[{sB2}:{sB2+3}], s{sT+1} offen
buffer_load_dwordx4 v[28:31], v{vT}, s[{sB2}:{sB2+3}], s{sT+1} offen offset:32
buffer_load_dwordx4 v[32:35], v{vT}, s[{sB2}:{sB2+3}], s{sT} offen offset:128""")

    def phase_n80(self, which, c0, nchunks):
        a = self.a
        a.c(f"================ {'WO' if which == 0 else 'W2'} phase")
        for c in range(nchunks): self.left[c0+c] = 12
        self.basechunk = {}
        def frag(s, j):
            c, u = divmod(s, 4)
            return (c0+c, j, u*2560)
        self.set_tl_64()
        self.n80_patterns()
        ops = self.make_ops(nchunks*4, 3, N80_TAIL, [1, 2, 0])
        self.first_w(ops, NB3, frag)
        self.poll(0 if which == 0 else 2, 32 if which == 0 else 16)
        self.stamp(2 if which == 0 else 6)
        self.tt_off(sT+6, sOF if which == 0 else sHF, 40960 if which == 0 else 98304)
        a(f"s_lshl_b32 s{sT}, s{sKH}, 12\ns_add_u32 s{sT+6}, s{sT+6}, s{sT}")
        accs = [RA0, RA1, RA2]
        hooks = {}
        def xaddr():
            a(f"""s_lshl_b32 s{sT}, s{sWAVE}, 12
s_add_u32 s{sT}, s{sT}, {MISC}
v_add_u32 v20, s{sT}, v{vL16}
s_lshl_b32 s{sT}, s{sT2}, 11
s_add_u32 s{sT}, s{sT}, {MISC+16384}
v_add_u32 v22, s{sT}, v{vL16}""")
        def xaddr2():
            a(f"""s_xor_b32 s{sT}, s{sWAVE}, 2
s_lshl_b32 s{sT}, s{sT}, 12
s_add_u32 s{sT}, s{sT}, {MISC}
v_add_u32 v21, s{sT}, v{vL16}""")
        pre = [xaddr, xaddr2]
        def oaddr():
            self.tt_off(sQA, sX1F if which == 0 else sACTQ, 40960)
            a(f"""s_mul_i32 s{sT}, s{sCB}, 5120
s_add_u32 s{sQA}, s{sQA}, s{sT}
s_add_u32 s{sQA+1}, s{sQA}, 4096
s_lshl_b32 s{sT}, s{sKH}, 11
s_add_u32 s{sQA}, s{sQA}, s{sT}""")
        def saddr():
            self.tt_off(sQA+2, sST1 if which == 0 else sSTQ, 4096)
            a(f"""s_lshl_b32 s{sQA+3}, s{sCB}, 1
s_add_u32 s{sQA+3}, s{sQA+3}, s{sKH}       ; slot
s_lshr_b32 s{sT}, s{sQA+3}, 2
s_lshl_b32 s{sT}, s{sT}, 10
s_add_u32 s{sQA+2}, s{sQA+2}, s{sT}
s_and_b32 s{sT}, s{sQA+3}, 3
s_lshl_b32 s{sT}, s{sT}, 2
s_add_u32 s{sQA+2}, s{sQA+2}, s{sT}""")
        pre += [oaddr, saddr]
        if which == 0:
            pass
        else:
            def outaddr():
                a(f"""v_and_b32 v23, 31, v{vLANE}
v_mul_u32_u24 v23, 1280, v23
v_lshl_add_u32 v23, v{vH}, 4, v23
s_lshl_b32 s{sQA+5}, s{sG}, 3
s_add_u32 s{sQA+5}, s{sQA+5}, s{sTL}
s_mul_i32 s{sQA+5}, s{sQA+5}, 40960
s_mul_i32 s{sT}, s{sCB}, 160
s_add_u32 s{sQA+5}, s{sQA+5}, s{sT}
s_lshl_b32 s{sT}, s{sKH}, 6
s_add_u32 s{sQA+4}, s{sQA+5}, s{sT}""")
            pre.append(outaddr)
        lk0, lk1 = a.label("kh0"), a.label("kh1")
        def wr1(q):
            def f():
                a(f"ds_write_b128 v20, {vr(RA1+4*q,4)} offset:{1024*q}")
                self.dsq.append((None, ("xw", q)))
            return f
        def wr2():
            a(f"s_nop 1\ns_cmp_eq_u32 s{sKH}, 0\ns_cbranch_scc1 {lk0}")
            for q in range(2):
                a(f"ds_write_b128 v22, {vr(RA2+4*q,4)} offset:{1024*q}")
            a(f"{lk0}:")
        for q in range(4):
            hooks.setdefault(-2*N80_TAIL + 4 + q, []).append(wr1(q))
        hooks.setdefault(-N80_TAIL + 5, []).append(wr2)
        self.gemm(ops, NB3, accs, frag, lambda s: (s//4)*8 + s % 4, sT+6, [True, False, True], hooks, nm='ow'[which], pre=pre)
        self.stamp(3 if which == 0 else 7)
        self.lgkm(0)
        self.stamp(f"x{which}a")
        self.barrier(tag=f"X{which}")
        self.stamp(f"x{which}b")
        for q in range(4):
            a(f"ds_read_b128 {vr(RA1+4*q,4)}, v21 offset:{1024*q}")
        for q in range(2):
            a(f"ds_read_b128 {vr(RA2+8+4*q,4)}, v22 offset:{1024*q}")
        a("v_mov_b32 v16, 0\nv_mov_b32 v17, 0\nv_mov_b32 v18, 0\nv_mov_b32 v19, 0")
        lfin = a.label("fin")
        def block(r, src, pk, nwait):
            a(f"s_waitcnt lgkmcnt({nwait})")
            for k in range(4):
                a(f"v_pk_add_f32 {vr(r+2*k,2)}, {vr(r+2*k,2)}, {vr(src+2*k,2)}")
            for k in range(4):
                a(f"v_cvt_pk_bf16_f32 v{pk+k}, v{r+2*k}, v{r+2*k+1}")
        def stats(r):
            for k in range(4):
                a(f"v_pk_add_f32 v[16:17], v[16:17], {vr(r+2*k,2)}")
                a(f"v_pk_fma_f32 v[18:19], {vr(r+2*k,2)}, {vr(r+2*k,2)}, v[18:19]")
        PK = PKR
        block(RA0, RA1, PK, 4)
        if which == 1:
            a(f"s_cmp_lg_u32 s{sLAST}, 0\ns_cbranch_scc1 {lfin}")
        a(f"buffer_store_dwordx4 {vr(PK,4)}, v{vL16}, s[{sWS}:{sWS+3}], s{sQA} offen")
        block(RA0+8, RA1+8, PK+4, 2)
        a(f"buffer_store_dwordx4 {vr(PK+4,4)}, v{vL16}, s[{sWS}:{sWS+3}], s{sQA} offen offset:1024")
        a(f"s_cmp_lg_u32 s{sKH}, 0\ns_cbranch_scc1 {lk1}")
        block(RA2, RA2+8, PK+8, 0)
        a(f"buffer_store_dwordx4 {vr(PK+8,4)}, v{vL16}, s[{sWS}:{sWS+3}], s{sQA+1} offen")
        stats(RA2)
        a(f"{lk1}:")
        stats(RA0); stats(RA0+8)
        a(f"""v_add_f32 v16, v16, v17
v_add_f32 v18, v18, v19
s_nop 1
v_permlane32_swap_b32 v16, v18
s_nop 1
v_add_f32 v16, v16, v18
buffer_store_dword v16, v{vL16}, s[{sWS}:{sWS+3}], s{sQA+2} offen
s_waitcnt lgkmcnt(0)""")
        self.stamp(f"x{which}c")
        self.publish(1 if which == 0 else 3, sQA+3)
        self.stamp(f"x{which}d")
        if which == 0:
            D_ = []
            for k in range(12):
                def mk(k):
                    def f():
                        r = RA0 + 2*k if k < 8 else RA2 + 2*(k-8)
                        self.unpack(r, PK+k, 1)
                        self.unpack(RA1, 24+k, 1)
                        a(f"v_pk_add_f32 {vr(r,2)}, {vr(r,2)}, {vr(RA1,2)}")
                    return f
                D_.append(mk(k))
            def zero():
                lz = a.label("nz")
                a(f"s_cmp_eq_u32 s{sKH}, 0\ns_cbranch_scc1 {lz}")
                for k in range(8): a(f"v_mov_b32 v{RA2+k}, 0")
                a(f"{lz}:")
            D_.append(zero)
            self.deferred = D_
        else:
            self.final_label = lfin
            self.final_block = block
        return

    def final_out(self):
        a = self.a
        PK = PKR
        lk1 = a.label("fkh1")
        a(f"{self.final_label}:")
        a(f"buffer_store_dwordx4 {vr(PK,4)}, v23, s[{sOUT}:{sOUT+3}], s{sQA+4} offen")
        self.final_block(RA0+8, RA1+8, PK+4, 2)
        a(f"buffer_store_dwordx4 {vr(PK+4,4)}, v23, s[{sOUT}:{sOUT+3}], s{sQA+4} offen offset:32")
        a(f"s_cmp_lg_u32 s{sKH}, 0\ns_cbranch_scc1 {lk1}")
        self.final_block(RA2, RA2+8, PK+8, 0)
        a(f"buffer_store_dwordx4 {vr(PK+8,4)}, v23, s[{sOUT}:{sOUT+3}], s{sQA+5} offen offset:128")
        a(f"{lk1}:")
        self.stamp(8)

    def phase_w1(self, c0):
        a = self.a
        a.c("================ W1 phase")
        for c in range(6): self.left[c0+c] = 20
        self.basechunk = {}
        def frag(s, j):
            c, u = divmod(3*s+j, 20)
            return (c0+c, 0, u*1024)
        self.set_tl_128()
        a(f"v_mov_b32 v{vP0}, v{vL16}")
        ops = self.make_ops(40, 3)
        self.stamp("x0e")
        self.first_w(ops, NB3, frag)
        self.stamp("x0f")
        self.poll(1, 16)
        self.stamp(4)
        self.tt_off(sT+6, sX1F, 40960)
        accs = [ACC+16*j for j in range(3)]
        hooks = {}
        k1 = -2.0*math.sqrt(2.0/math.pi)*math.log2(math.e)
        k3 = k1*0.044715
        consts = f"""v_mul_f32 v20, {f2u(k1):#x}, v16
v_mul_f32 v22, v16, v16
v_mul_f32 v22, v22, v16
v_mul_f32 v22, {f2u(k3):#x}, v22
v_mov_b32 v24, v17""".split("\n")
        self.aux_hooks(hooks, 3, accs, True, 14, consts)
        hooks.setdefault((26, 2), []).append(lambda: self.aux_load(False))
        def oaddr():
            self.tt_off(sQA, sHF, 98304)
            a(f"""s_mul_i32 s{sT}, s{sCB2}, 6144
s_add_u32 s{sQA}, s{sQA}, s{sT}
s_add_u32 s{sQA+1}, s{sQA}, 4096""")
        self.gemm(ops, NB3, accs, frag, lambda s: s, sT+6, [False]*3, hooks, pre_stats=self.stats_load(sST1), nm='f', pre=[oaddr] + self.deferred)
        self.stamp(5)
        if "E1" in PLAN: self.barrier(tag="E1")
        a("s_nop 9")
        T = ACT
        for blk in range(6):
            r = ACC + 8*blk
            t = T + 8*(blk % 2)
            for k in range(4):
                a(f"v_pk_mul_f32 {vr(t+2*k,2)}, {vr(r+2*k,2)}, {vr(r+2*k,2)}")
            for k in range(4):
                a(f"v_pk_fma_f32 {vr(t+2*k,2)}, {vr(t+2*k,2)}, v[22:23], v[20:21] op_sel_hi:[1,0,0]")
            for k in range(4):
                a(f"v_pk_mul_f32 {vr(t+2*k,2)}, {vr(t+2*k,2)}, {vr(r+2*k,2)}")
            for k in range(8):
                a(f"v_exp_f32 v{t+k}, v{t+k}")
            for k in range(4):
                a(f"v_pk_fma_f32 {vr(t+2*k,2)}, {vr(t+2*k,2)}, v[24:25], v[24:25] op_sel_hi:[1,0,0]")
            for k in range(8):
                a(f"v_rcp_f32 v{t+k}, v{t+k}")
            for k in range(4):
                a(f"v_pk_mul_f32 {vr(t+2*k,2)}, {vr(t+2*k,2)}, {vr(r+2*k,2)}")
            for k in range(4):
                a(f"v_cvt_pk_bf16_f32 v{r+k}, v{t+2*k}, v{t+2*k+1}")
            if blk >= GDEF:
                for b2 in (range(blk+1) if blk == GDEF else [blk]):
                    a(f"buffer_store_dwordx4 {vr(ACC+8*b2,4)}, v{vL16}, s[{sWS}:{sWS+3}], s{sQA + b2//4} offen offset:{(b2%4)*1024}")
        self.stamp("y1c")
        self.publish(2, sCB2)
        self.stamp("y1d")

    def dma_chunk_static(self, n):
        a = self.a
        if n < 8: base, k = sSRC, n
        elif n < 13: base, k = sWO, n-8
        elif n < 19: base, k = sW1, n-13
        elif n < 31: base, k = sW2, n-19
        else: base, k = sWQ, n-31
        a(f"s_add_u32 m0, s{sLDW}, {(n % NSLOT)*CH}\ns_add_u32 s{sT}, s{base}, {k*CH}")
        self.dma5(sT, " nt" if (n < 8 and KV_NT) else "")
    def dma5(self, so, fl=""):
        a = self.a
        for q in range(4):
            a(f"buffer_load_dwordx4 v{vL16}, s[{sWS}:{sWS+3}], s{so} offen offset:{1024*q} lds{fl}" if False else
              f"buffer_load_dwordx4 v{vL16}, s[{sWS}:{sWS+3}], s{so} offen offset:{1024*q}{fl} lds")
        a(f"s_add_u32 m0, m0, 4096\ns_add_u32 s{sT+1}, s{so}, 4096")
        a(f"buffer_load_dwordx4 v{vL16}, s[{sWS}:{sWS+3}], s{sT+1} offen{fl} lds")

    def loader(self, bars, issued, last, touches=None):
        a = self.a
        issued = list(issued)
        touches = touches or {}
        for bi, b in enumerate(bars):
            if b["need"] is not None:
                assert b["need"] in issued, (b, issued)
                n = 5*(len(issued) - 1 - issued.index(b["need"]))
                a(f"s_waitcnt vmcnt({n})")
            a("s_barrier")
            for f in b["free"]:
                nx = f + NSLOT
                if nx <= last and nx not in issued:
                    self.dma_chunk_static(nx); issued.append(nx)
            if bi in touches:
                w, base, off = touches[bi]
                l = a.label("tch")
                a(f"""s_cmp_lg_u32 s{sWAVE}, {w}
s_cbranch_scc1 {l}
s_add_u32 s{sT}, s{base}, {off}
buffer_load_dword v{vDUM}, v{vWRM}, s[{sWS}:{sWS+3}], s{sT} offen
{l}:""")

    def chunk_src(self, n):
        if n < 13: return sWO, n-8
        if n < 19: return sW1, n-13
        if n < 31: return sW2, n-19
        return sWQ, n-31
    def fifo_reg(self, e):
        return 112 + 20*e if e < 7 else 16 + 20*(e-7)
    def fifo_load(self, n, e):
        a = self.a
        r = self.fifo_reg(e)
        (b0, k0), (b1, k1) = self.chunk_src(FL[0][e]), self.chunk_src(FL[1][e])
        a(f"s_add_u32 s{sT}, s{b0}, {k0*CH}")
        if (b0, k0) != (b1, k1):
            a(f"s_add_u32 s{sT+1}, s{b1}, {k1*CH}\ns_cmp_lg_u32 s{sLAST}, 0\ns_cselect_b32 s{sT}, s{sT+1}, s{sT}")
        a(f"s_add_u32 s{sT+1}, s{sT}, 4096")
        for q in range(4):
            a(f"buffer_load_dwordx4 {vr(r+4*q,4)}, v{vL16}, s[{sWS}:{sWS+3}], s{sT} offen offset:{1024*q}")
        a(f"buffer_load_dwordx4 {vr(r+16,4)}, v{vL16}, s[{sWS}:{sWS+3}], s{sT+1} offen")

    def loader2(self, bars, last, plan, npre):
        a = self.a
        vm = VM()
        a(f"v_add_u32 v{vT}, s{sLDW}, v{vL16}")
        NE = 11
        ent = {F0+e: e for e in range(npre)}
        loadbar = {F0+e: -10 for e in range(npre)}
        free_e = list(range(npre, NE))
        nload = F0 + npre; nwrite = F0
        slotfree = set(); inlds = set(range(F0))
        wq = []
        log = []
        def wdone(c):
            nonlocal wq, free_e
            if c in wq:
                i = wq.index(c)
                n = 5*(len(wq) - 1 - i)
                a(f"s_waitcnt lgkmcnt({min(n, 15) if n <= 15 else 15})" if n <= 15 else "s_waitcnt lgkmcnt(15)")
                if n > 15:
                    i = len(wq) - 4
                for x in wq[:i+1]: free_e.append(ent[x])
                wq = wq[i+1:]
        for bi, b in enumerate(bars):
            if b["need"] is not None:
                nd = min(b["need"], last)
                assert all(c in inlds for c in range(nd+1)), (b, sorted(inlds), log)
                wdone(nd)
            a("s_barrier")
            acts = []
            for f in b["free"]: slotfree.add(f + NSLOT)
            k = plan.get(b["tag"], 0)
            def loads(k):
                nonlocal nload
                while k > 0 and nload <= last:
                    if not free_e:
                        if not wq: break
                        wdone(wq[0])
                    e = free_e.pop(0)
                    self.fifo_load(nload, e)
                    for q in range(5): vm.issue(("c", nload))
                    ent[nload] = e; loadbar[nload] = bi
                    acts.append(f"L{nload}"); nload += 1; k -= 1
                return k
            k0 = min(k, len(free_e))
            k -= k0; loads(k0)
            nw = 0
            while nwrite <= last and nwrite in slotfree and nwrite in ent and bi - loadbar[nwrite] >= WR_LAG and nw < plan.get("w" + b["tag"], 2):
                n = vm.need(("c", nwrite))
                if n is not None: a(f"s_waitcnt vmcnt({n})")
                r = self.fifo_reg(ent[nwrite])
                a(f"v_add_u32 v{vT+1}, {(nwrite % NSLOT)*CH}, v{vT}")
                for q in range(5):
                    a(f"ds_write_b128 v{vT+1}, {vr(r+4*q,4)} offset:{1024*q}")
                wq.append(nwrite); inlds.add(nwrite)
                acts.append(f"w{nwrite}"); nwrite += 1; nw += 1
            loads(k)
            log.append(f"{b['tag']}:{','.join(acts)}")
        assert nwrite == last + 1, (nwrite, last, log)
        if os.environ.get("VERBOSE"): print(" ".join(log))

    def loader3(self, bars, last, plan, f0):
        a = self.a
        vm = VM()
        a(f"v_add_u32 v{vT}, s{sLDW}, v{vL16}")
        ent = {c: e for e, c in enumerate(f0)}
        xl = {}
        for tag, cs in XFIFO.items():
            for c, e in cs:
                if c not in f0: ent[c] = e
        loaded = set(f0)
        slotfree = set(); prog = {c: 5 for c in range(15 if PRE13 else 13)}; wq = []; log = []
        for bi, b in enumerate(bars):
            if b["need"] is not None:
                nd = min(b["need"], last)
                assert all(prog.get(c, 0) == 5 for c in range(nd+1)), (b, prog, log)
                for c in range(nd, 12, -1):
                    n = vm.need(("c", c))
                    if n is not None: a(f"s_waitcnt vmcnt({n})")
                if any(c <= nd for c in wq):
                    i = max(i for i, c in enumerate(wq) if c <= nd)
                    a(f"s_waitcnt lgkmcnt({min(15, len(wq)-1-i)})")
                    wq = wq[i+1:]
            a("s_barrier")
            acts = []
            for f in b["free"]: slotfree.add(f + NSLOT)
            k = plan.get(b["tag"], plan["def"]); nw = plan.get("w" + b["tag"], plan["wdef"])
            thr = plan.get("t" + b["tag"], plan.get("tdef"))
            items = []
            for c in sorted(slotfree):
                if c > last or c in ent: continue
                while k > 0 and prog.get(c, 0) < 5:
                    q = prog.get(c, 0); items.append(("D", c, q)); prog[c] = q + 1; k -= 1
            witems = []
            for c in sorted(slotfree):
                if c > last or c not in loaded: continue
                while nw > 0 and prog.get(c, 0) < 5:
                    q = prog.get(c, 0); witems.append(("w", c, q)); prog[c] = q + 1; nw -= 1
            cur = None; curw = None
            def emit(it):
                nonlocal cur, curw
                kind, c, q = it
                if kind == "D":
                    base, kk = self.chunk_src(c)
                    if cur != (c, q // 4):
                        cur = (c, q // 4)
                        a(f"s_add_u32 m0, s{sLDW}, {(c % NSLOT)*CH + (q//4)*4096}\ns_add_u32 s{sT}, s{base}, {kk*CH + (q//4)*4096}")
                    if thr is not None and len(vm.q) > thr:
                        a(f"s_waitcnt vmcnt({thr})"); vm.q = vm.q[len(vm.q)-thr:] if thr else []
                    a(f"buffer_load_dwordx4 v{vL16}, s[{sWS}:{sWS+3}], s{sT} offen offset:{1024*(q%4)} lds")
                    vm.issue(("c", c))
                else:
                    if curw != c:
                        curw = c
                        n = vm.need(("x", c))
                        if n is not None: a(f"s_waitcnt vmcnt({n})")
                        a(f"v_add_u32 v{vT+1}, {(c % NSLOT)*CH}, v{vT}")
                    a(f"ds_write_b128 v{vT+1}, {vr(self.fifo_reg(ent[c])+4*q,4)} offset:{1024*q}")
                    wq.append(c)
                acts.append(f"{kind}{c}")
            for it in ([] if 'noD' in XP else items) + ([] if 'noW' in XP else witems): emit(it)
            for c, e in XFIFO.get(b["tag"], []):
                if c > last or c in f0: continue
                prev = [x for x in ent if ent[x] == e and x < c]
                assert all(prog.get(x, 0) == 5 for x in prev), (c, e)
                if any(x in wq for x in prev): a("s_waitcnt lgkmcnt(0)"); wq.clear()
                if 'noD' in XP: loaded.add(c); continue
                base, kk = self.chunk_src(c); r = self.fifo_reg(ent[c])
                a(f"s_add_u32 s{sT}, s{base}, {kk*CH}\ns_add_u32 s{sT+1}, s{base}, {kk*CH+4096}")
                for q in range(5):
                    a(f"buffer_load_dwordx4 {vr(r+4*q,4)}, v{vL16}, s[{sWS}:{sWS+3}], s{sT + q//4} offen offset:{1024*(q%4)}")
                    vm.issue(("x", c))
                loaded.add(c); acts.append(f"L{c}")
            import itertools
            log.append(f"{b['tag']}:" + ",".join(f"{k_}x{len(list(g_))}" for k_, g_ in itertools.groupby(acts)))
        assert all(prog.get(c, 0) == 5 for c in range(last+1)), log
        if os.environ.get("VERBOSE"): print(" ".join(log))

    def att_tile(self, t):
        a = self.a
        u = t % 8; cc = t // 8
        X, Y = SS[u % 2], SS[(u+1) % 2]
        e = lambda k: a(f"v_exp_f32 v{X+k}, v{X+k}")
        c = lambda k: a(f"v_cvt_pk_bf16_f32 v{P+k}, v{X+2*k}, v{X+2*k+1}")
        kt, vt = (u+2) % 8, (u+1) % 8
        vb = V1[(u+1) % 2]
        last = t == 63
        self.stamp(f"t{t}")
        upd = lambda q: a(f"v_mad_u32_u24 v{vVA+q}, s{sSLOT}, v{vMV}, v{vBV+q}")
        if u == 7 and not last: upd(2)
        e(0)
        a(f"v_cvt_pk_bf16_f32 v{P+7}, v{Y+14}, v{Y+15}")
        if u == 7 and not last: upd(3)
        e(1); e(2)
        a(f"v_mfma_f32_32x32x16_bf16 {vr(O,16)}, {vr(vb,4)}, {vr(P+4,4)}, {vr(O,16)}")
        if not last:
            a(f"ds_read_b64_tr_b16 {vr(vb,2)}, v{vVA+2} offset:{vt*2560}")
            a(f"ds_read_b64_tr_b16 {vr(vb+2,2)}, v{vVA+3} offset:{vt*2560}")
        if u == 7 and not last: upd(0); upd(1)
        c(0); e(3); e(4); c(1); e(5); e(6)
        a(f"s_waitcnt lgkmcnt({0 if last else 2})")
        if not last:
            a(f"v_mfma_f32_32x32x16_bf16 {vr(Y,16)}, {vr(K1,4)}, {vr(Q1,4)}, 0")
        if u == 6 and cc < 7:
            a(f"""s_mov_b32 s{sSLOT}, {((cc+1) % NSLOT)*CH}
v_add_u32 v{vK1}, s{sSLOT}, v{vBK1}
v_mad_u32_u24 v{vK2}, s{sSLOT}, v{vMK}, v{vBK2}""")
            if cc % 2 == 0 or cc == 1:
                n = self.avm.need(("c", cc+1))
                if t == S_FLAG: n = 0; self.avm.drain()
                if n is not None: a(f"s_waitcnt vmcnt({n})")
                a("s_barrier")
        if t == 2:
            n = self.avm.need(("c", 0))
            if n is not None: a(f"s_waitcnt vmcnt({n})")
            a("s_barrier")
        if t < 62:
            a(f"ds_read_b128 {vr(K1,4)}, v{vK1} offset:{kt*2560}")
        if t in PRIO: a(f"s_setprio {PRIO[t]}")
        self.att_round(2*t)
        c(2); e(7); e(8); c(3); e(9); e(10)
        if not last:
            a(f"v_mfma_f32_32x32x8_bf16 {vr(Y,16)}, {vr(K2,2)}, {vr(Q2,2)}, {vr(Y,16)}")
        if t < 62:
            a(f"ds_read_b64 {vr(K2,2)}, v{vK2} offset:{kt*2560}")
        self.att_side(t)
        self.att_round(2*t+1)
        c(4); e(11); e(12); c(5); e(13); e(14)
        a(f"v_mfma_f32_32x32x16_bf16 {vr(O,16)}, {vr(V0,4)}, {vr(P,4)}, {vr(O,16)}")
        if not last:
            a(f"ds_read_b64_tr_b16 {vr(V0,2)}, v{vVA} offset:{vt*2560}")
            a(f"ds_read_b64_tr_b16 {vr(V0+2,2)}, v{vVA+1} offset:{vt*2560}")
        c(6); e(15)

    def ool(self, cond, body):
        a = self.a
        lo, lb = a.label("ool"), a.label("back")
        a(f"{cond} {lo}\n{lb}:")
        sav = a.L; a.L = self.oolbuf
        a(f"{lo}:"); body(); a(f"s_branch {lb}")
        a.L = sav

    def att_round(self, slot):
        a = self.a
        if 'noside' in XP or slot not in ROUNDS: return
        kind, n, q = ROUNDS[slot]; t = slot // 2
        if kind == "S":
            if q == 0:
                a(f"""s_xor_b32 s{sT+4}, s{sG}, {n}
s_mul_i32 s{sDP}, s{sT+4}, {CH}
s_add_u32 s{sDP}, s{sDP}, s{sSRC}
s_sub_u32 s{sDP}, s{sDP}, s{sLDW}
s_mul_i32 s{sT+6}, s{sWAVE}, 2560
s_min_u32 s{sT+6}, s{sT+6}, {CH - 3072}
s_add_u32 s{sDP}, s{sDP}, s{sT+6}""")
                self.ool(f"s_cmp_eq_u32 s{sRDY}, 0\ns_cbranch_scc1", self.kv_check)
                a(f"s_add_u32 m0, s{sT+6}, {n*CH}\ns_nop 0")
            a(f"buffer_load_dwordx4 v{vL16}, s[{sWS}:{sWS+3}], s{sDP} offen offset:{1024*q} lds")
            self.avm.issue(("c", n))
        elif kind == "T":
            if q == 0: a(f"s_mul_i32 s{sFP}, s{sROLE}, 5120\ns_add_u32 s{sFP}, s{sFP}, s{sAR}")
            r = self.fifo_reg(1)
            if q < 4: a(f"buffer_load_dwordx4 {vr(r,4)}, v{vL16}, s[{sWS}:{sWS+3}], s{sFP} offen offset:{1024*q}")
            else: a(f"buffer_load_dwordx4 {vr(r,4)}, v{vL16B}, s[{sWS}:{sWS+3}], s{sFP} offen")
            self.avm.issue(("t", n))
        elif kind == "D":
            if q == 0:
                if n >= NSLOT: assert slot >= 2*(8*(n + 1 - NSLOT + 1) + 6), (slot, n)
                if n == 5: assert t >= S_FLAG
                if n >= 7: assert t > S_POLL + 2
                if n < 8:
                    a(f"""s_add_u32 s{sT+4}, s{sROLE}, {n}
s_xor_b32 s{sT+4}, s{sT+4}, s{sG}
s_and_b32 s{sT+4}, s{sT+4}, 7
s_mul_i32 s{sDP}, s{sT+4}, {CH}
s_add_u32 s{sDP}, s{sDP}, s{sSRC}""")
                    self.ool(f"s_cmp_eq_u32 s{sRDY}, 0\ns_cbranch_scc1", self.kv_check)
                    if n == 7: a(f"s_cmp_lg_u32 s{sROLE}, 0\ns_cselect_b32 s{sDP}, s{sWO}, s{sDP}")
                else:
                    a(f"s_mul_i32 s{sDP}, s{sROLE}, {CH}\ns_add_u32 s{sDP}, s{sDP}, s{sWO}\ns_add_u32 s{sDP}, s{sDP}, {(n-8)*CH}")
                a(f"s_add_u32 m0, s{sLDR}, {(n % NSLOT)*CH}\ns_nop 0")
            if q < 4:
                a(f"buffer_load_dwordx4 v{vL16}, s[{sWS}:{sWS+3}], s{sDP} offen offset:{1024*q} lds")
            else:
                a(f"s_add_u32 m0, m0, 4096\ns_nop 0\nbuffer_load_dwordx4 v{vL16B}, s[{sWS}:{sWS+3}], s{sDP} offen lds")
            self.avm.issue(("c", n))
        else:
            assert t > S_POLL + 2
            if q == 0:
                (b0, k0), (b1, k1) = self.chunk_src(FL[0][n]), self.chunk_src(FL[1][n])
                a(f"s_add_u32 s{sFP}, s{b0}, {k0*CH}")
                if (b0, k0) != (b1, k1):
                    a(f"s_add_u32 s{sT}, s{b1}, {k1*CH}\ns_cmp_lg_u32 s{sLAST}, 0\ns_cselect_b32 s{sFP}, s{sT}, s{sFP}")
                if n == E_RES: src = f"s{sRES}"
                elif n in (E_C13, E_C14): a(f"s_add_u32 s{sT}, s{sW1}, {(n-E_C13)*CH}"); src = f"s{sT}"
                elif n in (E_T0, E_T1): a(f"s_add_u32 s{sT}, s{sAR}, {(n-E_T0)*5120}"); src = f"s{sT}"
                else: src = f"{OOB:#x}"
                a(f"s_cmp_eq_u32 s{sROLE}, 0\ns_cselect_b32 s{sFP}, {src}, s{sFP}")
            r = self.fifo_reg(n) + 4*q
            fl = " sc1" if n == E_RES else ""
            if q < 4: a(f"buffer_load_dwordx4 {vr(r,4)}, v{vL16}, s[{sWS}:{sWS+3}], s{sFP} offen offset:{1024*q}{fl}")
            else: a(f"buffer_load_dwordx4 {vr(r,4)}, v{vL16B}, s[{sWS}:{sWS+3}], s{sFP} offen{fl}")
            self.avm.issue(("f", n))

    def att_side(self, t):
        a = self.a
        if 'noside' in XP: return
        if t == XC_AT:
            a(f"""s_lshl_b32 s{sT}, s{sG}, 7
s_add_u32 s{sT}, s{sT}, {XCC}
buffer_load_dword v{vXC+1}, v{vXC+1}, s[{sWS}:{sWS+3}], s{sT} offen sc1""")
            self.avm.issue("xc")
        if any(k in "SD" and 1 < n < 8 and q == 0 and sl // 2 == t + 2 for sl, (k, n, q) in ROUNDS.items()):
            assert not (S_POLL - 2 <= t <= S_POLL + 2)
            self.ool(f"s_cmp_eq_u32 s{sRDY}, 0\ns_cbranch_scc1", self.kv_flags_load)
        self.strip_side(t)
        if t == RESX_AT:
            def resx():
                self.set_tl_64()
                srd(a, sSS, sXP, S*D*2)
                a(f"""s_lshl3_add_u32 s{sT}, s{sG}, s{sTL}
s_mul_i32 s{sT}, s{sT}, 40960
s_mul_i32 s{sT+1}, s{sCB}, 160
s_add_u32 s{sT}, s{sT}, s{sT+1}
s_lshl_b32 s{sT+1}, s{sKH}, 6
s_add_u32 s{sT+1}, s{sT+1}, s{sT}
v_and_b32 v{vDUM}, 31, v{vLANE}
v_mul_u32_u24 v{vDUM}, 1280, v{vDUM}
v_lshl_add_u32 v{vDUM}, v{vH}, 4, v{vDUM}
buffer_load_dwordx4 {vr(RX,4)}, v{vDUM}, s[{sSS}:{sSS+3}], s{sT+1} offen
buffer_load_dwordx4 {vr(RX+4,4)}, v{vDUM}, s[{sSS}:{sSS+3}], s{sT+1} offen offset:32
buffer_load_dwordx4 {vr(RX+8,4)}, v{vDUM}, s[{sSS}:{sSS+3}], s{sT} offen offset:128
s_mov_b32 s{sTL}, s{sWAVE}""")
            assert all(sl < 2*t for sl, (k, n, q) in ROUNDS.items() if k == "F" and n == 0)
            self.ool(f"s_or_b32 s{sT}, s{sROLE}, s{sLAST}\ns_cbranch_scc0", resx)

    def pub_addr(self, stt, layer):
        self.a(f"""s_lshr_b32 s{sPUB}, s{stt}, 2
s_lshl_b32 s{sPUB}, s{sPUB}, 7
s_and_b32 s{sT}, s{stt}, 3
s_lshl2_add_u32 s{sPUB}, s{sT}, s{sPUB}
s_lshl_b32 s{sT}, s{sCB2}, 11
s_add_u32 s{sPUB}, s{sPUB}, s{sT}
s_add_u32 s{sPUB}, s{sPUB}, {QF + 32768*layer}""")

    def kv_flags_load(self):
        self.a(f"""buffer_load_dword v{vPL}, v{vXC}, s[{sWS}:{sWS+3}], s{sQFK} offen sc1
buffer_load_dword v{vPL+1}, v{vXC}, s[{sWS}:{sWS+3}], s{sQFV} offen sc1""")
    def kv_check(self):
        a = self.a
        l, lp = a.label("kc"), a.label("kp")
        a(f"""s_lshl_b32 s{sT+4}, s{sT+4}, 3
s_mov_b32 s{sT+5}, 0x100000
{lp}:
s_waitcnt vmcnt(0)
v_and_b32 v{vPL}, v{vPL}, v{vPL+1}
v_cmp_ne_u32 s[{sT+2}:{sT+3}], 0, v{vPL}
s_cmp_eq_u64 s[{sT+2}:{sT+3}], -1
s_cselect_b32 s{sRDY}, 1, 0
s_lshr_b64 s[{sT+2}:{sT+3}], s[{sT+2}:{sT+3}], s{sT+4}
s_and_b32 s{sT+2}, s{sT+2}, 0xff
s_cmp_eq_u32 s{sT+2}, 0xff
s_cbranch_scc1 {l}
s_sub_u32 s{sT+5}, s{sT+5}, 1
s_cbranch_scc1 {l}""")
        self.kv_flags_load()
        a(f"s_branch {lp}\n{l}:")

    def strip_side(self, t):
        a = self.a
        def only(ty, f):
            self.ool(f"s_cmp_ge_u32 s{sTy}, {ty}\ns_cbranch_scc1", f)
        def two(f4, f10):
            def body():
                l = a.label("st")
                f4()
                a(f"s_cmp_eq_u32 s{sTy}, 1\ns_cbranch_scc1 {l}")
                f10()
                a(f"{l}:")
            only(1, body)
        def loads(js):
            for j in js:
                a(f"""s_add_u32 s{sT+1}, s{sSo}, s{sBp}
buffer_load_dwordx2 {vr(SR+4*j,2)}, v{vSO}, s[{sSS}:{sSS+3}], s{sSo} offen
buffer_load_dwordx2 {vr(SR+4*j+2,2)}, v{vSO}, s[{sSS}:{sSS+3}], s{sT+1} offen
s_add_u32 s{sSo}, s{sSo}, s{sA}""")
        wr = lambda ks: [a(f"ds_write_b64 v{vSC}, {vr(SR+2*k,2)} offset:{512*k}") for k in ks]
        rd = lambda ks: [a(f"ds_read_b64_tr_b16 {vr(SR+2*k,2)}, v{vSC} offset:{512*k}") for k in ks]
        def st(js):
            for j in js:
                a(f"buffer_store_dwordx4 {vr(SR+4*j,4)}, v{vSD}, s[{sWS}:{sWS+3}], s{sDs} offen sc0 sc1\ns_add_u32 s{sDs}, s{sDs}, s{sSt}")
        def aux():
            a(f"""s_cmp_ge_u32 s{sQd}, 2
s_cselect_b32 s{sT}, -1, 0
v_and_b32 v{CSA+1}, 0xffff0000, v{CSA}
v_sub_f32 v{CSA+3}, v{CSA}, v{CSA+1}
v_lshrrev_b32 v{CSA+2}, 16, v{CSA+1}
v_or_b32 v{CSA+2}, v{CSA+2}, v{CSA+1}
v_lshrrev_b32 v{CSA+3}, 16, v{CSA+3}
v_and_b32 v{vBI}, s{sT}, v{vBI}
v_lshl_or_b32 v{CSA+3}, v{vBI}, 16, v{CSA+3}
v_lshlrev_b32 v{CSA}, 30, v{vH}
v_add_u32 v{CSA}, v{CSA}, v{vL16}
buffer_store_dwordx2 {vr(CSA+2,2)}, v{CSA}, s[{sWS}:{sWS+3}], s{sAx} offen sc0 sc1""")
        mf = lambda js: [a(f"v_mfma_f32_32x32x16_bf16 {vr(CSA,16)}, {vr(ONE,4)}, {vr(SR+4*j,4)}, {'0' if j == 0 else vr(CSA,16)}") for j in js]
        k = t - S_LD
        if k in (0, 1): only(1, lambda: loads([2*k, 2*k+1]))
        if k in (2, 3, 4): only(2, lambda: loads([2*k, 2*k+1]))
        k = t - S_WR
        if k == 0: only(1, lambda: (a("s_waitcnt vmcnt(0)"), wr(range(8))))
        if k == 1: two(lambda: rd(range(8)), lambda: wr(range(8, 14)))
        if k == 2: two(lambda: st(range(4)), lambda: (wr(range(14, 20)), rd(range(8, 14))))
        if k == 3: only(2, lambda: (rd(range(14, 20)), st(range(4, 7)), mf(range(0, 3))))
        if k == 4: only(2, lambda: (st(range(7, 10)), mf(range(3, 6))))
        if k == 5: only(2, lambda: mf(range(6, 10)))
        if k == 6: only(2, aux)
        if t == S_FLAG:
            self.ool(f"s_or_b32 s{sT}, s{sWAVE}, s{sLAST}\ns_cbranch_scc0", lambda: a(f"""s_lshl_b32 s{sT}, s2, 2
s_add_u32 s{sT}, s{sT}, {WFL}
s_mov_b64 exec, 1
buffer_store_dword v{vMK}, v{vL16}, s[{sWS}:{sWS+3}], s{sT} offen sc0 sc1
s_mov_b64 exec, -1"""))
        assert WFL == 0
        chk = f"""v_and_b32 v{vPL}, v{vPL}, v{vPL+1}
v_and_b32 v{vPL+2}, v{vPL+2}, v{vPL+3}
v_and_b32 v{vPL}, v{vPL}, v{vPL+2}
v_cmp_eq_u32 vcc, 0, v{vPL}"""
        ld = f"buffer_load_dwordx4 {vr(vPL,4)}, v{vL16}, s[{sWS}:{sWS+3}], 0 offen sc1"
        if t == S_POLL:
            a(ld); self.avm.issue("pl")
        if t == S_POLL + 2:
            n = self.avm.need("pl")
            def retry():
                l, lp = a.label("pd"), a.label("pp")
                a(f"""s_mov_b32 s{sT+1}, 0x100000
{lp}:
{ld}
s_sub_u32 s{sT+1}, s{sT+1}, 1
s_cbranch_scc1 {l}
s_waitcnt vmcnt(0)
{chk}
s_cbranch_vccnz {lp}
{l}:""")
            self.ool(f"s_waitcnt vmcnt({n})\n{chk}\ns_cbranch_vccnz", retry)

    def strip_setup(self):
        a = self.a
        b4, r, sw, i, t0, t1 = 192, 193, 194, 195, 196, 197
        U = [90, 91, 93, 94]
        a(f"""s_load_dwordx2 s[52:53], s[0:1], 16
s_load_dwordx2 s[54:55], s[0:1], 48
s_load_dwordx4 s[56:59], s[0:1], 32
s_mov_b32 s{sTy}, 0
v_bfe_u32 v{b4}, v{vLANE}, 4, 1
v_bfe_u32 v{r}, v{vLANE}, 2, 2
v_and_b32 v{sw}, 1, v{vLANE}
v_lshlrev_b32 v{sw}, 1, v{sw}
v_bfe_u32 v{i}, v{vLANE}, 1, 1
v_or_b32 v{sw}, v{sw}, v{i}
v_and_b32 v{i}, 31, v{vLANE}
s_lshl_b32 s{sT}, s{sWAVE}, 12
s_add_u32 s{sT}, s{sT}, {5*CH + 10240 - 4096}
s_cmp_eq_u32 s{sWAVE}, 0
s_cselect_b32 s{sT}, {5*CH}, s{sT}
v_lshlrev_b32 v{vSC}, 3, v{vLANE}
v_add_u32 v{vSC}, s{sT}, v{vSC}
v_mov_b32 v{ONE}, 0x3f803f80
v_mov_b32 v{ONE+1}, 0x3f803f80
v_mov_b32 v{ONE+2}, 0x3f803f80
v_mov_b32 v{ONE+3}, 0x3f803f80
s_waitcnt lgkmcnt(0)
s_mov_b32 s{sSS}, s56
s_and_b32 s{sSS+1}, s57, 0xffff
s_mov_b32 s{sSS+2}, 0
s_mov_b32 s{sSS+3}, 0x20000
s_mov_b32 s{sBS}, s58
s_and_b32 s{sBS+1}, s59, 0xffff
s_mov_b32 s{sBS+2}, {F*2}
s_mov_b32 s{sBS+3}, 0x20000
s_cmp_lg_u32 s{sWAVE}, 0
s_cbranch_scc1 L_st_n80a
s_cmp_ge_u32 s2, 240
s_cbranch_scc1 L_st_done
s_cmp_ge_u32 s2, 192
s_cbranch_scc1 L_st_n80b
s_mov_b32 s{sTy}, 2
s_mov_b32 s{sSS}, s56
s_and_b32 s{sSS+1}, s57, 0xffff
s_mov_b32 s{sSS+2}, {D*F*2}
s_bfe_u32 s{U[0]}, s2, 0x10002
s_mul_i32 s{U[0]}, s{U[0]}, 24
s_add_u32 s{U[0]}, s{U[0]}, s{sJ}              ; strip
s_and_b32 s{sQd}, s2, 3
s_mul_i32 s{U[1]}, s{U[0]}, 0x5556
s_lshr_b32 s{U[1]}, s{U[1]}, 16            ; cb
s_mul_i32 s{U[2]}, s{U[1]}, 3
s_sub_u32 s{U[2]}, s{U[0]}, s{U[2]}           ; tile
s_lshl_b32 s{U[0]}, s{U[0]}, 5                 ; col0
v_lshlrev_b32 v{t0}, 4, v{b4}
v_lshl_add_u32 v{t0}, v{sw}, 2, v{t0}
v_add_u32 v{t0}, s{U[0]}, v{t0}
v_lshl_add_u32 v{t1}, v{vH}, 3, v{r}
v_mul_u32_u24 v{vSO}, 3072, v{t1}
v_lshl_add_u32 v{vSO}, v{t0}, 1, v{vSO}
s_mov_b32 s{sA}, {16*3072}
s_mov_b32 s{sBp}, {4*3072}
s_mul_i32 s{sSo}, s{sQd}, {160*3072}
v_and_b32 v{t0}, 19, v{i}
v_bfe_u32 v{t1}, v{i}, 2, 1
v_lshl_or_b32 v{t0}, v{t1}, 3, v{t0}
v_bfe_u32 v{t1}, v{i}, 3, 1
v_lshl_or_b32 v{t0}, v{t1}, 2, v{t0}
v_add_u32 v{t0}, s{U[0]}, v{t0}
v_lshlrev_b32 v{vBI}, 1, v{t0}
buffer_load_ushort v{vBI}, v{vBI}, s[{sBS}:{sBS+3}], 0 offen
v_mov_b32 v{vSD}, v{vL16}
s_mul_i32 s{sDs}, s{U[1]}, 122880
s_mul_i32 s{sT}, s{sQd}, 30720
s_add_u32 s{sDs}, s{sDs}, s{sT}
s_lshl_b32 s{sT}, s{U[2]}, 10
s_add_u32 s{sDs}, s{sDs}, s{sT}
s_add_u32 s{sDs}, s{sDs}, {W1_F}
s_mov_b32 s{sSt}, 3072
s_lshl_b32 s{sAx}, s{U[1]}, 12
s_add_u32 s{sAx}, s{sAx}, s{sT}
s_lshr_b32 s{sT}, s{sQd}, 1
s_lshl_b32 s{sT}, s{sT}, 9
s_add_u32 s{sAx}, s{sAx}, s{sT}
s_and_b32 s{sT}, s{sQd}, 1
s_lshl_b32 s{sT}, s{sT}, 3
s_add_u32 s{sAx}, s{sAx}, s{sT}
s_add_u32 s{sAx}, s{sAx}, {AUX1}
s_branch L_st_done
L_st_n80b:
s_sub_u32 s{sT}, s2, 192
s_mul_i32 s{U[0]}, s{sT}, 0x5556
s_lshr_b32 s{U[0]}, s{U[0]}, 16
s_mul_i32 s{U[1]}, s{U[0]}, 3
s_sub_u32 s{U[1]}, s{sT}, s{U[1]}          ; tile
s_and_b32 s{U[2]}, s{U[0]}, 7                ; cb
s_lshr_b32 s{U[3]}, s{U[0]}, 3
s_add_u32 s{U[3]}, s{U[3]}, 32
s_branch L_st_n80
L_st_n80a:
s_and_b32 s{U[2]}, s{sJ}, 7
s_and_b32 s{U[3]}, s{sJ}, 24
s_add_u32 s{U[3]}, s{U[3]}, s{sG}
s_sub_u32 s{U[1]}, s{sWAVE}, 1
L_st_n80:
s_mov_b32 s{sTy}, 1
s_mov_b32 s{sBp}, {4*1280}
s_mov_b32 s{sQd}, 8
s_cmp_lt_u32 s{U[3]}, 10
s_cbranch_scc1 L_st_wo
s_sub_u32 s{U[3]}, s{U[3]}, 10
s_mov_b32 s{sSS}, s54
s_and_b32 s{sSS+1}, s55, 0xffff
s_mov_b32 s{sSS+2}, {F*D*2}
s_mov_b32 s{sA}, {16*1280}
s_mul_i32 s{sSo}, s{U[3]}, {64*1280}
s_mul_i32 s{sDs}, s{U[2]}, 245760
s_add_u32 s{sDs}, s{sDs}, {W2_F}
s_branch L_st_go
L_st_wo:
s_mov_b32 s{sSS}, s52
s_and_b32 s{sSS+1}, s53, 0xffff
s_mov_b32 s{sSS+2}, {D*D*2}
s_mul_i32 s{sDs}, s{U[2]}, 102400
s_add_u32 s{sDs}, s{sDs}, {WO_F}
s_mov_b32 s{sA}, {20*1280}
s_mul_i32 s{sSo}, s{U[3]}, {80*1280}
s_cmp_lt_u32 s{U[3]}, 8
s_cbranch_scc1 L_st_go
s_mov_b32 s{sA}, {80*1280}
s_mov_b32 s{sBp}, {20*1280}
s_sub_u32 s{sSo}, s{U[3]}, 8
s_mul_i32 s{sSo}, s{sSo}, {320*1280}
s_add_u32 s{sSo}, s{sSo}, {16*1280}
s_mov_b32 s{sQd}, 40
L_st_go:
v_mul_lo_u32 v{vSO}, s{sQd}, v{vH}
v_add_u32 v{vSO}, v{vSO}, v{r}
v_mul_u32_u24 v{vSO}, 1280, v{vSO}
s_mul_i32 s{sT}, s{U[2]}, 80
s_lshl_b32 s{sT+1}, s{U[1]}, 5
s_add_u32 s{sT}, s{sT}, s{sT+1}          ; col0
s_cmp_eq_u32 s{U[1]}, 2
s_cselect_b32 s{sT+1}, 0, 16
v_mul_lo_u32 v{t0}, s{sT+1}, v{b4}
v_lshl_add_u32 v{t0}, v{sw}, 2, v{t0}
v_add_u32 v{t0}, s{sT}, v{t0}
v_lshl_add_u32 v{vSO}, v{t0}, 1, v{vSO}
v_lshlrev_b32 v{t0}, 8, v{vH}
v_lshl_add_u32 v{t0}, v{i}, 4, v{t0}
v_mov_b32 v{t1}, {OOB}
v_cmp_gt_u32 vcc, 16, v{i}
s_mul_i32 s{U[3]}, s{U[3]}, 10240
s_add_u32 s{sDs}, s{sDs}, s{U[3]}
v_cndmask_b32 v{t0}, v{t1}, v{t0}, vcc
s_lshl_b32 s{sT}, s{U[1]}, 10
s_add_u32 s{sDs}, s{sDs}, s{sT}
s_mov_b32 s{sSt}, 2560
s_cmp_eq_u32 s{U[1]}, 2
s_cselect_b64 vcc, -1, 0
s_nop 1
v_cndmask_b32 v{vSD}, v{vL16}, v{t0}, vcc
L_st_done:
""")
        a("s_load_dwordx2 s[52:53], s[0:1], 56\ns_waitcnt lgkmcnt(0)")
        srd(a, sB2, 52, D*2)

    def split3(self, m):
        a = self.a
        a(f"""
v_sub_f32 v{vT}, 0, v{m}
v_and_b32 v{vT+1}, 0xffff0000, v{vT}
v_sub_f32 v{vT}, v{vT}, v{vT+1}
v_and_b32 v{vT+2}, 0xffff0000, v{vT}
v_sub_f32 v{vT}, v{vT}, v{vT+2}
v_lshrrev_b32 v{vT+1}, 16, v{vT+1}
v_cmp_gt_u32 vcc, 32, v{vLANE}
v_or_b32 v{vT+1}, v{vT+1}, v{vT+2}
v_lshrrev_b32 v{vT}, 16, v{vT}
v_cndmask_b32 v{Q2}, v{vT+1}, v{Q2}, vcc
v_cndmask_b32 v{Q2+1}, v{vT}, v{Q2+1}, vcc
""")

    def rowmax16(self, X, dst, init=None):
        a = self.a
        if init is None:
            a(f"v_max3_f32 v{dst}, v{X}, v{X+1}, v{X+2}")
            a(f"v_max_f32 v{dst}, v{dst}, v{X+3}")
            k0 = 4
        else:
            k0 = 0
        for k in range(k0, 16, 2):
            a(f"v_max3_f32 v{dst}, v{dst}, v{X+k}, v{X+k+1}")
    def crosshalf_max(self, m):
        a = self.a
        a(f"""v_mov_b32 v{vT}, v{m}
s_nop 1
v_permlane32_swap_b32 v{m}, v{vT}
s_nop 1
v_max_f32 v{m}, v{m}, v{vT}""")

    def tpos(self, dst, tok, tmp):
        self.a(f"""v_and_b32 v{dst}, 3, v{tok}
v_bfe_u32 v{tmp}, v{tok}, 3, 1
v_lshl_or_b32 v{dst}, v{tmp}, 2, v{dst}
v_bfe_u32 v{tmp}, v{tok}, 2, 1
v_lshl_or_b32 v{dst}, v{tmp}, 3, v{dst}
v_and_b32 v{tmp}, 16, v{tok}
v_or_b32 v{dst}, v{dst}, v{tmp}
v_xor_b32 v{dst}, {8 + 256}, v{dst}
v_lshlrev_b32 v{dst}, 3, v{dst}""")

    def attention(self):
        a = self.a
        a.c("================ attention")
        l1, l2, l3 = a.label("p1"), a.label("p2"), a.label("p3")
        a(f"""
v_and_b32 v{vT}, 19, v{vLANE}
v_bfe_u32 v{vT+1}, v{vLANE}, 2, 1
v_lshl_or_b32 v{vT}, v{vT+1}, 3, v{vT}
v_bfe_u32 v{vT+1}, v{vLANE}, 3, 1
v_lshl_or_b32 v{vT}, v{vT+1}, 2, v{vT}        ; pi
v_lshlrev_b32 v{vT+1}, 3, v{vH}
v_xor_b32 v{vT+1}, v{vT+1}, v{vT}
v_lshlrev_b32 v{vT+1}, 4, v{vT+1}
v_lshl_add_u32 v{vBK1}, v{vH}, 9, v{vT+1}      ; K1 base
""")
        self.tpos(vBK2, vT, vT+1)
        a(f"""v_lshlrev_b32 v{vT}, 30, v{vH}
v_add_u32 v31, v{vT}, v{vBK2}
v_add_u32 v30, v{vT}, v{vTL}""")
        a(f"""
s_mov_b32 s{sTL}, s{sWAVE}
s_mul_i32 s{sT}, s{sWAVE}, 2560
s_add_u32 s{sT}, s{sT}, {MISC}
v_lshlrev_b32 v{vT}, 3, v{vLANE}
v_add_u32 v{vT}, s{sT}, v{vT}
v_and_b32 v{vT+1}, 7, v{vLANE}
v_cmp_eq_u32 vcc, 2, v{vT+1}
v_mov_b32 v22, 0x3f803f80
v_mov_b32 v23, 0x3f80
v_cndmask_b32 v{vT+3}, 0, v22, vcc
v_cmp_eq_u32 vcc, 0, v{vT+1}
v_lshrrev_b32 v{vXC}, 2, v{vLANE}
v_lshlrev_b32 v{vXC}, 5, v{vXC}
v_and_or_b32 v{vXC}, v{vLANE}, 3, v{vXC}
v_lshlrev_b32 v{vXC}, 2, v{vXC}
v_cndmask_b32 v{vT+2}, v{vT+3}, v23, vcc
ds_write_b64 v{vT}, {vr(vT+2,2)}
v_mov_b32 v{vT+1}, {MISC + 16}
v_cmp_gt_u32 vcc, 32, v{vLANE}
v_sub_u32 v{vMK}, 1, v{vH}
s_nop 0
v_cndmask_b32 v{vBK2}, v{vT+1}, v{vBK2}, vcc     ; K2 base
""")
        def rest():
            a(f"""
v_bfe_u32 v{vT}, v{vLANE}, 2, 2               ; r
v_and_b32 v{vT+1}, 1, v{vLANE}                 ; c&1
v_xor_b32 v{vT+2}, v{vT+1}, v{vH}
v_lshl_add_u32 v{vT+2}, v{vT+2}, 3, v{vT}
v_lshlrev_b32 v{vT+2}, 4, v{vT+2}
v_lshl_add_u32 v{vT+2}, v{vT+1}, 9, v{vT+2}
v_bfe_u32 v{vT+1}, v{vLANE}, 1, 1
v_lshl_add_u32 v{vT+2}, v{vT+1}, 3, v{vT+2}    ; main (m=0,p=0) - 1024
v_lshlrev_b32 v{vT}, 3, v{vT}
v_lshl_add_u32 v{vT}, v{vH}, 5, v{vT}
v_xor_b32 v{vT+1}, 1, v{vT+1}
v_lshlrev_b32 v{vT+1}, 3, v{vT+1}
v_and_b32 v{vT+3}, 16, v{vLANE}
v_cmp_eq_u32 s[{sT}:{sT+1}], 0, v{vT+3}
v_and_b32 v{vT+3}, 19, v{vLANE}
v_cmp_lt_u32 vcc, 16, v{vT+3}
v_mov_b32 v{vT+3}, 1
s_nop 0
v_cndmask_b32 v{vMV}, v{vT+3}, 0, vcc
""")
            for m in range(2):
                for p in range(2):
                    d = vBV + 2*m + p
                    a(f"""v_add_u32 v22, {1024 + 256*m + 64*p}, v{vT+2}
v_add_u32 v23, {2048 + 256 + 128*m + 64*(1-p)}, v{vT}
v_add_u32 v{vT+3}, {MISC + 64*(1-p) + 128*(1-m)}, v{vT+1}
v_cndmask_b32 v{d}, v23, v22, s[{sT}:{sT+1}]
v_cndmask_b32 v{d}, v{d}, v{vT+3}, vcc
v_mov_b32 v{vVA+2*m+p}, v{d}""")
            a(f"v_mov_b32 v{vK1}, v{vBK1}\nv_mov_b32 v{vK2}, v{vBK2}")
            for k in range(16): a(f"v_mov_b32 v{O+k}, 0")
            for k in range(4): a(f"v_mov_b32 v{V1[1]+k}, 0")
            for k in range(4): a(f"v_mov_b32 v{P+4+k}, 0")
            a(f"v_mov_b32 v{SS[1]+14}, 0\nv_mov_b32 v{SS[1]+15}, 0")
            a(f"""
s_and_b32 s{sT+1}, s{sWAVE}, 3
s_lshl2_add_u32 s{sT}, s{sJ}, s{sT+1}          ; q
s_mul_i32 s{sT}, s{sT}, 10240
s_add_u32 s{sAR}, s{sAR}, s{sT}
s_lshl1_add_u32 s{sT}, s{sRB}, s{sT2}
s_mul_i32 s{sT}, s{sT}, 40960
s_mul_i32 s{sT+1}, s{sCB}, 5120
s_add_u32 s{sRES}, s{sRES}, s{sT}
s_add_u32 s{sRES}, s{sRES}, s{sT+1}
v_add_u32 v{vL16B}, 4096, v{vL16}
v_and_b32 v{vXC+1}, 31, v{vLANE}
v_lshlrev_b32 v{vXC+1}, 2, v{vXC+1}
s_lshr_b32 s{sT+6}, s{sJ}, 1
s_add_u32 s{sT+6}, s{sT+6}, 32
s_mul_i32 s{sT+6}, s{sT+6}, 163840
s_lshl3_add_u32 s{sT+7}, s{sG}, s{sWAVE}
s_mul_i32 s{sT+7}, s{sT+7}, 2560
s_add_u32 s{sT+6}, s{sT+6}, s{sT+7}
s_add_u32 s{sT+6}, s{sT+6}, s{sQIN}
s_and_b32 s{sT+7}, s{sJ}, 1
s_lshl_b32 s{sT+8}, s{sT+7}, 10
s_add_u32 s{sT+8}, s{sT+8}, s{sT+6}          ; Q main
s_lshl_b32 s{sT+7}, s{sT+7}, 8
s_add_u32 s{sT+7}, s{sT+7}, s{sT+6}          ; Q tail
s_mul_i32 s{sT+9}, s{sJ}, 163840
s_add_u32 s{sT+9}, s{sT+9}, s{sQIN}
s_mul_i32 s{sT+6}, s{sG}, {CH}
s_add_u32 s{sT+9}, s{sT+9}, s{sT+6}          ; first K/V chunk (own row block)
""")
        a(f"""s_mov_b32 s{sTy}, 0
s_cmp_ge_u32 s{sWAVE}, 4
s_cbranch_scc1 {l1}
v_mov_b32 v{vT}, 0
s_waitcnt vmcnt(0)
s_mov_b64 exec, 1
s_cmp_eq_u32 s{sLAST}, 0
s_cbranch_scc1 {l1}g
s_cmp_lg_u32 s{sSLOW}, 0
s_cbranch_scc1 {l1}s
buffer_store_dword v{vMK}, v{vT}, s[{sWS}:{sWS+3}], s{sRDY} offen
s_branch {l1}g
{l1}s:
buffer_store_dword v{vMK}, v{vT}, s[{sWS}:{sWS+3}], s{sRDY} offen sc0 sc1
{l1}g:
buffer_store_dword v{vMK}, v{vT}, s[{sWS}:{sWS+3}], s{sPUB} offen sc0 sc1
s_mov_b64 exec, -1
s_barrier
""")
        self.stamp("pub")
        a(f"s_cmp_lg_u32 s{sLAST}, 0\ns_cbranch_scc1 L_st_skip")
        self.strip_setup()
        a("L_st_skip:")
        rest()
        lp = a.label("qp")
        a(f"""s_branch {l2}
{l1}:""")
        rest()
        a(f"""s_cmp_lg_u32 s{sWAVE}, 4
s_cbranch_scc1 {l1}o
v_lshrrev_b32 v{vPL+1}, 3, v{vLANE}
v_mov_b32 v{vPL+2}, s{sPUB}
v_mov_b32 v{vPL+3}, s{sQFK}
v_cmp_eq_u32 vcc, 1, v{vPL+1}
v_and_b32 v{vPL}, 7, v{vLANE}
s_nop 0
v_cndmask_b32 v{vPL+2}, v{vPL+2}, v{vPL+3}, vcc
v_mov_b32 v{vPL+3}, s{sQFV}
v_cmp_eq_u32 vcc, 2, v{vPL+1}
s_lshl_b32 s{sT+4}, s{sG}, 8
s_nop 0
v_cndmask_b32 v{vPL+2}, v{vPL+2}, v{vPL+3}, vcc     ; row base
s_cmp_lg_u32 s{sLAST}, 0
s_cbranch_scc1 {l1}l
v_and_b32 v{vPL+1}, 0x8c, v{vXC}
v_add_u32 v{vPL+2}, v{vPL+2}, v{vPL+1}
s_branch {l1}p
{l1}l:
v_bfe_u32 v{vPL+2}, v{vPL+2}, 11, 4
v_lshlrev_b32 v{vPL+2}, 2, v{vPL+2}
v_lshl_add_u32 v{vPL+2}, v{vPL}, 7, v{vPL+2}
s_add_u32 s{sT+4}, s{sFLG}, 3072
{l1}p:
s_mov_b32 s{sT+5}, 0x100000
s_barrier
{lp}:
buffer_load_dword v{vPL}, v{vPL+2}, s[{sWS}:{sWS+3}], s{sT+4} offen sc1
s_sub_u32 s{sT+5}, s{sT+5}, 1
s_cbranch_scc1 {l2}
s_waitcnt vmcnt(0)
v_cmp_eq_u32 vcc, 0, v{vPL}
s_cbranch_vccnz {lp}
s_branch {l2}
{l1}o:
s_barrier
{l2}:
s_load_dwordx2 s[{sXP}:{sXP+1}], s[0:1], 0
s_barrier
""")
        self.stamp("rdy")
        a(f"s_mov_b32 s{sRDY}, 0")
        a(f"""buffer_load_dwordx4 {vr(Q1,4)}, v{vSW}, s[{sWS}:{sWS+3}], s{sT+8} offen sc1
buffer_load_dwordx4 {vr(K1,4)}, v{vBK1}, s[{sWS}:{sWS+3}], s{sT+9} offen
buffer_load_dwordx2 {vr(Q2,2)}, v30, s[{sWS}:{sWS+3}], s{sT+7} offen sc1
buffer_load_dwordx2 {vr(K2,2)}, v31, s[{sWS}:{sWS+3}], s{sT+9} offen
""")
        lw = a.label("w")
        def dma0():
            a(f"s_mov_b32 m0, s{sLDW}\ns_add_u32 s{sT}, s{sT+9}, s{sLDW}")
            self.dma5(sT)
        a(f"""v_cmp_gt_u32 vcc, 32, v{vLANE}
v_mov_b32 v22, 0x3f803f80
s_and_b32 s{sT+6}, s{sWAVE}, 6
s_cmp_lg_u32 s{sT+6}, 4
s_cbranch_scc1 {l3}""")
        dma0()
        a(f"""s_waitcnt vmcnt(5)
s_branch {lw}
{l3}:
s_waitcnt vmcnt(0)
s_cmp_lt_u32 s{sWAVE}, 6
s_cbranch_scc1 {lw}""")
        dma0()
        a(f"""{lw}:
v_cndmask_b32 v{K2}, v22, v{K2}, vcc
v_cndmask_b32 v{K2+1}, v22, v{K2+1}, vcc
v_mfma_f32_32x32x16_bf16 {vr(SS[0],16)}, {vr(K1,4)}, {vr(Q1,4)}, 0
s_nop 0
v_mfma_f32_32x32x8_bf16 {vr(SS[0],16)}, {vr(K2,2)}, {vr(Q2,2)}, {vr(SS[0],16)}
s_nop 12
""")
        self.rowmax16(SS[0], 22)
        self.crosshalf_max(22)
        self.split3(22)
        a(f"""
s_nop 1
v_mfma_f32_32x32x16_bf16 {vr(SS[0],16)}, {vr(K1,4)}, {vr(Q1,4)}, 0
v_mfma_f32_32x32x8_bf16 {vr(SS[0],16)}, {vr(K2,2)}, {vr(Q2,2)}, {vr(SS[0],16)}
""")
        self.stamp("attP")
        self.avm = VM()
        if HALF0:
            a(f"s_and_b32 s{sT}, s{sWAVE}, 6\ns_cmp_lg_u32 s{sT}, 4\ns_cbranch_scc1 {lw}y\ns_waitcnt vmcnt(0)\n{lw}y:")
            for q in range(5): self.avm.issue(("c", 0))
        else:
            a(f"s_cmp_lt_u32 s{sWAVE}, 4\ns_cbranch_scc1 {lw}y\ns_waitcnt vmcnt(0)\n{lw}y:")
        a("s_waitcnt lgkmcnt(0)\ns_barrier")
        self.stamp(0)
        a(f"""
ds_read_b64_tr_b16 {vr(V1[0],2)}, v{vVA+2}
ds_read_b64_tr_b16 {vr(V1[0]+2,2)}, v{vVA+3}
ds_read_b128 {vr(K1,4)}, v{vK1} offset:2560
ds_read_b64 {vr(K2,2)}, v{vK2} offset:2560
ds_read_b64_tr_b16 {vr(V0,2)}, v{vVA}
ds_read_b64_tr_b16 {vr(V0+2,2)}, v{vVA+1}
s_setprio 3
s_nop 3
""")
        self.kv_flags_load(); self.avm.issue("kf"); self.avm.issue("kf")
        self.stamp("attL")
        for t in range(64): self.att_tile(t)
        a("s_nop 0")
        self.stamp("attX")
        a(f"""v_cvt_pk_bf16_f32 v{P+7}, v{SS[1]+14}, v{SS[1]+15}
s_setprio 0
s_nop 0
v_mfma_f32_32x32x16_bf16 {vr(O,16)}, {vr(V1[1],4)}, {vr(P+4,4)}, {vr(O,16)}
""")
        self.tt_off(sT+4, sOF, 40960)
        a(f"""
s_lshl_b32 s{sT+5}, s{sJ}, 10
s_add_u32 s{sT+5}, s{sT+5}, s{sT+4}
s_lshr_b32 s{sT+6}, s{sJ}, 1
s_lshl_b32 s{sT+6}, s{sT+6}, 9               ; (head/4)*1024 + ((head%4)/2)*512
s_add_u32 s{sT+4}, s{sT+4}, s{sT+6}
s_and_b32 s{sT+6}, s{sJ}, 1
s_lshl_b32 s{sT+6}, s{sT+6}, 3
s_add_u32 s{sT+4}, s{sT+4}, s{sT+6}
s_add_u32 s{sT+4}, s{sT+4}, 32768
v_lshlrev_b32 v23, 30, v{vH}
v_add_u32 v23, v23, v{vL16}
s_mov_b32 s{sT+6}, {f2u(2.0**64):#x}
s_nop 5
v_cmp_lt_f32 vcc, v{O+12}, s{sT+6}
s_cmp_eq_u64 vcc, -1
{'s_nop 0' if 'nofb' in XP else 's_cbranch_scc0 L_att_fallback'}
L_att_fin:
v_rcp_f32 v22, v{O+12}
s_nop 0
""")
        for k in range(6):
            a(f"v_pk_mul_f32 {vr(O+2*k,2)}, {vr(O+2*k,2)}, v[22:23] op_sel_hi:[1,0]")
        for k in range(6):
            a(f"v_cvt_pk_bf16_f32 v{O+k}, v{O+2*k}, v{O+2*k+1}")
        lx, lxd = a.label("xpoll"), a.label("xdone")
        a(f"""
buffer_store_dwordx4 {vr(O,4)}, v{vL16}, s[{sWS}:{sWS+3}], s{sT+5} offen
buffer_store_dwordx2 {vr(O+4,2)}, v23, s[{sWS}:{sWS+3}], s{sT+4} offen
s_waitcnt vmcnt(2)
v_readfirstlane_b32 s{sT}, v{vXC+1}
s_nop 1
v_cmp_ne_u32 vcc, s{sT}, v{vXC+1}
s_cmp_lg_u64 vcc, 0
s_cselect_b32 s{sSLOW}, 1, 0
s_waitcnt lgkmcnt(0)
""")
        self.publish(0, sJ)
        self.stamp(1)

    def att_fallback(self):
        a = self.a
        X = SS[0]
        a(f"""
L_att_fallback:
s_waitcnt vmcnt(0) lgkmcnt(0)
s_mul_i32 s{sT+7}, s{sJ}, 163840
s_add_u32 s{sT+7}, s{sT+7}, s{sQIN}
v_cmp_gt_u32 vcc, 32, v{vLANE}
v_mov_b32 v{vT}, 0
s_nop 0
v_cndmask_b32 v{Q2}, v{vT}, v{Q2}, vcc
v_cndmask_b32 v{Q2+1}, v{vT}, v{Q2+1}, vcc
v_lshlrev_b32 v{vK2}, 30, v{vH}
v_add_u32 v{vK2}, v{vK2}, v{vBK2}              ; lower: tail offset in tile, upper: out of range
v_mov_b32 v22, 0xff800000
s_mov_b32 s{sT+8}, s{sT+7}
s_mov_b32 s{sT+9}, 64
L_fb_max:
buffer_load_dwordx4 {vr(K1,4)}, v{vBK1}, s[{sWS}:{sWS+3}], s{sT+8} offen
buffer_load_dwordx2 {vr(K2,2)}, v{vK2}, s[{sWS}:{sWS+3}], s{sT+8} offen
s_waitcnt vmcnt(0)
v_mfma_f32_32x32x16_bf16 {vr(X,16)}, {vr(K1,4)}, {vr(Q1,4)}, 0
v_mfma_f32_32x32x8_bf16 {vr(X,16)}, {vr(K2,2)}, {vr(Q2,2)}, {vr(X,16)}
s_nop 15
""")
        self.rowmax16(X, 22, init=True)
        a(f"""
s_add_u32 s{sT+8}, s{sT+8}, 2560
s_sub_u32 s{sT+9}, s{sT+9}, 1
s_cmp_lg_u32 s{sT+9}, 0
s_cbranch_scc1 L_fb_max
""")
        self.crosshalf_max(22)
        self.split3(22)
        a(f"""
s_mul_i32 s{sT+8}, s{sWAVE}, 2560
s_add_u32 s{sT+8}, s{sT+8}, {MISC + 512 - 1024}
v_mad_u32_u24 v{vVA}, s{sT+8}, v{vMV}, v{vBV}
v_mad_u32_u24 v{vVA+1}, s{sT+8}, v{vMV}, v{vBV+1}
v_mad_u32_u24 v{vVA+2}, s{sT+8}, v{vMV}, v{vBV+2}
v_mad_u32_u24 v{vVA+3}, s{sT+8}, v{vMV}, v{vBV+3}
v_add_u32 v{vK1}, s{sT+8}, v{vL16}
v_lshlrev_b32 v{SS[1]}, 3, v{vLANE}
v_add_u32 v{SS[1]+1}, s{sT+8}, v{SS[1]}
s_mov_b32 s{sT+8}, s{sT+7}
s_mov_b32 s{sT+9}, 64
""")
        for k in range(16): a(f"v_mov_b32 v{O+k}, 0")
        a(f"""
L_fb_pv:
buffer_load_dwordx4 {vr(K1,4)}, v{vBK1}, s[{sWS}:{sWS+3}], s{sT+8} offen
buffer_load_dwordx2 {vr(K2,2)}, v{vK2}, s[{sWS}:{sWS+3}], s{sT+8} offen
buffer_load_dwordx4 {vr(V0,4)}, v{vL16}, s[{sWS}:{sWS+3}], s{sT+8} offen offset:1024
buffer_load_dwordx2 {vr(V1[0],2)}, v{SS[1]}, s[{sWS}:{sWS+3}], s{sT+8} offen offset:2048
v_cmp_gt_u32 vcc, 32, v{vLANE}
v_mov_b32 v{vT}, 0x3f803f80
s_waitcnt vmcnt(0)
v_cndmask_b32 v{K2}, v{vT}, v{K2}, vcc
v_cndmask_b32 v{K2+1}, v{vT}, v{K2+1}, vcc
ds_write_b128 v{vK1}, {vr(V0,4)} offset:1024
ds_write_b64 v{SS[1]+1}, {vr(V1[0],2)} offset:2048
v_mfma_f32_32x32x16_bf16 {vr(X,16)}, {vr(K1,4)}, {vr(Q1,4)}, 0
v_mfma_f32_32x32x8_bf16 {vr(X,16)}, {vr(K2,2)}, {vr(Q2,2)}, {vr(X,16)}
s_waitcnt lgkmcnt(0)
ds_read_b64_tr_b16 {vr(V0,2)}, v{vVA}
ds_read_b64_tr_b16 {vr(V0+2,2)}, v{vVA+1}
ds_read_b64_tr_b16 {vr(V1[0],2)}, v{vVA+2}
ds_read_b64_tr_b16 {vr(V1[0]+2,2)}, v{vVA+3}
s_nop 12
""")
        for k in range(16): a(f"v_exp_f32 v{X+k}, v{X+k}")
        a("s_nop 0")
        for k in range(8): a(f"v_cvt_pk_bf16_f32 v{P+k}, v{X+2*k}, v{X+2*k+1}")
        a(f"""
s_waitcnt lgkmcnt(0)
s_nop 1
v_mfma_f32_32x32x16_bf16 {vr(O,16)}, {vr(V0,4)}, {vr(P,4)}, {vr(O,16)}
v_mfma_f32_32x32x16_bf16 {vr(O,16)}, {vr(V1[0],4)}, {vr(P+4,4)}, {vr(O,16)}
s_add_u32 s{sT+8}, s{sT+8}, 2560
s_sub_u32 s{sT+9}, s{sT+9}, 1
s_cmp_lg_u32 s{sT+9}, 0
s_cbranch_scc1 L_fb_pv
s_nop 15
s_branch L_att_fin
""")

    def prof_store(self, final=True):
        a = self.a
        if not self.prof: return
        a(f"""
s_waitcnt lgkmcnt(0)
{'s_memrealtime' if self.prof == 2 else 's_memtime'} s[{sPROF+22}:{sPROF+23}]
s_lshl_b32 s{sT}, s{sKID}, 8
s_add_u32 s{sT}, s{sT}, s2
s_lshl_b32 s{sT}, s{sT}, 3
s_add_u32 s{sT}, s{sT}, s{sWAVE}
s_lshl_b32 s{sT}, s{sT}, 6
s_add_u32 s{sT}, s{sT}, {PROF}
v_mov_b32 v{vT}, 0
s_waitcnt lgkmcnt(0)
s_mov_b64 exec, 1""")
        for i in range(12):
            a(f"v_mov_b32 v{vT+1}, s{sPROF+2*i}\nbuffer_store_dword v{vT+1}, v{vT}, s[{sWS}:{sWS+3}], s{sT} offen offset:{4*i}")
        a(f"v_mov_b32 v{vT+1}, s99\nbuffer_store_dword v{vT+1}, v{vT}, s[{sWS}:{sWS+3}], s{sT} offen offset:48")
        a(f"v_mov_b32 v{vT+1}, s{sSLOW}\nbuffer_store_dword v{vT+1}, v{vT}, s[{sWS}:{sWS+3}], s{sT} offen offset:52")
        if final: a("s_waitcnt vmcnt(0)")
        a(f"s_memrealtime s[100:101]\ns_waitcnt lgkmcnt(0)")
        a(f"v_mov_b32 v{vT+1}, s3\nbuffer_store_dword v{vT+1}, v{vT}, s[{sWS}:{sWS+3}], s{sT} offen offset:56")
        a(f"v_mov_b32 v{vT+1}, s100\nbuffer_store_dword v{vT+1}, v{vT}, s[{sWS}:{sWS+3}], s{sT} offen offset:60")
        if not final:
            a("s_mov_b64 exec, -1\ns_mov_b32 s3, s100")
            a(f"s_mov_b32 s99, s{sPROF+22}\ns_add_u32 s{sKID}, s{sKID}, 1")
            for i in range(12): a(f"s_mov_b64 s[{sPROF+2*i}:{sPROF+2*i+1}], 0")


def gen_main(a, prof=False):
    g = Gen(a, prof)
    a("L_layer:")
    g.prof_store(False)
    def params(k, qin, qout, res, stq, actq, of, x1f, hf, st1):
        for r, v in ((sQIN, qin), (sQOUT, qout), (sRES, res), (sFLG, A_FL + k*4096), (sSTQ, stq), (sACTQ, actq), (sOF, of), (sX1F, x1f), (sHF, hf), (sST1, st1)):
            a(f"s_mov_b32 s{r}, {v:#x}")
    a(f"s_cmp_lg_u32 s{sLAST}, 0\ns_cbranch_scc1 L_par2")
    params(0, QKV[0], QKV[1], X1F[0], STAT[2], X2F, OF[0], X1F[0], HF[0], STAT[1])
    a(f"s_branch L_par3\nL_par2:\ns_load_dwordx2 s[{sT}:{sT+1}], s[0:1], 64")
    params(1, QKV[1], 0, X2F, 0, 0, OF[1], X1F[1], HF[1], STAT[3])
    a("s_waitcnt lgkmcnt(0)")
    srd(a, sOUT, sT, S*D*2)
    a(f"""L_par3:
s_and_b32 s{sCB}, s{sJ}, 7
s_lshr_b32 s{sRB}, s{sJ}, 3
s_and_b32 s{sCB2}, s{sJ}, 15
s_lshr_b32 s{sRB2}, s{sJ}, 4
s_and_b32 s{sT2}, s{sWAVE}, 1
s_bfe_u32 s{sKH}, s{sWAVE}, 0x10001
s_mul_i32 s{sAR}, s{sG}, {AST}
s_add_u32 s{sAR}, s{sAR}, {ARENA}
s_add_u32 s{sFLG}, s{sFLG}, s{sAR}
s_add_u32 s{sRES}, s{sRES}, s{sAR}
s_add_u32 s{sSTQ}, s{sSTQ}, s{sAR}
s_add_u32 s{sACTQ}, s{sACTQ}, s{sAR}
s_add_u32 s{sOF}, s{sOF}, s{sAR}
s_add_u32 s{sX1F}, s{sX1F}, s{sAR}
s_add_u32 s{sHF}, s{sHF}, s{sAR}
s_add_u32 s{sST1}, s{sST1}, s{sAR}
s_mul_i32 s{sT+6}, s{sG}, {8*2560}
s_add_u32 s{sQOUT}, s{sQOUT}, s{sT+6}
s_and_b32 s{sLDW}, s{sWAVE}, 3
s_mul_i32 s{sLDW}, s{sLDW}, 5120
s_lshr_b32 s{sROLE}, s{sWAVE}, 2
s_mul_i32 s{sLDR}, s{sWAVE}, 5120
s_mul_i32 s{sWO}, s{sCB}, 102400
s_add_u32 s{sWO}, s{sWO}, {WO_F}
s_add_u32 s{sWO}, s{sWO}, s{sLDW}
s_mul_i32 s{sW1}, s{sCB2}, 122880
s_add_u32 s{sW1}, s{sW1}, {W1_F}
s_add_u32 s{sW1}, s{sW1}, s{sLDW}
s_mul_i32 s{sW2}, s{sCB}, 245760
s_add_u32 s{sW2}, s{sW2}, {W2_F}
s_add_u32 s{sW2}, s{sW2}, s{sLDW}
s_mul_i32 s{sWQ}, s{sCB2}, 163840
s_add_u32 s{sWQ}, s{sWQ}, {WQKV_F}
s_add_u32 s{sWQ}, s{sWQ}, s{sLDW}
s_mul_i32 s{sSRC}, s{sJ}, 163840
s_add_u32 s{sSRC}, s{sSRC}, s{sQIN}
s_add_u32 s{sSRC}, s{sSRC}, s{sLDW}
s_lshl_b32 s{sT}, s{sLAST}, 15
s_add_u32 s{sT}, s{sT}, {QF}
s_mul_i32 s{sT+1}, s{sJ}, 0x2aab
s_lshr_b32 s{sT+1}, s{sT+1}, 16
s_lshl_b32 s{sT+1}, s{sT+1}, 11
s_add_u32 s{sT+1}, s{sT+1}, s{sT}
s_cmp_lg_u32 s{sROLE}, 0
s_cselect_b32 s{sPUB}, s{sT+1}, s{sPUB}   ; flag row of Q (loader waves)
s_add_u32 s{sQFK}, s{sJ}, 32
s_mul_i32 s{sQFK}, s{sQFK}, 0x2aab
s_lshr_b32 s{sQFK}, s{sQFK}, 16
s_lshl_b32 s{sQFK}, s{sQFK}, 11
s_add_u32 s{sQFK}, s{sQFK}, s{sT}
s_add_u32 s{sQFV}, s{sJ}, 64
s_mul_i32 s{sQFV}, s{sQFV}, 0x2aab
s_lshr_b32 s{sQFV}, s{sQFV}, 16
s_lshl_b32 s{sQFV}, s{sQFV}, 11
s_add_u32 s{sQFV}, s{sQFV}, s{sT}
""")
    g.attention()
    g.left = {6: 0, 7: 0}
    g.acq = 7
    a(f"s_cmp_ge_u32 s{sWAVE}, 4\ns_cbranch_scc1 L_loader_main")
    if CPRIO: a(f's_setprio {CPRIO}')
    g.b2load(); g.aux_load(True)
    R = g.fifo_reg(E_RES)
    a(f"s_cmp_eq_u32 s{sLAST}, 0\ns_cbranch_scc1 L_res_x\ns_cmp_lg_u32 s{sKH}, 0\ns_cbranch_scc1 L_res_1")
    g.unpack(RA0, R, 8)
    g.unpack(RA2, R+16, 4)
    a("s_branch L_res_done\nL_res_1:")
    g.unpack(RA0, R+8, 8)
    a("s_branch L_res_z\nL_res_x:")
    g.unpack(RA0, RX, 8)
    g.unpack(RA2, RX+8, 4)
    a(f"s_cmp_eq_u32 s{sKH}, 0\ns_cbranch_scc1 L_res_done\nL_res_z:")
    for k in range(8): a(f"v_mov_b32 v{RA2+k}, 0")
    a("L_res_done:")
    g.barrier(need=12, tag="E0")
    if PRE13:
        a(f"s_mul_i32 s{sT}, s{sWAVE}, 5120\nv_add_u32 v{vT}, s{sT}, v{vL16}")
        for c in (13, 14):
            a(f"v_add_u32 v{vT+1}, {(c % NSLOT)*CH}, v{vT}")
            for q in range(5):
                a(f"ds_write_b128 v{vT+1}, {vr(C13+20*(c-13)+4*q,4)} offset:{1024*q}")
        a("s_waitcnt lgkmcnt(0)")
    g.phase_n80(0, 8, 5)
    g.phase_w1(13)
    g.phase_n80(1, 19, 12)
    nb_last = len(g.bar)
    a("L_qkv_phase:")
    g.vm.drain()
    g.phase_qkv(31)
    a(f"s_lshl3_add_u32 s{sT+1}, s{sG}, s{sTL}")
    g.pub_addr(sT+1, 1)
    a(f"""s_lshl_b32 s{sRDY}, s{sTL}, 7
s_lshl2_add_u32 s{sRDY}, s{sCB2}, s{sRDY}
s_add_u32 s{sRDY}, s{sRDY}, s{sFLG}
s_add_u32 s{sRDY}, s{sRDY}, {4096 + 3072}
L_next:
s_mov_b32 s{sLAST}, 1
s_branch L_layer""")
    a("L_done:")
    g.prof_store()
    a("L_end:\ns_endpgm")
    g.final_out()
    a("s_branch L_done")
    g.att_fallback()
    a.L.extend(g.oolbuf)
    a(f"L_loader_main:\ns_cmp_lg_u32 s{sLAST}, 0\ns_cbranch_scc1 L_loader_last")
    g.loader3(g.bar, 38, PLAN, FL[0])
    a("s_branch L_next\nL_loader_last:")
    g.loader3(g.bar[:nb_last], 30, PLAN, FL[1])
    a("s_branch L_done")
    return g
```

```python
import sys
from dsl import *
from layout import *
from front import gen_front
from main import gen_main
NAME = "interleave_layers__softmax_full_mha__mixer_channel_mlp__prompt"
def build(prof=False):
    hdr = open(f"cdna_kernels/{NAME}.s.ref").read().split("\n")
    hdr = [l for l in hdr if l.startswith(";") and "@launch" not in l and "Override" not in l and "grid=ceil" not in l]
    hdr = hdr[:12]
    out = "\n".join(hdr) + "\n"
    out += f"; @launch grid=(256,1,1) block=(512,1,1) lds={LDS_BYTES}\n"
    if prof:
        import main
        out += "; STAMPS=" + ",".join(main.STAMPS) + "\n"
    a = Asm()
    a('.amdgcn_target "amdgcn-amd-amdhsa--gfx950"\n.text')
    gen_front(a, prof)
    g = gen_main(a, prof)
    a('L_code_end:')
    out += a.text()
    out += '.section .rodata,"a"\n'
    out += ".p2align 6\n" + kd(NAME + "_kernel", 256, 102)
    return out
if __name__ == "__main__" and len(sys.argv) > 1:
    open(sys.argv[1], "w").write(build(int(sys.argv[2]) if len(sys.argv) > 2 else 1))
elif __name__ == "__main__" and DEBUG_SEP:
    open(f"dbg.s", "w").write(build(1))
elif __name__ == "__main__":
    open(f"cdna_kernels/{NAME}.s", "w").write(build(False))
    open(f"prof.s", "w").write(build(1))
    open(f"prof2.s", "w").write(build(2))
    print("written")
```

```python
from main import *

FS = 32768
FSCR = 4*FS
FAUX = FSCR
KNAME = 'interleave_layers__softmax_full_mha__mixer_channel_mlp__prompt_kernel'
DBF = os.environ.get('DBF', ' sc0 sc1')
ANN = int(os.environ.get('ANN', -1))
WSEL = sum(1 << (4*gh + jr) for gh in range(4) for jr in range(4) if (jr < 3 and gh < 3) or (jr == 3 and gh == 0))
WX = int(os.environ.get('WX', 0))
sDB = 24
ST0 = int(os.environ.get('ST0', 28))
sXS, sQS = 8, 12
sKC, sXB, sWB, sM0, sRB128, sW4 = 30+2, 33, 34, 35, 37, 38
sDst = 43
sWP, sEX, sMK = 96, 22, 8
SQ = 160
XA, WA = 128, 136
XF = [208, 212, 216, 220, 224, 228]
NXF = len(XF)
SQB = int(os.environ.get('SQB', 4))
CSB = int(os.environ.get('CSB', 2))
FNB = int(os.environ.get("FNB", 6))

def gen_front(a, prof):
    g = Gen(a, prof)
    kernel_begin(a, KNAME)
    a(f"""
s_cmp_ge_u32 s2, 256
s_cbranch_scc1 L_end
s_load_dwordx4 s[84:87], s[0:1], 0
s_load_dwordx2 s[{sWP}:{sWP+1}], s[0:1], 80
s_load_dwordx2 s[30:31], s[0:1], 72
s_mov_b32 s{sKID}, 1
s_mov_b32 s{sSLOW}, 0
""")
    if DIAG: a(f"s_memrealtime s[60:61]\n{DIAGI} s[62:63]\n{DIAGI} s[66:67]")
    if prof:
        for i in range(12): a(f"s_mov_b64 s[{sPROF+2*i}:{sPROF+2*i+1}], 0")
        a("s_memrealtime s[100:101]\ns_waitcnt lgkmcnt(0)\ns_mov_b32 s3, s100\ns_memtime s[100:101]")
    a(f"""
v_lshrrev_b32 v{vT}, 6, v0
v_and_b32 v{vLANE}, 63, v0
s_and_b32 s{sG}, s2, 7
v_readfirstlane_b32 s{sWAVE}, v{vT}
s_lshr_b32 s{sJ}, s2, 3
s_lshr_b32 s{sT+2}, s{sG}, 1             ; g>>1
s_and_b32 s{sT+3}, s{sG}, 1              ; g&1
s_lshr_b32 s{sT+4}, s{sJ}, 3             ; jr
s_and_b32 s{sT+5}, s{sJ}, 7              ; jc
s_xor_b32 s{sWAVE}, s{sWAVE}, {WX}
s_cmp_lt_u32 s{sWAVE}, 4
s_cbranch_scc1 L_front_np
s_setprio 3
L_front_np:
s_lshl2_add_u32 s{sRB128}, s{sT+2}, s{sT+4}
s_lshl3_add_u32 s{sCB2}, s{sT+3}, s{sT+5}
s_mul_i32 s{sKC}, s{sT+4}, 3
s_add_u32 s{sKC}, s{sKC}, s{sT+5}
s_mul_i32 s{sT+3}, s{sT+3}, 5
s_add_u32 s{sKC}, s{sKC}, s{sT+3}
s_add_u32 s{sKC}, s{sKC}, s{sT+2}        ; 0..24
s_mul_i32 s{sT+2}, s{sKC}, 26
s_lshr_b32 s{sT+2}, s{sT+2}, 8
s_mul_i32 s{sT+2}, s{sT+2}, 10
s_sub_u32 s{sKC}, s{sKC}, s{sT+2}
s_and_b32 s{sW4}, s{sWAVE}, 3
s_lshl2_add_u32 s{sTL}, s{sRB128}, s{sW4}
""")
    def lane_common():
        a(f"""v_lshrrev_b32 v{vH}, 5, v{vLANE}
v_lshlrev_b32 v{vL16}, 4, v{vLANE}
v_bfe_u32 v6, v{vLANE}, 4, 1             ; b4
v_bfe_u32 v7, v{vLANE}, 2, 2             ; r
v_and_b32 v8, 1, v{vLANE}
v_lshlrev_b32 v8, 1, v8
v_bfe_u32 v9, v{vLANE}, 1, 1
v_or_b32 v8, v8, v9                      ; sw
v_and_b32 v9, 31, v{vLANE}               ; i / tok
v_lshl_add_u32 v10, v{vH}, 3, v7         ; 8h+r
v_mov_b32 v11, 0x3f803f80""")
    def srds_more():
        srd(a, sWS, sWP, 0x10000000)
        srd(a, sDB, 30, 256)
        a(f"s_getreg_b32 s{sXCC}, hwreg(HW_REG_XCC_ID)\ns_and_b32 s{sXCC}, s{sXCC}, 15\ns_or_b32 s{sXCC}, s{sXCC}, 0x80")
        g.tpos(vTL, vLANE, vT)
        a(f"v_lshlrev_b32 v{vT}, 7, v{vH}\nv_xor_b32 v{vSW}, v{vT}, v{vL16}")

    def wa_calc(dst, j):
        if j < 3:
            a(f"""v_mul_u32_u24 v{vT}, 5, v6
v_add_u32 v{vT}, v{vT}, v8               ; u8
v_and_b32 v{vT+1}, 14, v{vT}             ; 2t
v_mov_b32 v{vT+2}, 0x3b4
v_bfe_u32 v{vT+2}, v{vT+2}, v{vT+1}, 2   ; cls
v_add_u32 v{vT+2}, {j}, v{vT+2}
v_and_b32 v{vT+2}, 3, v{vT+2}            ; m
v_lshrrev_b32 v{vT+1}, 3, v{vT}
v_mul_u32_u24 v{vT+1}, {3-j}, v{vT+1}
v_add_u32 v{vT+1}, {j}, v{vT+1}          ; level
v_and_b32 v{vT}, 1, v{vT}                ; half""")
        else:
            a(f"""v_and_b32 v{vT}, 1, v{vLANE}
v_bfe_u32 v{vT+3}, v{vLANE}, 1, 1
v_lshl_add_u32 v{vT+3}, v6, 1, v{vT+3}
v_add_u32 v{vT+2}, 3, v{vT+3}
v_and_b32 v{vT+2}, 3, v{vT+2}            ; m
v_mul_u32_u24 v{vT+1}, 3, v{vT}
v_max_u32 v{vT+1}, v{vT+1}, v{vT+3}      ; level""")
        a(f"""v_lshl_add_u32 v{vT+2}, v7, 2, v{vT+2}
v_lshlrev_b32 v{vT+2}, 4, v{vT+2}
v_lshl_add_u32 v{vT+2}, v{vT+1}, 8, v{vT+2}
v_lshl_add_u32 v{vT+2}, v{vT}, 3, v{vT+2}
v_lshl_add_u32 v{vT+2}, v{vH}, 11, v{vT+2}
v_add_u32 v{dst}, 16384, v{vT+2}""")

    a(f"s_cmp_lt_u32 s{sWAVE}, 4\ns_cbranch_scc1 L_front_compute")
    mark0 = len(a.L)
    a("L_front_compute:")
    lane_common()
    a(f"""v_lshrrev_b32 v{vT}, 2, v{vLANE}
v_lshlrev_b32 v{vT}, 10, v{vT}
v_and_b32 v{vT+1}, 3, v{vLANE}
v_lshl_add_u32 v{vT}, v{vT+1}, 6, v{vT}
s_lshl_b32 s{sT}, s{sW4}, 15
s_add_u32 s{sT}, s{sT}, {16384 + 768 + 32}
v_add_u32 v{vT}, s{sT}, v{vT}
v_mov_b32 v16, v11
v_mov_b32 v17, v11
ds_write_b64 v{vT}, v[16:17]
ds_write_b64 v{vT}, v[16:17] offset:8
s_waitcnt lgkmcnt(0)""")
    if prof: a("s_mov_b32 s99, s100" if prof == 1 else "s_mov_b32 s99, s3")
    srds_more()
    if 'nocode' not in XP:
        a(f"""s_cmp_lg_u32 s{sWAVE}, 1
s_cbranch_scc1 L_nocw
s_getpc_b64 s[88:89]
L_cw_pc:
s_sub_u32 s88, s88, L_cw_pc-{KNAME}
s_subb_u32 s89, s89, 0
s_and_b32 s89, s89, 0xffff
s_mov_b32 s90, L_code_end-{KNAME}
s_mov_b32 s91, 0x20000
s_lshl_b32 s{sT}, s{sJ}, 7
v_lshlrev_b32 v{vT}, 12, v{vLANE}
s_mov_b64 exec, 0xffff
buffer_load_dword v18, v{vT}, s[88:91], s{sT} offen
s_mov_b64 exec, -1
L_nocw:""")
    if 'az' in XP:
        a(f"""s_lshl2_add_u32 s{sT}, s{sJ}, s{sW4}
s_mul_i32 s{sT}, s{sT}, 12288
s_mul_i32 s{sT+1}, s{sG}, {AST}
s_add_u32 s{sT}, s{sT}, s{sT+1}
s_add_u32 s{sT}, s{sT}, {ARENA}
s_add_u32 s{sT+1}, s{sT}, 4096
s_add_u32 s{sT+2}, s{sT}, 8192
v_mov_b32 v20, 0
v_mov_b32 v21, 0
v_mov_b32 v22, 0
v_mov_b32 v23, 0""")
        for q in range(12):
            a(f"buffer_store_dwordx4 v[20:23], v{vL16}, s[{sWS}:{sWS+3}], s{sT + q//4} offen offset:{(q%4)*1024} sc0 sc1")
    a(f"""s_cmp_lg_u32 s{sWAVE}, 3
s_cbranch_scc1 L_nozero
s_cmp_lg_u32 s{sJ}, 0
s_cbranch_scc1 L_nozero
v_mov_b32 v16, 0
v_mov_b32 v17, 0
v_mov_b32 v18, 0
v_mov_b32 v19, 0
s_mul_i32 s{sT}, s{sG}, {AST}
s_add_u32 s{sT}, s{sT}, {ARENA + A_FL}
s_add_u32 s{sT+1}, s{sT}, 4096
s_lshl_b32 s{sT+2}, s{sG}, 13
s_add_u32 s{sT+2}, s{sT+2}, {QF}
s_lshl_b32 s{sT+3}, s{sG}, 8
v_lshlrev_b32 v{vT}, 7, v{vLANE}
v_lshlrev_b32 v{vT+1}, 2, v{vLANE}""")
    for q in range(8):
        a(f"buffer_store_dwordx4 v[16:19], v{vL16}, s[{sWS}:{sWS+3}], s{sT + q//4} offen offset:{(q%4)*1024} sc0 sc1")
    a(f"s_add_u32 s{sT+4}, s{sT+2}, 4096")
    for q in range(8):
        a(f"buffer_store_dwordx4 v[16:19], v{vL16}, s[{sWS}:{sWS+3}], s{sT + 2 + 2*(q//4)} offen offset:{(q%4)*1024} sc0 sc1")
    a(f"""buffer_store_dword v16, v{vT+1}, s[{sWS}:{sWS+3}], s{sT+3} offen sc0 sc1
L_nozero:""")
    srd(a, sXS, 84, S*D*2)
    srd(a, sQS, 86, D*3*D*2)
    a(f"""s_mov_b32 s{sQOUT}, {QKV[0]}
s_lshl_b32 s{sT}, s{sW4}, 12
v_lshlrev_b32 v{vT+2}, 7, v9
v_add_u32 v{vT+2}, s{sT}, v{vT+2}
v_bfe_u32 v{vT+1}, v9, 1, 3
v_xor_b32 v{vT+1}, v{vT+1}, v{vH}""")
    for u in range(4):
        a(f"""v_xor_b32 v{vT}, {2*u}, v{vT+1}
v_lshl_add_u32 v{XA+u}, v{vT}, 4, v{vT+2}
v_add_u32 v{XA+4+u}, 65536, v{XA+u}""")
    for j in range(4):
        wa_calc(WA+j, j)
        a(f"v_add_u32 v{WA+4+j}, 65536, v{WA+j}")
    g.qkv_addr()
    a(f"""v_lshlrev_b32 v30, 3, v{vLANE}
v_add_u32 v30, {FAUX}, v30""")
    a(f"""v_mov_b32 v{SQ}, 0
v_mov_b32 v{SQ+1}, 0
v_mov_b32 v{144}, 0
v_mov_b32 v{145}, 1""")
    def announce():
        a(f"""s_cmp_lg_u32 s{sWAVE}, 3
s_cbranch_scc1 L_noann
s_cmp_lg_u32 s{sJ}, 0
s_cbranch_scc1 L_noann
s_lshl_b32 s{sT}, s{sG}, 2
s_waitcnt vmcnt(0)
s_mov_b64 exec, 1
buffer_store_dword v145, v144, s[{sDB}:{sDB+3}], s{sT} offen sc0 sc1
s_mov_b64 exec, -1
L_noann:""")
    if 'tlb' in XP:
        a("s_mov_b64 exec, 1")
        for jj in range(3):
            for hf in range(2):
                a(f"buffer_load_dword v{SQ+4}, v{vL16}, s[{sWS}:{sWS+3}], s{sQA+1+4*jj+hf} offen")
        a("s_mov_b64 exec, -1")
    ops = [(s, j) for s in range(40) for j in range(4)]
    dsq = []
    seen = set()
    def reads(k):
        s, j = ops[k]; c, u = divmod(s, 4); slot = c % 4
        if c not in seen:
            seen.add(c); a("s_barrier")
            if c == 0: g.stamp("F0")
        hi = 4*(slot >> 1); im = (slot & 1)*FS
        if j == 0:
            a(f"ds_read_b128 {vr(XF[s%NXF],4)}, v{XA+hi+u} offset:{im}"); dsq.append(("x", s))
        w = WFR[k % FNB]
        for p in range(2):
            a(f"ds_read_b64_tr_b16 {vr(w+2*p,2)}, v{WA+hi+j} offset:{im + (16*u+4*p)*256}"); dsq.append(("w", k))
    def need(tag):
        nonlocal dsq
        if tag in dsq:
            i = len(dsq) - 1 - dsq[::-1].index(tag)
            n = len(dsq) - 1 - i
            assert n <= 15
            a(f"s_waitcnt lgkmcnt({n})"); dsq = dsq[i+1:]
    if ANN < 0: announce()
    if CPRIO: a(f's_setprio {CPRIO}')
    for k in range(FNB): reads(k)
    for k, (s, j) in enumerate(ops):
        need(("w", k))
        x = XF[s % NXF]
        c = "0" if s == 0 else vr(ACC+16*j, 16)
        a(f"v_mfma_f32_32x32x16_bf16 {vr(ACC+16*j,16)}, {vr(WFR[k%FNB],4)}, {vr(x,4)}, {c}")
        g.stamp(f"g{k}")
        if k + FNB < len(ops): reads(k + FNB)
        if j == 1 and s % SQB == SQB-1:
            for s2 in range(s - SQB + 1, s + 1):
                for hh in range(2):
                    d = SQ + 4*((2*s2+hh) % 4); xx = XF[s2 % NXF] + 2*hh
                    a(f"v_mfma_f32_4x4x4_16b_bf16 {vr(d,4)}, {vr(xx,2)}, {vr(xx,2)}, {'0' if s2 < 2 else vr(d,4)}")
        if k == ANN: announce()
    g.stamp("FM")
    a(f"""s_barrier
ds_read_b64 {vr(AUXA,2)}, v30
ds_read_b64 {vr(AUXA+2,2)}, v30 offset:512
ds_read_b64 {vr(AUXA+4,2)}, v30 offset:1024
ds_read_b64 {vr(AUXA+6,2)}, v30 offset:1536
s_mov_b32 s{sT}, 0xaaaaaaaa
s_mov_b32 s{sT+1}, 0xaaaaaaaa
s_mov_b32 s{sT+2}, 0xcccccccc
s_mov_b32 s{sT+3}, 0xcccccccc
v_pk_add_f32 {vr(SQ,2)}, {vr(SQ,2)}, {vr(SQ+4,2)}
v_pk_add_f32 {vr(SQ+2,2)}, {vr(SQ+2,2)}, {vr(SQ+6,2)}
v_pk_add_f32 {vr(SQ+8,2)}, {vr(SQ+8,2)}, {vr(SQ+12,2)}
v_pk_add_f32 {vr(SQ+10,2)}, {vr(SQ+10,2)}, {vr(SQ+14,2)}
v_pk_add_f32 {vr(SQ,2)}, {vr(SQ,2)}, {vr(SQ+8,2)}
v_pk_add_f32 {vr(SQ+2,2)}, {vr(SQ+2,2)}, {vr(SQ+10,2)}
v_cndmask_b32 v{SQ}, v{SQ}, v{SQ+1}, s[{sT}:{sT+1}]
v_cndmask_b32 v{SQ+2}, v{SQ+2}, v{SQ+3}, s[{sT}:{sT+1}]
v_cndmask_b32 v{SQ}, v{SQ}, v{SQ+2}, s[{sT+2}:{sT+3}]
v_cmp_gt_u32 vcc, 32, v{vLANE}
v_mov_b32 v{SQ+1}, v{SQ}
s_nop 1
v_permlane32_swap_b32 v{SQ}, v{SQ+1}
s_nop 1
v_add_f32 v{SQ}, v{SQ}, v{SQ+1}
v_cndmask_b32 v{STT}, v{SQ}, v{ACC+48+12}, vcc""")
    for l in g.stats_math(False, summed=True): a(l)
    for jj in range(3): a(f"v_mul_f32 v{20+2*jj}, v{20+2*jj}, v16")
    a("s_waitcnt lgkmcnt(0)")
    for j in range(4): g.aux_mfma(ACC+16*j, j, False)
    g.pub_addr(sTL, 0)
    a(f"s_mov_b32 s{sLAST}, 0\ns_nop 2")
    g.qkv_epilogue()
    g.stamp("FE")
    a("s_branch L_layer")

    comp = a.L[mark0:]; del a.L[mark0:]
    vX0, vX1, vWv, vCS, vLA, vSO, vSD, vBI = 16, 17, 18, 19, 20, 22, 23, 24
    vCS2 = 30
    vWq, vXq, ONE, CSA = 48, 52, 56, 112
    LW, SR = 32, 64
    a(f"""L_front_loader:
v_lshrrev_b32 v{vT}, 3, v{vLANE}
v_mul_u32_u24 v{vT}, 1280, v{vT}
v_lshrrev_b32 v{vT+1}, 4, v{vLANE}       ; level
v_and_b32 v{vT+2}, 7, v{vLANE}
v_xor_b32 v{vT+2}, v{vT+2}, v{vT+1}
v_lshl_add_u32 v{vX0}, v{vT+2}, 4, v{vT}
v_xor_b32 v{vT+2}, 4, v{vT+2}
v_lshl_add_u32 v{vX1}, v{vT+2}, 4, v{vT}
v_and_b32 v{vT}, 3, v{vLANE}
v_lshl_add_u32 v{vT}, v{vT+1}, 2, v{vT}  ; 4*level + m
v_lshlrev_b32 v{vT}, 2, v{vT}
v_mov_b32 v{vT+2}, 0x86572310
v_mov_b32 v{vT+3}, 0x40e9bacd
v_lshrrev_b64 v[{vT+2}:{vT+3}], v{vT}, v[{vT+2}:{vT+3}]
v_and_b32 v{vT+2}, 15, v{vT+2}           ; piece
v_bfe_u32 v{vT}, v{vLANE}, 2, 2
v_mul_u32_u24 v{vT}, 3840, v{vT}
v_lshl_add_u32 v{vWv}, v{vT+2}, 4, v{vT}
s_mul_i32 s{sXB}, s{sTL}, {32*1280}
s_mul_i32 s{sWB}, s{sW4}, {16*3840}
s_mul_i32 s{sT}, s{sCB2}, 240
s_add_u32 s{sWB}, s{sWB}, s{sT}
s_lshl_b32 s{sM0}, s{sW4}, 12
""")
    for q in range(4):
        a(f"v_add_u32 v{vWq+q}, {q*(4*3840-1024)}, v{vWv}")
    for q in range(4):
        a(f"v_add_u32 v{vXq+q}, {q*(10240-1024)}, v{vX0+(q&1)}")
    a(f"""s_mov_b32 s{sEX}, -1
s_mov_b32 s{sEX+1}, 0xbbbbffff
s_waitcnt lgkmcnt(0)
""")
    if prof: a("s_mov_b32 s99, s100" if prof == 1 else "s_mov_b32 s99, s3")
    srd(a, sXS, 84, S*D*2)
    srd(a, sQS, 86, D*3*D*2)
    def csops(k):
        if k % 2 == 0:
            d = CSA + 4*((k//2) % 4)
            a(f"v_mfma_f32_4x4x4_16b_bf16 {vr(d,4)}, {vr(ONE,2)}, {vr(LW+k,2)}, {vr(d,4)}")
    def dma(c, with_cs=False):
        slot = c % 4
        a(f"""s_mov_b64 exec, s[{sEX}:{sEX+1}]
s_add_u32 m0, s{sM0}, {slot*FS + 16384}
s_mul_i32 s{sT+1}, s{sKC}, {64*3840}
s_add_u32 s{sT+1}, s{sT+1}, s{sWB}""")
        for q in range(4):
            a(f"buffer_load_dwordx4 v{vWq+q}, s[{sQS}:{sQS+3}], s{sT+1} offen offset:{q*1024} lds")
        a(f"""s_mov_b64 exec, -1
s_add_u32 m0, s{sM0}, {slot*FS}
s_lshl_b32 s{sT}, s{sKC}, 7
s_add_u32 s{sT}, s{sT}, s{sXB}""")
        if with_cs: a("s_waitcnt lgkmcnt(0)")
        for q in range(4):
            if with_cs and not CSB:
                for k in range(4*q, 4*q+4): csops(k)
            a(f"buffer_load_dwordx4 v{vXq+q}, s[{sXS}:{sXS+3}], s{sT} offen offset:{q*1024} lds")
        if with_cs and CSB:
            if CSB == 2: a("s_setprio 3")
            for k in range(16): csops(k)
            if CSB == 2: a("s_setprio 0")
        if c < 9:
            a(f"""s_add_u32 s{sKC}, s{sKC}, 1
s_cmp_eq_u32 s{sKC}, 10
s_cselect_b32 s{sKC}, 0, s{sKC}""")
    def wpre():
        a(f"""v_mul_u32_u24 v{vT}, 384, v{vH}
v_lshl_add_u32 v{vT}, v9, 4, v{vT}
v_mov_b32 v{vT+1}, {OOB}
v_cmp_gt_u32 vcc, 24, v9
s_mul_i32 s{sT+4}, s{sCB2}, 163840
s_add_u32 s{sT+4}, s{sT+4}, {WQKV_F}
v_cndmask_b32 v{vT}, v{vT+1}, v{vT}, vcc
s_movk_i32 s{sT+5}, 3072
s_lshl_b32 s{sT+6}, s{sW4}, 10
s_cmp_eq_u32 s{sW4}, 3
s_cselect_b64 vcc, -1, 0
s_cselect_b32 s{sT+5}, 768, s{sT+5}
s_cselect_b32 s{sT+6}, 15360, s{sT+6}
s_add_u32 s{sT+4}, s{sT+4}, s{sT+6}
v_cndmask_b32 v31, v{vL16}, v{vT}, vcc
s_lshr_b32 s{sT+6}, {WSEL:#x}, s{sRB128}
s_and_b32 s{sT+6}, s{sT+6}, 1
s_cselect_b32 s{sT+4}, s{sT+4}, {OOB}
s_add_u32 s{sT+6}, s{sKC}, 2
s_sub_u32 s{sT+7}, s{sKC}, 8
s_cselect_b32 s{sT+7}, s{sT+6}, s{sT+7}""")
        for u in range(4):
            a(f"""s_lshl_b32 s{sT}, s{sT+7}, 2
s_add_u32 s{sT}, s{sT}, {u}              ; ks
s_mul_i32 s{sT+1}, s{sT}, 0x3334
s_lshr_b32 s{sT+1}, s{sT+1}, 16          ; ks/5
s_mul_i32 s{sT+2}, s{sT+1}, 5
s_sub_u32 s{sT}, s{sT}, s{sT+2}
s_mul_i32 s{sT}, s{sT}, s{sT+5}
s_mul_i32 s{sT+1}, s{sT+1}, 20480
s_add_u32 s{sT}, s{sT}, s{sT+1}
s_add_u32 s{44+u}, s{sT}, s{sT+4}""")
        a(f"v_and_b32 v26, 7, v{vLANE}\nv_lshlrev_b32 v26, 2, v26")
    g.stamp('L0'); dma(0); g.stamp('L1')
    lane_common()
    for j in range(4):
        l = a.label("wa")
        a(f"s_cmp_lg_u32 s{sW4}, {j}\ns_cbranch_scc1 {l}")
        wa_calc(vLA, j)
        a(f"{l}:")
    a(f"v_add_u32 v{vLA+1}, 65536, v{vLA}\n")
    for k in range(16): a(f"v_mov_b32 v{CSA+k}, 0")
    for k in range(4): a(f"v_mov_b32 v{ONE+k}, v11")
    dma(1); g.stamp('L2')
    def rd(c):
        slot = c % 4
        for u in range(4):
            for p in range(2):
                a(f"ds_read_b64_tr_b16 {vr(LW+4*u+2*p,2)}, v{vLA + (slot>>1)} offset:{(slot&1)*FS + (16*u+4*p)*256}")
    def cs():
        a("s_waitcnt lgkmcnt(0)")
        if CSB == 2: a("s_setprio 3")
        for k in range(16): csops(k)
    for c in range(8):
        a("s_waitcnt vmcnt(8)")
        g.stamp(f"W{c}")
        a("s_barrier")
        if c == 0 and 'hp' not in XP: a("s_setprio 0")
        rd(c); dma(c+2, True)
        g.stamp(f"D{c}")
        if c == 1: srds_more()
        if c == 2: wpre()
    def tail(y):
        a(f"buffer_load_dword v27, v26, s[{sDB}:{sDB+3}], 0 offen{DBF}")
        for u in range(4):
            a(f"buffer_store_dwordx4 {vr(LW+4*u,4)}, v31, s[{sWS}:{sWS+3}], s{44+u} offen sc0 sc1")
        a("s_waitcnt vmcnt(13)\ns_barrier")
        rd(8); cs()
        a("s_waitcnt vmcnt(4)\ns_barrier")
        rd(9)
        cs()
        a(f"""s_nop 7
v_add_f32 v{CSA}, v{CSA}, v{CSA+4}
v_add_f32 v{CSA+8}, v{CSA+8}, v{CSA+12}
v_add_f32 v{CSA}, v{CSA}, v{CSA+8}
v_mov_b32 v{CSA+1}, v{CSA}
s_nop 1
v_permlane32_swap_b32 v{CSA}, v{CSA+1}
s_nop 1
v_add_f32 v{CSA}, v{CSA}, v{CSA+1}
v_and_b32 v{vT+1}, 0xffff0000, v{CSA}
v_sub_f32 v{vT+3}, v{CSA}, v{vT+1}
v_lshrrev_b32 v{vT+2}, 16, v{vT+1}
v_cmp_gt_u32 vcc, 32, v{vLANE}
v_or_b32 v{vT+2}, v{vT+2}, v{vT+1}
v_lshrrev_b32 v{vT+3}, 16, v{vT+3}
v_cndmask_b32 v{vT+2}, 0, v{vT+2}, vcc
v_cndmask_b32 v{vT+3}, 0, v{vT+3}, vcc
s_lshl_b32 s{sT+6}, s{sW4}, 9
v_lshlrev_b32 v{vT+1}, 3, v{vLANE}
v_add_u32 v{vT+1}, s{sT+6}, v{vT+1}
v_add_u32 v25, {FAUX}, v{vT+1}
ds_write_b64 v25, {vr(vT+2,2)}
s_mov_b32 s{sT+7}, 0x100000
""")
        g.stamp('dbg0')
        a(f"""L_dbg_poll:
v_cmp_eq_u32 vcc, 0, v27
s_cbranch_vccz L_dbg_done
s_sub_u32 s{sT+7}, s{sT+7}, 1
s_cbranch_scc1 L_dbg_done
buffer_load_dword v27, v26, s[{sDB}:{sDB+3}], 0 offen{DBF}
s_waitcnt vmcnt(0)
s_branch L_dbg_poll
L_dbg_done:
""")
        g.stamp('dbg')
        a(f"""s_waitcnt {'vmcnt(0) ' if WQ_POLL > 0 else ''}lgkmcnt(0)
s_barrier""")
        a(f"""s_cmp_lg_u32 s{sWAVE}, 7
s_cbranch_scc1 L_noxcc
s_lshl_b32 s{sT+7}, s{sG}, 5
s_add_u32 s{sT+7}, s{sT+7}, s{sJ}
s_lshl_b32 s{sT+7}, s{sT+7}, 2
s_add_u32 s{sT+7}, s{sT+7}, {XCC}
v_mov_b32 v30, s{sXCC}
s_mov_b64 exec, 1
buffer_store_dword v30, v{vL16}, s[{sWS}:{sWS+3}], s{sT+7} offen sc0 sc1
s_mov_b64 exec, -1
L_noxcc:""")
        l = a.label("noaux")
        a(f"""s_cmp_lg_u32 s{sRB128}, 0
s_cbranch_scc1 {l}
s_lshl_b32 s{sT+6}, s{sCB2}, 11
s_add_u32 s{sT+6}, s{sT+6}, {AUXQ}
buffer_store_dwordx2 {vr(vT+2,2)}, v{vT+1}, s[{sWS}:{sWS+3}], s{sT+6} offen sc0 sc1
{l}:""")
    tail(0)
    a(f"s_setprio 0\ns_mov_b32 s{sLAST}, 0\ns_mov_b32 s{sTy}, 0\ns_branch L_layer")
    a.L.extend(comp)
```

```python
import os
DEBUG_SEP = int(os.environ.get("DEBUG_SEP", "0"))
S, D, F, H, DH = 2048, 640, 1536, 32, 20
WFL    = 0x000000
XCC    = 0x000400
QF     = 0x010000
AUXQ   = 0x040000
AUX1   = 0x048000
WQKV_F = 0x200000
WO_F   = 0x480000
W1_F   = 0x580000
W2_F   = 0x780000
ARENA  = 0xA00000
AST    = 0x400000 if DEBUG_SEP else 0x120000
A_H    = 0x000000
A_ST   = 0x0C0000
A_FL   = 0x0C8000
TOUCH_BYTES = 0x0CA000
A_X    = 0x0D0000
OSTR   = 98304
if DEBUG_SEP:
    X1F, X2F = [A_X, 0x120000], 0x170000
    STAT = [A_ST, A_ST, 0x1C0000, 0x1C8000]
    OF, HF = [0x1D0000, 0x1D0000 + 40960], [A_H, 0x290000]
else:
    X1F, X2F = [A_X, A_X], A_X
    STAT = [A_ST]*4
    OF, HF = [A_H, A_H], [A_H, A_H]
QKV    = [ARENA + 8*AST, ARENA + 8*AST + 0x780000]
PROF   = 0x4000000
CH = 20480
NSLOT = 7
MISC = NSLOT*CH
LDS_BYTES = 163840
```

```python
import math, struct, os
from dsl import *
from layout import *

OOB = 0x40000000
def f2u(x): return struct.unpack("<I", struct.pack("<f", x))[0]
QSCALE = DH ** -0.5 * math.log2(math.e)
EPS = 1e-5

sWS, sOUT, sB2 = 4, 8, 12
sWAVE, sG, sJ, sSLOW = 16, 17, 18, 19
sQIN, sQOUT, sRES, sFLG, sXCA, sLAST = 20, 21, 22, 23, 24, 25
sSTQ, sACTQ, sNOPOLL, sXCC = 26, 27, 28, 29
sOF, sX1F, sHF, sST1 = 30, 31, 32, 33
sCB, sRB, sCB2, sRB2 = 34, 35, 36, 37
sKH, sT2, sTL = 38, 39, 40
sSRC, sC, sSLOT, sLDW = 41, 42, 43, 44
sWO, sW1, sW2, sWQ = 45, 46, 47, 48
sT = 50
sPROF = 60
sQA = 84
sKID = 98
sWRM = 49
sAR1 = 96
sWRM2, sWRM3, sDST, sN, sAR = 93, 94, 95, 97, 92
vLANE, vL16, vSW, vTL, vH = 1, 2, 3, 4, 5
vK1, vK2, vVA = 6, 7, 8
vB0, vB1, vB2 = 6, 7, 8
vP0, vP1, vP2 = 9, 10, 11
vT = 12
Q1, Q2, K1, K2, V0, V1, P, SS, O = 16, 20, 24, 28, 32, [36, 40], 44, [52, 68], 84
vBK1, vBK2, vBV, vMK, vMV, vXC = 100, 101, 102, 106, 107, 108
vWRM, vDUM = 110, 111
SR, vSO, vSD, vBI, vSC, ONE, CSA = 208, 168, 169, 170, 171, 172, 176
sA, sBp, sSo, sDs, sSt, sAx, sQd, sTy, sSS, sBS = 84, 85, 86, 87, 88, 89, 42, 28, 8, 12
sDP, sFP, sLDR, sROLE = 93, 94, 96, 49
sZP = 24
sA0, sSt0 = 24, 94
sPUB, sRDY, sQFK, sQFV = 24, 29, 95, 97
vPL = 252
sXP, RX = 90, 112
vL16B = 110
E_RES, E_C13, E_C14, E_T0, E_T1 = 1, 2, 3, 4, 5
AUXB, AUXA, WF, ACC, ACT, STT = 38, 40, 48, 64, 128, 192
RA0, RA2, RA1 = 208, 224, 240
AUXB16, AUXA16 = 32, 36
OWN, OTH = 208, 228
WF16 = [48, 52, 56, 60, 176, 180, 184, 188, 192, 196]
T16, NPRE16, R16 = 2, int(os.environ.get('NPRE16', 8)), int(os.environ.get('R16', 2))
vRS, vRSB = 22, 23
NACT = 12
WFR = [48, 52, 56, 60, 176, 180, 184, 188]
NB3, NB4 = int(os.environ.get('NB3', 6)), int(os.environ.get('NB4', 8))
NPRE, ADEPTH, STAT_AT = int(os.environ.get('NPRE', 7)), int(os.environ.get('ADEPTH', 11)), 8
RAMP = int(os.environ.get('RAMP', 2))
GDEF = int(os.environ.get('GDEF', 3))
PRE13 = int(os.environ.get('PRE13', 1))
C13 = 152
N80_TAIL = 8
QTAIL = int(os.environ.get('QTAIL', 8))
QRATE = int(os.environ.get('QRATE', 3))
WR_LAG = 1
F0 = 13
NF = 7
FL = [eval(os.environ.get('FL0', '[26, 27, 28, 29, 30, 37, 38]')), [24, 25, 26, 27, 28, 29, 30]]
RS = eval(os.environ.get('RS', """[("S",1,3,1), ("S",2,10,1), ("D",3,26,2), ("D",5,45,2), ("F",0,68,1), ("F",6,73,1), ("D",7,78,1), ("D",9,83,2), ("F",2,84,2), ("F",3,93,1),
      ("F",4,98,1), ("F",5,103,1), ("D",11,108,2), ("F",1,109,2)]"""))
ROUNDS = {}
for _k, _n, _s0, _st in RS:
    for _q in range({'S': 3, 'T': 6}.get(_k, 5)):
        assert _s0 + _q*_st not in ROUNDS
        ROUNDS[_s0 + _q*_st] = (_k, _n, _q)
RESX_AT = 39
HALF0 = int(os.environ.get('HALF0', 1))
S_LD, S_WR, S_FLAG, S_POLL = eval(os.environ.get('SS', '(7, 14, 22, 31)'))
XC_AT = 40
PRIO = {}
_P = eval(os.environ.get('PP', '{0: 3, 6: 2, 11: 1, 14: 0}'))
for _b in (22, 38):
    for _u, _v in _P.items(): PRIO[_b+_u] = _v
PRIO.update(eval(os.environ.get('PE', '{0: 2, 1: 1, 2: 3, 4: 1, 5: 0, 6: 3, 9: 2, 11: 1, 13: 0, 14: 3, 17: 2, 19: 1, 21: 0, 54: 3, 59: 2, 61: 1, 63: 0}')))
FIFO_ATT = eval(os.environ.get('FIFO_ATT', '{4: [0, 1], 5: [2, 3], 6: [4, 5], 7: [6]}'))
SYNC = eval(os.environ.get('SYNC', '{13: 16, 17: 18, 19: 23, 22: 0, 24: 25, 26: 27, 28: 30, 31: 33, 32: 0, 34:34, 35: 37, 38: 38}'))
XFIFO = eval(os.environ.get('XFIFO', '{"E0": [(24, 9), (25, 10), (17, 7)], "Zo": [(18, 8)], "Zw": []}'))
PLAN = eval(os.environ.get('PLAN', '{"def": 0, "wdef": 10, "Zo": 10, "Zf": 25, "Zw": 15, "B32": 15, "wX0": 5, "wX1": 5, "wZw": 0}'))
WPACE = int(os.environ.get('WPACE', 0))
DRIP = int(os.environ.get('DRIP', 2))
PKR = 112
import os
STD = ["att0", "attE", "woP", "woM", "w1P", "w1M", "w2P", "w2M", "qP", "qM", "qE"]
STAMPS = os.environ.get("STAMPS", ",".join(STD)).split(",")
SIDE = eval(os.environ.get('SIDE', "{3: ['w2a'], 4: ['w2b'], 5: ['ar0'], 6: ['ar1', 'res']}"))
XP = os.environ.get('XP', '')
ALF = os.environ.get('ALF', ' sc1')
CPRIO = int(os.environ.get('CPRIO', 1))
QST = os.environ.get('QST', ' sc0 sc1')
CHAIN_TOUCH = 0
KV_NT = int(os.environ.get("KV_NT", 0))

class VM:
    def __init__(self): self.q = []
    def issue(self, tag): self.q.append(tag)
    def need(self, tag):
        if tag not in self.q: return None
        i = len(self.q) - 1 - self.q[::-1].index(tag)
        n = len(self.q) - 1 - i
        self.q = self.q[i+1:]
        return n
    def drain(self): self.q = []

class Gen:
    def __init__(self, a, prof):
        self.a = a; self.prof = prof
        self.bar = []
        self.acq = 8
        self.left = {}
        self.dsq = []
        self.freed = set()
        self.vm = VM()
        self.basechunk = {}
        self.seen = set()
        self.drip = []
        self.oolbuf = []
        self.rate = DRIP

    def stamp(self, name):
        if isinstance(name, int): name = STD[name]
        name = {"F0": "att0", "g0": "attE", "g32": "woP", "g64": "woM", "g96": "w1P", "g128": "w1M", "FM": "qM", "FE": "qE"}.get(name, name) if name not in STAMPS else name
        if self.prof and name in STAMPS:
            i = STAMPS.index(name)
            self.a(f"{'s_memrealtime' if self.prof == 2 else 's_memtime'} s[{sPROF+2*i}:{sPROF+2*i+1}]")

    def barrier(self, need=None, tag=None):
        busy = {c for c, _ in self.dsq}
        fr = [c for c, n in sorted(self.left.items()) if n == 0 and c not in busy and c not in self.freed]
        self.freed |= set(fr)
        self.bar.append(dict(need=need, free=fr, tag=tag if tag else f"B{need}"))
        self.a("s_barrier")
        if need is not None: self.acq = need
    def lgkm(self, n):
        self.a(f"s_waitcnt lgkmcnt({n})")
        if len(self.dsq) > n: self.dsq = self.dsq[len(self.dsq)-n:] if n else []
    def dsneed(self, tag):
        tags = [t for _, t in self.dsq]
        if tag in tags:
            self.lgkm(len(tags) - 1 - tags.index(tag))
    def wread(self, dst, chunk, kind, off, tag=None):
        a = self.a
        if chunk not in self.seen:
            self.seen.add(chunk)
            if chunk in SYNC:
                self.barrier(max(SYNC[chunk], self.acq), tag=f"B{chunk}")
            assert chunk <= self.acq, (chunk, self.acq)
        if self.basechunk.get(kind) != chunk:
            a(f"v_add_u32 v{vB0+kind}, {(chunk % NSLOT)*CH}, v{vP0+kind}")
            self.basechunk[kind] = chunk
        a(f"ds_read_b128 {vr(dst,4)}, v{vB0+kind} offset:{off}")
        self.left[chunk] -= 1
        self.dsq.append((chunk, tag))

    def poll(self, phase, nslots):
        a = self.a
        lp, ld = a.label("poll"), a.label("polld")
        mask = (1 << nslots) - 1
        a(f"""
s_lshl_b32 s{sT}, s{sTL}, 7
s_add_u32 s{sT}, s{sT}, s{sFLG}
s_add_u32 s{sT}, s{sT}, {phase*1024}
v_and_b32 v{vT}, 31, v{vLANE}
v_lshlrev_b32 v{vT}, 2, v{vT}
s_mov_b32 s{sT+1}, 0x100000
{lp}:
buffer_load_dword v{vT+1}, v{vT}, s[{sWS}:{sWS+3}], s{sT} offen sc1
s_sub_u32 s{sT+1}, s{sT+1}, 1
s_cbranch_scc1 {ld}
s_waitcnt vmcnt(0)
v_cmp_eq_u32 vcc, 0, v{vT+1}
s_and_b32 s{sT+2}, vcc_lo, {mask:#x}
s_cbranch_scc1 {lp}
{ld}:
s_waitcnt vmcnt(0)
""")
        ls = a.label("noinv")
        a(f"""
s_cmp_eq_u32 s{sSLOW}, 0
s_cbranch_scc1 {ls}
buffer_inv sc1
s_waitcnt vmcnt(0)
{ls}:
""")
        self.vm.drain()

    def publish(self, phase, slot_sreg, vmn=0):
        a = self.a
        l1, l2 = a.label("pubslow"), a.label("pubdone")
        a(f"""
s_lshl_b32 s{sT}, s{sTL}, 7
s_add_u32 s{sT}, s{sT}, s{sFLG}
s_add_u32 s{sT}, s{sT}, {phase*1024}
s_lshl_b32 s{sT+1}, s{slot_sreg}, 2
s_add_u32 s{sT}, s{sT}, s{sT+1}
v_mov_b32 v{vT}, 0
v_mov_b32 v{vT+1}, 1
s_cmp_lg_u32 s{sSLOW}, 0
s_cbranch_scc1 {l1}
s_waitcnt vmcnt({vmn})
s_mov_b64 exec, 1
buffer_store_dword v{vT+1}, v{vT}, s[{sWS}:{sWS+3}], s{sT} offen
s_branch {l2}
{l1}:
s_waitcnt vmcnt(0)
buffer_wbl2 sc1
s_waitcnt vmcnt(0)
s_mov_b64 exec, 1
buffer_store_dword v{vT+1}, v{vT}, s[{sWS}:{sWS+3}], s{sT} offen sc1
{l2}:
s_mov_b64 exec, -1
""")
        self.vm.drain(); self.vm.issue("flag")

    def make_ops(self, nsteps, nt, tail=0, tail_order=None):
        ops = [(s, j) for s in range(nsteps - tail) for j in range(nt)]
        for j in (tail_order or range(nt)):
            ops += [(s, j) for s in range(nsteps - tail, nsteps)]
        return ops

    def first_w(self, ops, nb, frag):
        for k in range(nb):
            self.wread(WFR[k], *frag(*ops[k]), tag=k)

    def gemm(self, ops, nb, accs, frag, act_ks, sact, cinit, hooks, pre_stats=None, nm="", pre=()):
        a = self.a
        nsteps = max(s for s, _ in ops) + 1
        lastuse = {}
        for k, (s, j) in enumerate(ops): lastuse[s] = k
        cur = [None]; nxt = [0]
        tailn = N80_TAIL if nm in 'ow' else 0
        def aload():
            s = nxt[0]; nxt[0] += 1
            ks = act_ks(s)
            if cur[0] != ks // 4:
                cur[0] = ks // 4
                a(f"s_add_u32 s{sT+3}, s{sact}, {(ks//4)*4096}")
            if 'noA' in XP and s >= 2: return
            a(f"buffer_load_dwordx4 {vr(ACT+4*(s%NACT),4)}, v{vL16}, s[{sWS}:{sWS+3}], s{sT+3} offen offset:{(ks%4)*1024}{ALF}")
            self.vm.issue(("act", s))
        for _ in range(min(NPRE, nsteps)): aload()
        for h in pre: h()
        started = set()
        for k, (s, j) in enumerate(ops):
            n = self.vm.need(("act", s))
            if n is not None: a(f"s_waitcnt vmcnt({n})")
            self.dsneed(k)
            c = vr(accs[j], 16) if (j in started or cinit[j]) else "0"
            started.add(j)
            a(f"v_mfma_f32_32x32x16_bf16 {vr(accs[j],16)}, {vr(WFR[k%nb],4)}, {vr(ACT+4*(s%NACT),4)}, {c}")
            self.stamp(f"{nm}{k}")
            if k + nb < len(ops):
                self.wread(WFR[k%nb], *frag(*ops[k+nb]), tag=k+nb)
            if (j == 0 or (j == 1 and s % RAMP == RAMP-1) or (s >= nsteps - tailn and j == 1)) and nxt[0] < nsteps and (nxt[0] < NACT or lastuse[nxt[0]-NACT] <= k) and nxt[0] <= s + ADEPTH:
                aload()
                if nxt[0] == nsteps and ("Z" + nm) in PLAN: self.barrier(tag="Z" + nm)
            if pre_stats and j == 2 and s % 2 == 0 and s // 2 < 2: pre_stats(s // 2)
            for h in hooks.get((s, j), []) + hooks.get(k - len(ops), []):
                h()
            for _ in range(self.rate):
                if self.drip:
                    d = self.drip.pop(0)
                    if callable(d): d()
                    else: a(d)
        assert nxt[0] == nsteps

    def stats_load(self, sbase):
        a = self.a
        def f(q):
            if q == 0: a(f"s_lshl_b32 s{sT+4}, s{sTL}, 12\ns_add_u32 s{sT+4}, s{sT+4}, s{sbase}")
            a(f"buffer_load_dwordx4 {vr(STT+4*q,4)}, v{vL16}, s[{sWS}:{sWS+3}], s{sT+4} offen offset:{1024*q} sc1")
            self.vm.issue(("st", q))
        return f

    def stats_math(self, double, summed=False):
        a = self.a
        L = []
        if not summed:
            def w():
                n = self.vm.need(("st", 1))
                if n is not None: a(f"s_waitcnt vmcnt({n})")
            L = [w]
            for q in range(4): L.append(f"v_add_f32 v{STT+q}, v{STT+q}, v{STT+4+q}")
            L += f"""v_add_f32 v{STT}, v{STT}, v{STT+2}
v_add_f32 v{STT+1}, v{STT+1}, v{STT+3}
v_add_f32 v{STT}, v{STT}, v{STT+1}""".split("\n")
        L += f"""v_mul_f32 v{STT}, {f2u(1.0/D):#x}, v{STT}
v_mov_b32 v{STT+1}, v{STT}
s_nop 1
v_permlane32_swap_b32 v{STT}, v{STT+1}
v_cmp_gt_u32 vcc, 32, v{vLANE}
v_fma_f32 v{STT+1}, -v{STT}, v{STT}, v{STT+1}
v_max_f32 v{STT+1}, 0, v{STT+1}
v_add_f32 v{STT+2}, {f2u(EPS):#x}, v{STT+1}
v_rsq_f32 v16, v{STT+2}
v_sub_f32 v{STT+4}, 0, v{STT}
v_mov_b32 v18, 0xffff0000
v_and_b32 v{STT+5}, 0xffff0000, v{STT+4}
v_sub_f32 v{STT+6}, v{STT+4}, v{STT+5}
v_lshrrev_b32 v{STT+5}, 16, v{STT+5}""".split("\n")
        if not double:
            L += f"""v_and_or_b32 v{AUXB}, v{STT+6}, v18, v{STT+5}
v_mov_b32 v{AUXB+1}, v{STT+5}""".split("\n")
            return L
        L += f"""v_mul_f32 v{STT+3}, v16, v16
v_mul_f32 v{STT+3}, v{STT+3}, v{STT+1}
v_add_f32 v{STT+3}, {f2u(EPS):#x}, v{STT+3}
v_rsq_f32 v{STT+3}, v{STT+3}
v_and_or_b32 v{AUXB16}, v{STT+6}, v18, v{STT+5}
v_mul_f32 v16, v16, v{STT+3}
v_rcp_f32 v17, v16
v_mov_b32 v{AUXB16+2}, v{AUXB16}
v_cndmask_b32 v{STT+7}, v17, 0, vcc
v_and_b32 v{STT+8}, 0xffff0000, v{STT+7}
v_sub_f32 v{STT+9}, v{STT+7}, v{STT+8}
v_or_b32 v{AUXB16+1}, v{STT+8}, v{STT+5}
v_and_or_b32 v{AUXB16+3}, v{STT+9}, v18, v{STT+5}""".split("\n")
        return L

    def aux_load(self, w1):
        a = self.a
        if w1:
            a(f"s_lshl_b32 s{sT}, s{sCB2}, 12\ns_add_u32 s{sT}, s{sT}, {AUX1}")
            for j in range(3):
                a(f"buffer_load_dwordx4 {vr(AUXA16+4*j,4)}, v{vL16}, s[{sWS}:{sWS+3}], s{sT} offen offset:{1024*j}")
                self.vm.issue(("aux", j))
        else:
            a(f"s_lshl_b32 s{sT}, s{sCB2}, 11\ns_add_u32 s{sT}, s{sT}, {AUXQ}\nv_lshlrev_b32 v{vT}, 3, v{vLANE}")
            for j in range(4):
                a(f"buffer_load_dwordx2 {vr(AUXA+2*j,2)}, v{vT}, s[{sWS}:{sWS+3}], s{sT} offen offset:{512*j}")
                self.vm.issue(("aux", j))

    def aux_mfma(self, acc, j, double):
        if double:
            self.a(f"v_mfma_f32_32x32x16_bf16 {vr(acc,16)}, {vr(AUXA16+4*j,4)}, {vr(AUXB16,4)}, {vr(acc,16)}")
        else:
            self.a(f"v_mfma_f32_32x32x8_bf16 {vr(acc,16)}, {vr(AUXA+2*j,2)}, {vr(AUXB,2)}, {vr(acc,16)}")

    def aux_hooks(self, hooks, nt, accs, double, s0, extra=()):
        L = self.stats_math(double) + list(extra)
        hooks.setdefault((s0, 0), []).append(lambda: self.drip.extend(L))
        sa = s0 + (len(L) + DRIP*nt - 1) // (DRIP*nt) + 1
        for j in range(nt):
            def mk(j):
                def f():
                    assert not self.drip
                    self.aux_mfma(accs[j], j, double)
                return f
            hooks.setdefault((sa, j), []).append(mk(j))

    def set_tl_128(self):
        a = self.a
        a(f"""s_lshl_b32 s{sTL}, s{sRB2}, 2
s_add_u32 s{sTL}, s{sTL}, s{sWAVE}""")
    def set_tl_64(self):
        a = self.a
        a(f"""s_lshl_b32 s{sTL}, s{sRB}, 1
s_add_u32 s{sTL}, s{sTL}, s{sT2}""")
    def tt_off(self, dst, base_sreg, tile_bytes):
        a = self.a
        a(f"""s_mul_i32 s{dst}, s{sTL}, {tile_bytes}
s_add_u32 s{dst}, s{dst}, s{base_sreg}""")

    def phase_qkv(self, c0):
        a = self.a
        a.c("================ QKV phase")
        for c in range(8): self.left[c0+c] = 20
        self.basechunk = {}
        def frag(s, j):
            c, u = divmod(s, 5)
            return (c0+c, 0, (u*3+j)*1024) if j < 3 else (c0+c, 1, 15360 + u*768)
        self.set_tl_128()
        a(f"""v_mov_b32 v{vP0}, v{vL16}
v_and_b32 v{vT}, 31, v{vLANE}
v_subrev_u32 v{vT+1}, 24, v{vT}
v_min_u32 v{vT}, v{vT}, v{vT+1}
v_lshlrev_b32 v{vT}, 4, v{vT}
v_mul_u32_u24 v{vP1}, 384, v{vH}
v_add_u32 v{vP1}, v{vP1}, v{vT}""")
        ops = self.make_ops(40, 4, QTAIL)
        self.stamp("x1e")
        self.first_w(ops, NB4, frag)
        self.stamp("x1f")
        self.poll(3, 16)
        self.stamp(8)
        self.tt_off(sT+6, sACTQ, 40960)
        accs = [ACC+16*j for j in range(4)]
        hooks = {}
        self.aux_hooks(hooks, 4, accs, False, 14, [f"v_mul_f32 v{20+2*jj}, v{20+2*jj}, v16" for jj in range(3)])
        if QTAIL:
            def mk(jj):
                def f():
                    self.rate = QRATE
                    b = sQA + 1 + 4*jj
                    for hf in range(2):
                        r = ACC + 16*jj + 8*hf
                        for k in range(4):
                            self.drip.append(f"v_mul_f32 v{r+2*k}, v{r+2*k}, v{20+2*jj}")
                            self.drip.append(f"v_mul_f32 v{r+2*k+1}, v{r+2*k+1}, v{20+2*jj}")
                            self.drip.append(f"v_cvt_pk_bf16_f32 v{r+k}, v{r+2*k}, v{r+2*k+1}")
                        self.drip.append(f"buffer_store_dwordx4 {vr(r,4)}, v{vSW}, s[{sWS}:{sWS+3}], s{b+hf} offen{QST}")
                return f
            for jj in range(3):
                hooks.setdefault(-(3-jj)*QTAIL + 3, []).append(mk(jj))
        self.gemm(ops, NB4, accs, frag, lambda s: s, sT+6, [False]*4, hooks, pre_stats=self.stats_load(sSTQ), nm='q', pre=[self.qkv_addr])
        self.rate = DRIP
        self.stamp(9)
        n = len(self.drip)
        for d in self.drip: a(d)
        self.drip = []
        if n < 12: a(f"s_nop {11 - n}")
        self.qkv_epilogue(range(0 if QTAIL else 3))
        self.stamp(10)

    def qkv_addr(self):
        a = self.a
        self.tt_off(sQA, sQOUT, 2560)
        for jj in range(3):
            b = sQA + 1 + 4*jj
            a(f"""s_mul_i32 s{sT+7}, s{sCB2}, 6
s_add_u32 s{sT+7}, s{sT+7}, {2*jj}
s_lshr_b32 s{sT+8}, s{sT+7}, 1
s_add_u32 s{sT+8}, s{sT+8}, 32
s_and_b32 s{sT+9}, s{sT+7}, 31
s_cmp_lt_u32 s{sT+7}, 32
s_cselect_b32 s{sT+8}, s{sT+8}, s{sT+9}
s_mov_b32 s{b+1}, 163840
s_cselect_b32 s{b+3}, 256, s{b+1}
s_cselect_b32 s{b+1}, 1024, s{b+1}
s_cselect_b32 s{sT+9}, {f2u(QSCALE):#x}, 1.0
v_mov_b32 v{20+2*jj}, s{sT+9}
s_mul_i32 s{sT+8}, s{sT+8}, 163840
s_add_u32 s{sT+8}, s{sT+8}, s{sQA}
s_cmp_ge_u32 s{sT+7}, 64
s_cselect_b32 s{b}, 1024, 0
s_cselect_b32 s{b+2}, 256, 0
s_add_u32 s{b}, s{b}, s{sT+8}
s_add_u32 s{b+2}, s{b+2}, s{sT+8}
s_add_u32 s{b+1}, s{b+1}, s{b}
v_mul_lo_u32 v{26+jj}, s{b+3}, v{vH}
v_add_u32 v{26+jj}, v{26+jj}, v{vTL}""")

    def qkv_epilogue(self, mains=range(3)):
        a = self.a
        for jj in mains:
            b = sQA + 1 + 4*jj
            for hf in range(2):
                r = ACC + 16*jj + 8*hf
                for k in range(4):
                    a(f"v_pk_mul_f32 {vr(r+2*k,2)}, {vr(r+2*k,2)}, {vr(20+2*jj,2)} op_sel_hi:[1,0]")
                for k in range(4):
                    a(f"v_cvt_pk_bf16_f32 v{r+k}, v{r+2*k}, v{r+2*k+1}")
                a(f"buffer_store_dwordx4 {vr(r,4)}, v{vSW}, s[{sWS}:{sWS+3}], s{b+hf} offen{QST}")
        for jj in range(3):
            b = sQA + 1 + 4*jj
            r = ACC + 48 + 4*jj
            for k in range(2):
                a(f"v_pk_mul_f32 {vr(r+2*k,2)}, {vr(r+2*k,2)}, {vr(20+2*jj,2)} op_sel_hi:[1,0]")
            for k in range(2):
                a(f"v_cvt_pk_bf16_f32 v{r+k}, v{r+2*k}, v{r+2*k+1}")
            a(f"buffer_store_dwordx2 {vr(r,2)}, v{26+jj}, s[{sWS}:{sWS+3}], s{b+2} offen{QST}")

    def unpack(self, dst, src, n):
        a = self.a
        for k in range(n):
            a(f"v_lshlrev_b32 v{dst+2*k}, 16, v{src+k}")
            a(f"v_and_b32 v{dst+2*k+1}, 0xffff0000, v{src+k}")

    def g16_patterns(self, dA, d5):
        self.a(f"""v_and_b32 v{vT}, 15, v{vLANE}
s_lshl_b32 s{sT}, s{sKH}, 4
v_lshrrev_b32 v{vT+1}, 4, v{vLANE}
v_add_u32 v{vT}, s{sT}, v{vT}
v_lshlrev_b32 v{d5}, 4, v{vT}
v_lshl_add_u32 v{dA}, v{vT+1}, 9, v{d5}
v_lshl_add_u32 v{d5}, v{vH}, 9, v{d5}""")

    def b2load(self):
        self.a(f"""s_mul_i32 s{sT}, s{sCB}, 160
v_lshrrev_b32 v{vT}, 4, v{vLANE}
v_lshlrev_b32 v{vT+1}, 3, v{vT}
v_lshlrev_b32 v{vT}, 4, v{vT}
buffer_load_dwordx4 v[24:27], v{vT}, s[{sB2}:{sB2+3}], s{sT} offen
buffer_load_dwordx4 v[28:31], v{vT}, s[{sB2}:{sB2+3}], s{sT} offen offset:64
buffer_load_dwordx2 v[32:33], v{vT+1}, s[{sB2}:{sB2+3}], s{sT} offen offset:128""")

    def gemm16(self, nsig, frag, sact, hooks, pre, nm):
        a = self.a
        nb = len(WF16)
        ops = [(sg, t, th) for sg in range(nsig - T16) for t in range(5) for th in (0, 1)]
        ops += [(sg, t, th) for th in (1, 0) for sg in range(nsig - T16, nsig) for t in range(5)]
        lastw, lasta = {}, {}
        for k, (sg, t, th) in enumerate(ops): lastw[5*sg+t] = k; lasta[2*sg+th] = k
        nact = 2*nsig; nxt = [0]; cur = [None]
        def aload():
            f = nxt[0]; nxt[0] += 1
            sg, th = divmod(f, 2)
            if cur[0] != sg // 2:
                cur[0] = sg // 2
                a(f"s_add_u32 s{sT+3}, s{sact}, {(sg//2)*8192}")
            a(f"buffer_load_dwordx4 {vr(ACT+4*(f%NACT),4)}, v{vP1+th}, s[{sWS}:{sWS+3}], s{sT+3} offen offset:{(sg%2)*2048} sc1")
            self.vm.issue(("act", f))
        for _ in range(NPRE16): aload()
        for h in pre: h()
        started = set()
        for k, (sg, t, th) in enumerate(ops):
            w = []
            n = self.vm.need(("act", 2*sg+th))
            if n is not None: w.append(f"vmcnt({n})")
            tags = [x for _, x in self.dsq]
            if 5*sg+t in tags:
                n = len(tags) - 1 - tags.index(5*sg+t)
                w.append(f"lgkmcnt({n})"); self.dsq = self.dsq[len(self.dsq)-n:] if n else []
            if w: a("s_waitcnt " + " ".join(w))
            d = (OWN, OTH)[th] + 4*t
            c = vr(d, 4) if (th == 0 or t in started) else "0"
            if th == 1: started.add(t)
            a(f"v_mfma_f32_16x16x32_bf16 {vr(d,4)}, {vr(WF16[(5*sg+t) % nb],4)}, {vr(ACT+4*((2*sg+th)%NACT),4)}, {c}")
            self.stamp(f"{nm}{k}")
            f = 5*sg + t
            if lastw[f] == k and f + nb < 5*nsig:
                self.wread(WF16[f % nb], *frag(f + nb), tag=f + nb)
            elif th == 0 and (t in (1, 3) or (t == 2 and sg % R16 == R16-1)) and nxt[0] < nact and (nxt[0] < NACT or lasta[nxt[0]-NACT] <= k):
                aload()
                if nxt[0] == nact and ("Z" + nm) in PLAN: self.barrier(tag="Z" + nm)
            for h in hooks.get(k - len(ops), []): h()
        assert nxt[0] == nact

    def phase_n80(self, which, c0, nchunks):
        a = self.a
        a.c(f"================ {'WO' if which == 0 else 'W2'} phase")
        for c in range(nchunks): self.left[c0+c] = 10
        self.basechunk = {}
        def frag(f):
            c, u = divmod(f, 10)
            return (c0+c, 0, u*1024)
        self.set_tl_64()
        self.g16_patterns(vP1, 22)
        a(f"""s_mul_i32 s{sT}, s{sKH}, 10240
v_add_u32 v{vP0}, s{sT}, v{vL16}
v_xor_b32 v{vP2}, 256, v{vP1}""")
        for f in range(len(WF16)): self.wread(WF16[f], *frag(f), tag=f)
        self.tt_off(sT+6, sOF if which == 0 else sHF, OSTR if which == 0 else 98304)
        a(f"s_lshl_b32 s{sT}, s{sKH}, 12\ns_add_u32 s{sT+6}, s{sT+6}, s{sT}")
        self.poll(0 if which == 0 else 2, 32 if which == 0 else 16)
        self.stamp(2 if which == 0 else 6)
        def addr():
            a(f"""s_mul_i32 s{sT}, s{sWAVE}, 5120
s_add_u32 s{sT}, s{sT}, {MISC}
v_add_u32 v20, s{sT}, v{vL16}
s_xor_b32 s{sT}, s{sWAVE}, 2
s_mul_i32 s{sT}, s{sT}, 5120
s_add_u32 s{sT}, s{sT}, {MISC}
v_add_u32 v21, s{sT}, v{vL16}
v_bfe_u32 v{vT}, v{vLANE}, 4, 1
v_lshlrev_b32 v{vT+1}, 30, v{vT}
v_add_u32 v35, v{vT+1}, v22
v_lshl_add_u32 v22, v{vT}, 3, v22""")
            self.tt_off(sQA, sX1F if which == 0 else sACTQ, 40960)
            self.tt_off(sQA+2, sST1 if which == 0 else sSTQ, 4096)
            a(f"""s_mul_i32 s{sT}, s{sCB}, 5120
s_add_u32 s{sQA}, s{sQA}, s{sT}
s_add_u32 s{sQA+1}, s{sQA}, 4096
s_lshl1_add_u32 s{sQA+3}, s{sCB}, s{sKH}
s_lshr_b32 s{sT}, s{sCB}, 2
s_lshl_b32 s{sT}, s{sT}, 10
s_add_u32 s{sQA+2}, s{sQA+2}, s{sT}
s_and_b32 s{sT}, s{sCB}, 3
s_lshl2_add_u32 s{sQA+2}, s{sT}, s{sQA+2}""")
            if which == 1:
                a(f"""v_and_b32 v{vT}, 15, v{vLANE}
s_lshl_b32 s{sT}, s{sKH}, 4
v_add_u32 v{vT}, s{sT}, v{vT}
v_mul_u32_u24 v{vT}, 1280, v{vT}
v_lshrrev_b32 v{vT+1}, 4, v{vLANE}
v_lshl_add_u32 v23, v{vT+1}, 4, v{vT}
v_lshl_add_u32 v34, v{vT+1}, 3, v{vT}
s_lshl3_add_u32 s{sQA+4}, s{sG}, s{sTL}
s_mul_i32 s{sQA+4}, s{sQA+4}, 40960
s_mul_i32 s{sT}, s{sCB}, 160
s_add_u32 s{sQA+4}, s{sQA+4}, s{sT}""")
        hooks = {}
        def wr(q):
            def f():
                a(f"ds_write_b128 v20, {vr(OTH+4*q,4)} offset:{1024*q}")
                self.dsq.append((None, ("xw", q)))
            return f
        for q in range(5):
            hooks.setdefault(-5*T16 + 3 + q, []).append(wr(q))
        self.gemm16(nchunks*2, frag, sT+6, hooks, [addr], 'ow'[which])
        self.stamp(3 if which == 0 else 7)
        self.lgkm(0)
        self.stamp(f"x{which}a")
        self.barrier(tag=f"X{which}")
        self.stamp(f"x{which}b")
        for q in range(5):
            a(f"ds_read_b128 {vr(OTH+4*q,4)}, v21 offset:{1024*q}")
        a("v_mov_b32 v16, 0\nv_mov_b32 v17, 0\nv_mov_b32 v18, 0\nv_mov_b32 v19, 0")
        lfin = a.label("fin")
        PK = PKR
        def block(p):
            n = 4 if p < 2 else 2
            a(f"s_waitcnt lgkmcnt({(3, 1, 0)[p]})")
            for k in range(n):
                a(f"v_pk_add_f32 {vr(OWN+8*p+2*k,2)}, {vr(OWN+8*p+2*k,2)}, {vr(OTH+8*p+2*k,2)}")
            for k in range(n):
                a(f"v_cvt_pk_bf16_f32 v{PK+4*p+k}, v{OWN+8*p+2*k}, v{OWN+8*p+2*k+1}")
        block(0)
        if which == 1:
            a(f"s_cmp_lg_u32 s{sLAST}, 0\ns_cbranch_scc1 {lfin}")
        a(f"buffer_store_dwordx4 {vr(PK,4)}, v{vP1}, s[{sWS}:{sWS+3}], s{sQA} offen")
        block(1)
        a(f"buffer_store_dwordx4 {vr(PK+4,4)}, v{vP1}, s[{sWS}:{sWS+3}], s{sQA} offen offset:2048")
        block(2)
        a(f"buffer_store_dwordx2 {vr(PK+8,2)}, v22, s[{sWS}:{sWS+3}], s{sQA+1} offen")
        for k in range(10):
            a(f"v_pk_add_f32 v[16:17], v[16:17], {vr(OWN+2*k,2)}")
            a(f"v_pk_fma_f32 v[18:19], {vr(OWN+2*k,2)}, {vr(OWN+2*k,2)}, v[18:19]")
        a(f"""v_add_f32 v16, v16, v17
v_add_f32 v18, v18, v19
s_nop 1
v_permlane32_swap_b32 v16, v18
s_nop 1
v_add_f32 v16, v16, v18
v_mov_b32 v17, v16
s_nop 1
v_permlane16_swap_b32 v16, v17
s_nop 1
v_add_f32 v16, v16, v17
buffer_store_dword v16, v35, s[{sWS}:{sWS+3}], s{sQA+2} offen""")
        self.stamp(f"x{which}c")
        self.publish(1 if which == 0 else 3, sQA+3)
        self.stamp(f"x{which}d")
        if which == 0:
            def rinit():
                for k in range(10):
                    self.unpack(OWN+2*k, PK+k, 1)
                    self.unpack(OTH, 24+k, 1)
                    a(f"v_pk_add_f32 {vr(OWN+2*k,2)}, {vr(OWN+2*k,2)}, {vr(OTH,2)}")
            self.deferred = [rinit]
        else:
            self.final_label = lfin
            self.final_block = block

    def final_out(self):
        a = self.a
        PK = PKR
        a(f"{self.final_label}:")
        a(f"buffer_store_dwordx4 {vr(PK,4)}, v23, s[{sOUT}:{sOUT+3}], s{sQA+4} offen")
        self.final_block(1)
        a(f"buffer_store_dwordx4 {vr(PK+4,4)}, v23, s[{sOUT}:{sOUT+3}], s{sQA+4} offen offset:64")
        self.final_block(2)
        a(f"buffer_store_dwordx2 {vr(PK+8,2)}, v34, s[{sOUT}:{sOUT+3}], s{sQA+4} offen offset:128")
        self.stamp(8)

    def phase_w1(self, c0):
        a = self.a
        a.c("================ W1 phase")
        for c in range(6): self.left[c0+c] = 20
        self.basechunk = {}
        def frag(s, j):
            c, u = divmod(3*s+j, 20)
            return (c0+c, 0, u*1024)
        self.set_tl_128()
        a(f"v_mov_b32 v{vP0}, v{vL16}")
        ops = self.make_ops(40, 3)
        self.stamp("x0e")
        self.first_w(ops, NB3, frag)
        self.stamp("x0f")
        self.poll(1, 16)
        self.stamp(4)
        self.tt_off(sT+6, sX1F, 40960)
        accs = [ACC+16*j for j in range(3)]
        hooks = {}
        k1 = -2.0*math.sqrt(2.0/math.pi)*math.log2(math.e)
        k3 = k1*0.044715
        consts = f"""v_mul_f32 v20, {f2u(k1):#x}, v16
v_mul_f32 v22, v16, v16
v_mul_f32 v22, v22, v16
v_mul_f32 v22, {f2u(k3):#x}, v22
v_mov_b32 v24, v17""".split("\n")
        self.aux_hooks(hooks, 3, accs, True, 14, consts)
        hooks.setdefault((26, 2), []).append(lambda: self.aux_load(False))
        def oaddr():
            self.tt_off(sQA, sHF, 98304)
            a(f"""s_mul_i32 s{sT}, s{sCB2}, 6144
s_add_u32 s{sQA}, s{sQA}, s{sT}
s_add_u32 s{sQA+1}, s{sQA}, 4096""")
        self.gemm(ops, NB3, accs, frag, lambda s: s, sT+6, [False]*3, hooks, pre_stats=self.stats_load(sST1), nm='f', pre=[oaddr] + self.deferred)
        self.stamp(5)
        if "E1" in PLAN: self.barrier(tag="E1")
        a("s_nop 9")
        T = ACT
        for blk in range(6):
            r = ACC + 8*blk
            t = T + 8*(blk % 2)
            for k in range(4):
                a(f"v_pk_mul_f32 {vr(t+2*k,2)}, {vr(r+2*k,2)}, {vr(r+2*k,2)}")
            for k in range(4):
                a(f"v_pk_fma_f32 {vr(t+2*k,2)}, {vr(t+2*k,2)}, v[22:23], v[20:21] op_sel_hi:[1,0,0]")
            for k in range(4):
                a(f"v_pk_mul_f32 {vr(t+2*k,2)}, {vr(t+2*k,2)}, {vr(r+2*k,2)}")
            for k in range(8):
                a(f"v_exp_f32 v{t+k}, v{t+k}")
            for k in range(4):
                a(f"v_pk_fma_f32 {vr(t+2*k,2)}, {vr(t+2*k,2)}, v[24:25], v[24:25] op_sel_hi:[1,0,0]")
            for k in range(8):
                a(f"v_rcp_f32 v{t+k}, v{t+k}")
            for k in range(4):
                a(f"v_pk_mul_f32 {vr(t+2*k,2)}, {vr(t+2*k,2)}, {vr(r+2*k,2)}")
            for k in range(4):
                a(f"v_cvt_pk_bf16_f32 v{r+k}, v{t+2*k}, v{t+2*k+1}")
            if blk >= GDEF:
                for b2 in (range(blk+1) if blk == GDEF else [blk]):
                    a(f"buffer_store_dwordx4 {vr(ACC+8*b2,4)}, v{vL16}, s[{sWS}:{sWS+3}], s{sQA + b2//4} offen offset:{(b2%4)*1024}")
        self.stamp("y1c")
        self.publish(2, sCB2)
        self.stamp("y1d")

    def dma_chunk_static(self, n):
        a = self.a
        if n < 8: base, k = sSRC, n
        elif n < 13: base, k = sWO, n-8
        elif n < 19: base, k = sW1, n-13
        elif n < 31: base, k = sW2, n-19
        else: base, k = sWQ, n-31
        a(f"s_add_u32 m0, s{sLDW}, {(n % NSLOT)*CH}\ns_add_u32 s{sT}, s{base}, {k*CH}")
        self.dma5(sT, " nt" if (n < 8 and KV_NT) else "")
    def dma5(self, so, fl=""):
        a = self.a
        for q in range(4):
            a(f"buffer_load_dwordx4 v{vL16}, s[{sWS}:{sWS+3}], s{so} offen offset:{1024*q} lds{fl}" if False else
              f"buffer_load_dwordx4 v{vL16}, s[{sWS}:{sWS+3}], s{so} offen offset:{1024*q}{fl} lds")
        a(f"s_add_u32 m0, m0, 4096\ns_add_u32 s{sT+1}, s{so}, 4096")
        a(f"buffer_load_dwordx4 v{vL16}, s[{sWS}:{sWS+3}], s{sT+1} offen{fl} lds")

    def loader(self, bars, issued, last, touches=None):
        a = self.a
        issued = list(issued)
        touches = touches or {}
        for bi, b in enumerate(bars):
            if b["need"] is not None:
                assert b["need"] in issued, (b, issued)
                n = 5*(len(issued) - 1 - issued.index(b["need"]))
                a(f"s_waitcnt vmcnt({n})")
            a("s_barrier")
            for f in b["free"]:
                nx = f + NSLOT
                if nx <= last and nx not in issued:
                    self.dma_chunk_static(nx); issued.append(nx)
            if bi in touches:
                w, base, off = touches[bi]
                l = a.label("tch")
                a(f"""s_cmp_lg_u32 s{sWAVE}, {w}
s_cbranch_scc1 {l}
s_add_u32 s{sT}, s{base}, {off}
buffer_load_dword v{vDUM}, v{vWRM}, s[{sWS}:{sWS+3}], s{sT} offen
{l}:""")

    def chunk_src(self, n):
        if n < 13: return sWO, n-8
        if n < 19: return sW1, n-13
        if n < 31: return sW2, n-19
        return sWQ, n-31
    def fifo_reg(self, e):
        return 112 + 20*e if e < 7 else 16 + 20*(e-7)
    def fifo_load(self, n, e):
        a = self.a
        r = self.fifo_reg(e)
        (b0, k0), (b1, k1) = self.chunk_src(FL[0][e]), self.chunk_src(FL[1][e])
        a(f"s_add_u32 s{sT}, s{b0}, {k0*CH}")
        if (b0, k0) != (b1, k1):
            a(f"s_add_u32 s{sT+1}, s{b1}, {k1*CH}\ns_cmp_lg_u32 s{sLAST}, 0\ns_cselect_b32 s{sT}, s{sT+1}, s{sT}")
        a(f"s_add_u32 s{sT+1}, s{sT}, 4096")
        for q in range(4):
            a(f"buffer_load_dwordx4 {vr(r+4*q,4)}, v{vL16}, s[{sWS}:{sWS+3}], s{sT} offen offset:{1024*q}")
        a(f"buffer_load_dwordx4 {vr(r+16,4)}, v{vL16}, s[{sWS}:{sWS+3}], s{sT+1} offen")

    def loader2(self, bars, last, plan, npre):
        a = self.a
        vm = VM()
        a(f"v_add_u32 v{vT}, s{sLDW}, v{vL16}")
        NE = 11
        ent = {F0+e: e for e in range(npre)}
        loadbar = {F0+e: -10 for e in range(npre)}
        free_e = list(range(npre, NE))
        nload = F0 + npre; nwrite = F0
        slotfree = set(); inlds = set(range(F0))
        wq = []
        log = []
        def wdone(c):
            nonlocal wq, free_e
            if c in wq:
                i = wq.index(c)
                n = 5*(len(wq) - 1 - i)
                a(f"s_waitcnt lgkmcnt({min(n, 15) if n <= 15 else 15})" if n <= 15 else "s_waitcnt lgkmcnt(15)")
                if n > 15:
                    i = len(wq) - 4
                for x in wq[:i+1]: free_e.append(ent[x])
                wq = wq[i+1:]
        for bi, b in enumerate(bars):
            if b["need"] is not None:
                nd = min(b["need"], last)
                assert all(c in inlds for c in range(nd+1)), (b, sorted(inlds), log)
                wdone(nd)
            a("s_barrier")
            acts = []
            for f in b["free"]: slotfree.add(f + NSLOT)
            k = plan.get(b["tag"], 0)
            def loads(k):
                nonlocal nload
                while k > 0 and nload <= last:
                    if not free_e:
                        if not wq: break
                        wdone(wq[0])
                    e = free_e.pop(0)
                    self.fifo_load(nload, e)
                    for q in range(5): vm.issue(("c", nload))
                    ent[nload] = e; loadbar[nload] = bi
                    acts.append(f"L{nload}"); nload += 1; k -= 1
                return k
            k0 = min(k, len(free_e))
            k -= k0; loads(k0)
            nw = 0
            while nwrite <= last and nwrite in slotfree and nwrite in ent and bi - loadbar[nwrite] >= WR_LAG and nw < plan.get("w" + b["tag"], 2):
                n = vm.need(("c", nwrite))
                if n is not None: a(f"s_waitcnt vmcnt({n})")
                r = self.fifo_reg(ent[nwrite])
                a(f"v_add_u32 v{vT+1}, {(nwrite % NSLOT)*CH}, v{vT}")
                for q in range(5):
                    a(f"ds_write_b128 v{vT+1}, {vr(r+4*q,4)} offset:{1024*q}")
                wq.append(nwrite); inlds.add(nwrite)
                acts.append(f"w{nwrite}"); nwrite += 1; nw += 1
            loads(k)
            log.append(f"{b['tag']}:{','.join(acts)}")
        assert nwrite == last + 1, (nwrite, last, log)
        if os.environ.get("VERBOSE"): print(" ".join(log))

    def loader3(self, bars, last, plan, f0):
        a = self.a
        vm = VM()
        a(f"v_add_u32 v{vT}, s{sLDW}, v{vL16}")
        ent = {c: e for e, c in enumerate(f0)}
        xl = {}
        for tag, cs in XFIFO.items():
            for c, e in cs:
                if c not in f0: ent[c] = e
        loaded = set(f0)
        slotfree = set(); prog = {c: 5 for c in range(15 if PRE13 else 13)}; wq = []; log = []
        for bi, b in enumerate(bars):
            if b["need"] is not None:
                nd = min(b["need"], last)
                assert all(prog.get(c, 0) == 5 for c in range(nd+1)), (b, prog, log)
                for c in range(nd, 12, -1):
                    n = vm.need(("c", c))
                    if n is not None: a(f"s_waitcnt vmcnt({n})")
                if any(c <= nd for c in wq):
                    i = max(i for i, c in enumerate(wq) if c <= nd)
                    a(f"s_waitcnt lgkmcnt({min(15, len(wq)-1-i)})")
                    wq = wq[i+1:]
            a("s_barrier")
            acts = []
            for f in b["free"]: slotfree.add(f + NSLOT)
            k = plan.get(b["tag"], plan["def"]); nw = plan.get("w" + b["tag"], plan["wdef"])
            thr = plan.get("t" + b["tag"], plan.get("tdef"))
            items = []
            for c in sorted(slotfree):
                if c > last or c in ent: continue
                while k > 0 and prog.get(c, 0) < 5:
                    q = prog.get(c, 0); items.append(("D", c, q)); prog[c] = q + 1; k -= 1
            witems = []
            for c in sorted(slotfree):
                if c > last or c not in loaded: continue
                while nw > 0 and prog.get(c, 0) < 5:
                    q = prog.get(c, 0); witems.append(("w", c, q)); prog[c] = q + 1; nw -= 1
            cur = None; curw = None
            def emit(it):
                nonlocal cur, curw
                kind, c, q = it
                if kind == "D":
                    base, kk = self.chunk_src(c)
                    if cur != (c, q // 4):
                        cur = (c, q // 4)
                        a(f"s_add_u32 m0, s{sLDW}, {(c % NSLOT)*CH + (q//4)*4096}\ns_add_u32 s{sT}, s{base}, {kk*CH + (q//4)*4096}")
                    if thr is not None and len(vm.q) > thr:
                        a(f"s_waitcnt vmcnt({thr})"); vm.q = vm.q[len(vm.q)-thr:] if thr else []
                    a(f"buffer_load_dwordx4 v{vL16}, s[{sWS}:{sWS+3}], s{sT} offen offset:{1024*(q%4)} lds")
                    vm.issue(("c", c))
                else:
                    if curw != c:
                        curw = c
                        n = vm.need(("x", c))
                        if n is not None: a(f"s_waitcnt vmcnt({n})")
                        a(f"v_add_u32 v{vT+1}, {(c % NSLOT)*CH}, v{vT}")
                    a(f"ds_write_b128 v{vT+1}, {vr(self.fifo_reg(ent[c])+4*q,4)} offset:{1024*q}")
                    wq.append(c)
                acts.append(f"{kind}{c}")
            for it in ([] if 'noD' in XP else items) + ([] if 'noW' in XP else witems): emit(it)
            for c, e in XFIFO.get(b["tag"], []):
                if c > last or c in f0: continue
                prev = [x for x in ent if ent[x] == e and x < c]
                assert all(prog.get(x, 0) == 5 for x in prev), (c, e)
                if any(x in wq for x in prev): a("s_waitcnt lgkmcnt(0)"); wq.clear()
                if 'noD' in XP: loaded.add(c); continue
                base, kk = self.chunk_src(c); r = self.fifo_reg(ent[c])
                a(f"s_add_u32 s{sT}, s{base}, {kk*CH}\ns_add_u32 s{sT+1}, s{base}, {kk*CH+4096}")
                for q in range(5):
                    a(f"buffer_load_dwordx4 {vr(r+4*q,4)}, v{vL16}, s[{sWS}:{sWS+3}], s{sT + q//4} offen offset:{1024*(q%4)}")
                    vm.issue(("x", c))
                loaded.add(c); acts.append(f"L{c}")
            import itertools
            log.append(f"{b['tag']}:" + ",".join(f"{k_}x{len(list(g_))}" for k_, g_ in itertools.groupby(acts)))
        assert all(prog.get(c, 0) == 5 for c in range(last+1)), log
        if os.environ.get("VERBOSE"): print(" ".join(log))

    def att_tile(self, t):
        a = self.a
        u = t % 8; cc = t // 8
        X, Y = SS[u % 2], SS[(u+1) % 2]
        e = lambda k: a(f"v_exp_f32 v{X+k}, v{X+k}")
        c = lambda k: a(f"v_cvt_pk_bf16_f32 v{P+k}, v{X+2*k}, v{X+2*k+1}")
        kt, vt = (u+2) % 8, (u+1) % 8
        vb = V1[(u+1) % 2]
        last = t == 63
        self.stamp(f"t{t}")
        upd = lambda q: a(f"v_mad_u32_u24 v{vVA+q}, s{sSLOT}, v{vMV}, v{vBV+q}")
        if u == 7 and not last: upd(2)
        e(0)
        a(f"v_cvt_pk_bf16_f32 v{P+7}, v{Y+14}, v{Y+15}")
        if u == 7 and not last: upd(3)
        e(1); e(2)
        a(f"v_mfma_f32_32x32x16_bf16 {vr(O,16)}, {vr(vb,4)}, {vr(P+4,4)}, {vr(O,16)}")
        if not last:
            a(f"ds_read_b64_tr_b16 {vr(vb,2)}, v{vVA+2} offset:{vt*2560}")
            a(f"ds_read_b64_tr_b16 {vr(vb+2,2)}, v{vVA+3} offset:{vt*2560}")
        if u == 7 and not last: upd(0); upd(1)
        c(0); e(3); e(4); c(1); e(5); e(6)
        a(f"s_waitcnt lgkmcnt({0 if last else 2})")
        if not last:
            a(f"v_mfma_f32_32x32x16_bf16 {vr(Y,16)}, {vr(K1,4)}, {vr(Q1,4)}, 0")
        if u == 6 and cc < 7:
            a(f"""s_mov_b32 s{sSLOT}, {((cc+1) % NSLOT)*CH}
v_add_u32 v{vK1}, s{sSLOT}, v{vBK1}
v_mad_u32_u24 v{vK2}, s{sSLOT}, v{vMK}, v{vBK2}""")
            if cc % 2 == 0 or cc == 1:
                n = self.avm.need(("c", cc+1))
                if t == S_FLAG: n = 0; self.avm.drain()
                if n is not None: a(f"s_waitcnt vmcnt({n})")
                a("s_barrier")
        if t == 2:
            n = self.avm.need(("c", 0))
            if n is not None: a(f"s_waitcnt vmcnt({n})")
            a("s_barrier")
        if t < 62:
            a(f"ds_read_b128 {vr(K1,4)}, v{vK1} offset:{kt*2560}")
        if t in PRIO: a(f"s_setprio {PRIO[t]}")
        self.att_round(2*t)
        c(2); e(7); e(8); c(3); e(9); e(10)
        if not last:
            a(f"v_mfma_f32_32x32x8_bf16 {vr(Y,16)}, {vr(K2,2)}, {vr(Q2,2)}, {vr(Y,16)}")
        if t < 62:
            a(f"ds_read_b64 {vr(K2,2)}, v{vK2} offset:{kt*2560}")
        self.att_side(t)
        self.att_round(2*t+1)
        c(4); e(11); e(12); c(5); e(13); e(14)
        a(f"v_mfma_f32_32x32x16_bf16 {vr(O,16)}, {vr(V0,4)}, {vr(P,4)}, {vr(O,16)}")
        if not last:
            a(f"ds_read_b64_tr_b16 {vr(V0,2)}, v{vVA} offset:{vt*2560}")
            a(f"ds_read_b64_tr_b16 {vr(V0+2,2)}, v{vVA+1} offset:{vt*2560}")
        c(6); e(15)

    def ool(self, cond, body):
        a = self.a
        lo, lb = a.label("ool"), a.label("back")
        a(f"{cond} {lo}\n{lb}:")
        sav = a.L; a.L = self.oolbuf
        a(f"{lo}:"); body(); a(f"s_branch {lb}")
        a.L = sav

    def att_round(self, slot):
        a = self.a
        if 'noside' in XP or slot not in ROUNDS: return
        kind, n, q = ROUNDS[slot]; t = slot // 2
        if kind == "S":
            if q == 0:
                a(f"""s_xor_b32 s{sT+4}, s{sG}, {n}
s_mul_i32 s{sDP}, s{sT+4}, {CH}
s_add_u32 s{sDP}, s{sDP}, s{sSRC}
s_sub_u32 s{sDP}, s{sDP}, s{sLDW}
s_mul_i32 s{sT+6}, s{sWAVE}, 2560
s_min_u32 s{sT+6}, s{sT+6}, {CH - 3072}
s_add_u32 s{sDP}, s{sDP}, s{sT+6}""")
                self.ool(f"s_cmp_eq_u32 s{sRDY}, 0\ns_cbranch_scc1", self.kv_check)
                a(f"s_add_u32 m0, s{sT+6}, {n*CH}\ns_nop 0")
            a(f"buffer_load_dwordx4 v{vL16}, s[{sWS}:{sWS+3}], s{sDP} offen offset:{1024*q} lds")
            self.avm.issue(("c", n))
        elif kind == "T":
            if q == 0:
                a(f"""s_lshl3_add_u32 s{sT}, s{sJ}, s{sWAVE}
s_mul_i32 s{sT}, s{sT}, 6144
s_mul_i32 s{sZP}, s{sG}, {AST}
s_add_u32 s{sZP}, s{sZP}, s{sT}
s_add_u32 s{sZP}, s{sZP}, {ARENA}
s_cmp_lg_u32 s{sLAST}, 0
s_cselect_b32 s{sZP}, {OOB}, s{sZP}""")
            r = self.fifo_reg(1)
            a(f"buffer_load_dwordx4 {vr(r,4)}, v{vL16 if q < 4 else vL16B}, s[{sWS}:{sWS+3}], s{sZP} offen offset:{1024*(q%4)}")
            self.avm.issue(("t", n))
        elif kind == "D":
            if q == 0:
                if n >= NSLOT: assert slot >= 2*(8*(n + 1 - NSLOT + 1) + 6), (slot, n)
                if n >= 7: assert t > S_POLL + 2
                if n < 8:
                    a(f"""s_add_u32 s{sT+4}, s{sROLE}, {n}
s_xor_b32 s{sT+4}, s{sT+4}, s{sG}
s_and_b32 s{sT+4}, s{sT+4}, 7
s_mul_i32 s{sDP}, s{sT+4}, {CH}
s_add_u32 s{sDP}, s{sDP}, s{sSRC}""")
                    self.ool(f"s_cmp_eq_u32 s{sRDY}, 0\ns_cbranch_scc1", self.kv_check)
                    if n == 7: a(f"s_cmp_lg_u32 s{sROLE}, 0\ns_cselect_b32 s{sDP}, s{sWO}, s{sDP}")
                else:
                    a(f"s_mul_i32 s{sDP}, s{sROLE}, {CH}\ns_add_u32 s{sDP}, s{sDP}, s{sWO}\ns_add_u32 s{sDP}, s{sDP}, {(n-8)*CH}")
                a(f"s_add_u32 m0, s{sLDR}, {(n % NSLOT)*CH}\ns_nop 0")
            if q < 4:
                a(f"buffer_load_dwordx4 v{vL16}, s[{sWS}:{sWS+3}], s{sDP} offen offset:{1024*q} lds")
            else:
                a(f"s_add_u32 m0, m0, 4096\ns_nop 0\nbuffer_load_dwordx4 v{vL16B}, s[{sWS}:{sWS+3}], s{sDP} offen lds")
            self.avm.issue(("c", n))
        else:
            assert t > S_POLL + 2
            if q == 0:
                (b0, k0), (b1, k1) = self.chunk_src(FL[0][n]), self.chunk_src(FL[1][n])
                a(f"s_add_u32 s{sFP}, s{b0}, {k0*CH}")
                if (b0, k0) != (b1, k1):
                    a(f"s_add_u32 s{sT}, s{b1}, {k1*CH}\ns_cmp_lg_u32 s{sLAST}, 0\ns_cselect_b32 s{sFP}, s{sT}, s{sFP}")
                if n == E_RES: src = f"s{sRES}"
                elif n in (E_C13, E_C14): a(f"s_add_u32 s{sT}, s{sW1}, {(n-E_C13)*CH}"); src = f"s{sT}"
                elif n in (E_T0, E_T1): a(f"s_add_u32 s{sT}, s{sAR}, {(n-E_T0)*2048}"); src = f"s{sT}"
                else: src = f"{OOB:#x}"
                a(f"s_cmp_eq_u32 s{sROLE}, 0\ns_cselect_b32 s{sFP}, {src}, s{sFP}")
            r = self.fifo_reg(n) + 4*q
            fl = " sc1" if n == E_RES else ""
            v0_, v1_ = (vRS, vRSB) if n == E_RES else (vL16, vL16B)
            if q < 4: a(f"buffer_load_dwordx4 {vr(r,4)}, v{v0_}, s[{sWS}:{sWS+3}], s{sFP} offen offset:{1024*q}{fl}")
            else: a(f"buffer_load_dwordx4 {vr(r,4)}, v{v1_}, s[{sWS}:{sWS+3}], s{sFP} offen{fl}")
            self.avm.issue(("f", n))

    def att_side(self, t):
        a = self.a
        if 'noside' in XP: return
        if t == XC_AT:
            a(f"""s_lshl_b32 s{sT}, s{sG}, 7
s_add_u32 s{sT}, s{sT}, {XCC}
buffer_load_dword v{vXC+1}, v{vXC+1}, s[{sWS}:{sWS+3}], s{sT} offen sc1""")
            self.avm.issue("xc")
        if any(k in "SD" and 1 < n < 8 and q == 0 and sl // 2 == t + 2 for sl, (k, n, q) in ROUNDS.items()):
            assert not (S_POLL - 2 <= t <= S_POLL + 2)
            self.ool(f"s_cmp_eq_u32 s{sRDY}, 0\ns_cbranch_scc1", self.kv_flags_load)
        self.strip_side(t)
        if t == RESX_AT:
            def resx():
                self.set_tl_64()
                srd(a, sSS, sXP, S*D*2)
                a(f"""s_lshl3_add_u32 s{sT}, s{sG}, s{sTL}
s_mul_i32 s{sT}, s{sT}, 40960
s_mul_i32 s{sT+1}, s{sCB}, 160
s_add_u32 s{sT}, s{sT}, s{sT+1}
s_lshl_b32 s{sT+1}, s{sKH}, 4
v_and_b32 v{vDUM}, 15, v{vLANE}
v_add_u32 v{vDUM}, s{sT+1}, v{vDUM}
v_mul_u32_u24 v{vDUM}, 1280, v{vDUM}
v_lshrrev_b32 v30, 4, v{vLANE}
v_lshl_add_u32 v31, v30, 3, v{vDUM}
v_lshl_add_u32 v{vDUM}, v30, 4, v{vDUM}
buffer_load_dwordx4 {vr(RX,4)}, v{vDUM}, s[{sSS}:{sSS+3}], s{sT} offen
buffer_load_dwordx4 {vr(RX+4,4)}, v{vDUM}, s[{sSS}:{sSS+3}], s{sT} offen offset:64
buffer_load_dwordx2 {vr(RX+8,2)}, v31, s[{sSS}:{sSS+3}], s{sT} offen offset:128
s_mov_b32 s{sTL}, s{sWAVE}""")
            assert all(sl < 2*t for sl, (k, n, q) in ROUNDS.items() if k == "F" and n == 0)
            self.ool(f"s_or_b32 s{sT}, s{sROLE}, s{sLAST}\ns_cbranch_scc0", resx)

    def pub_addr(self, stt, layer):
        self.a(f"""s_lshr_b32 s{sPUB}, s{stt}, 2
s_lshl_b32 s{sPUB}, s{sPUB}, 7
s_and_b32 s{sT}, s{stt}, 3
s_lshl2_add_u32 s{sPUB}, s{sT}, s{sPUB}
s_lshl_b32 s{sT}, s{sCB2}, 11
s_add_u32 s{sPUB}, s{sPUB}, s{sT}
s_add_u32 s{sPUB}, s{sPUB}, {QF + 32768*layer}""")

    def kv_flags_load(self):
        self.a(f"""buffer_load_dword v{vPL}, v{vXC}, s[{sWS}:{sWS+3}], s{sQFK} offen sc1
buffer_load_dword v{vPL+1}, v{vXC}, s[{sWS}:{sWS+3}], s{sQFV} offen sc1""")
    def kv_check(self):
        a = self.a
        l, lp = a.label("kc"), a.label("kp")
        a(f"""s_lshl_b32 s{sT+4}, s{sT+4}, 3
s_mov_b32 s{sT+5}, 0x100000
{lp}:
s_waitcnt vmcnt(0)
v_and_b32 v{vPL}, v{vPL}, v{vPL+1}
v_cmp_ne_u32 s[{sT+2}:{sT+3}], 0, v{vPL}
s_cmp_eq_u64 s[{sT+2}:{sT+3}], -1
s_cselect_b32 s{sRDY}, 1, 0
s_lshr_b64 s[{sT+2}:{sT+3}], s[{sT+2}:{sT+3}], s{sT+4}
s_and_b32 s{sT+2}, s{sT+2}, 0xff
s_cmp_eq_u32 s{sT+2}, 0xff
s_cbranch_scc1 {l}
s_sub_u32 s{sT+5}, s{sT+5}, 1
s_cbranch_scc1 {l}""")
        self.kv_flags_load()
        a(f"s_branch {lp}\n{l}:")

    def strip_side(self, t):
        a = self.a
        def only(ty, f):
            self.ool(f"s_cmp_ge_u32 s{sTy}, {ty}\ns_cbranch_scc1", f)
        def two(f4, f10):
            def body():
                l = a.label("st")
                f4()
                a(f"s_cmp_eq_u32 s{sTy}, 1\ns_cbranch_scc1 {l}")
                f10()
                a(f"{l}:")
            only(1, body)
        def loads(js):
            for j in js:
                a(f"""s_add_u32 s{sT+1}, s{sSo}, s{sBp}
buffer_load_dwordx2 {vr(SR+4*j,2)}, v{vSO}, s[{sSS}:{sSS+3}], s{sSo} offen
buffer_load_dwordx2 {vr(SR+4*j+2,2)}, v{vSO}, s[{sSS}:{sSS+3}], s{sT+1} offen
s_add_u32 s{sSo}, s{sSo}, s{sA}""")
        assert S_WR >= 14
        wr = lambda ks: [a(f"ds_write_b64 v{vSC}, {vr(SR+2*k,2)} offset:{512*(k % 14)}") for k in ks]
        rd = lambda ks: [a(f"ds_read_b64_tr_b16 {vr(SR+2*k,2)}, v{vSC} offset:{512*(k % 14)}") for k in ks]
        def st(js):
            for j in js:
                a(f"buffer_store_dwordx4 {vr(SR+4*j,4)}, v{vSD}, s[{sWS}:{sWS+3}], s{sDs} offen sc0 sc1\ns_add_u32 s{sDs}, s{sDs}, s{sSt if j % 2 else sSt0}")
        def aux():
            a(f"""s_cmp_ge_u32 s{sQd}, 2
s_cselect_b32 s{sT}, -1, 0
v_and_b32 v{CSA+1}, 0xffff0000, v{CSA}
v_sub_f32 v{CSA+3}, v{CSA}, v{CSA+1}
v_lshrrev_b32 v{CSA+2}, 16, v{CSA+1}
v_or_b32 v{CSA+2}, v{CSA+2}, v{CSA+1}
v_lshrrev_b32 v{CSA+3}, 16, v{CSA+3}
v_and_b32 v{vBI}, s{sT}, v{vBI}
v_lshl_or_b32 v{CSA+3}, v{vBI}, 16, v{CSA+3}
v_lshlrev_b32 v{CSA}, 30, v{vH}
v_add_u32 v{CSA}, v{CSA}, v{vL16}
buffer_store_dwordx2 {vr(CSA+2,2)}, v{CSA}, s[{sWS}:{sWS+3}], s{sAx} offen sc0 sc1""")
        mf = lambda js: [a(f"v_mfma_f32_32x32x16_bf16 {vr(CSA,16)}, {vr(ONE,4)}, {vr(SR+4*j,4)}, {'0' if j == 0 else vr(CSA,16)}") for j in js]
        def either(f1, f2):
            def body():
                l, le = a.label("e2"), a.label("ee")
                a(f"s_cmp_eq_u32 s{sTy}, 2\ns_cbranch_scc1 {l}")
                f1()
                a(f"s_branch {le}\n{l}:")
                f2()
                a(f"{le}:")
            only(1, body)
        def loads16(sg):
            a(f"""s_add_u32 s{sT+1}, s{sSo}, s{sBp}
buffer_load_dwordx4 {vr(SR+8*sg,4)}, v{vSO}, s[{sSS}:{sSS+3}], s{sSo} offen
buffer_load_dwordx4 {vr(SR+8*sg+4,4)}, v{vSO}, s[{sSS}:{sSS+3}], s{sT+1} offen
s_add_u32 s{sSo}, s{sSo}, s{sA}""")
        def wr16():
            for sg in range(2):
                for ab in range(2):
                    for p in range(2):
                        a(f"ds_write_b64 v{vSC}, {vr(SR+8*sg+4*p+2*ab,2)} offset:{512*(4*sg+2*ab+p)}")
        k = t - S_LD
        if k in (0, 1): either(lambda: loads16(k), lambda: loads([2*k, 2*k+1]))
        if k in (2, 3, 4): only(2, lambda: loads([2*k, 2*k+1]))
        k = t - S_WR
        if k == 0: either(lambda: (a("s_waitcnt vmcnt(0)"), wr16()), lambda: (a("s_waitcnt vmcnt(0)"), wr(range(8))))
        if k == 1: two(lambda: rd(range(8)), lambda: wr(range(8, 14)))
        if k == 2: two(lambda: st(range(4)), lambda: (wr(range(14, 20)), rd(range(8, 14))))
        if k == 3: only(2, lambda: (rd(range(14, 20)), st(range(4, 7)), mf(range(0, 3))))
        if k == 4: only(2, lambda: (st(range(7, 10)), mf(range(3, 6))))
        if k == 5: only(2, lambda: mf(range(6, 10)))
        if k == 6: only(2, aux)
        if t == S_FLAG:
            self.ool(f"s_or_b32 s{sT}, s{sWAVE}, s{sLAST}\ns_cbranch_scc0", lambda: a(f"""s_lshl_b32 s{sT}, s2, 2
s_add_u32 s{sT}, s{sT}, {WFL}
s_mov_b64 exec, 1
buffer_store_dword v{vMK}, v{vL16}, s[{sWS}:{sWS+3}], s{sT} offen sc0 sc1
s_mov_b64 exec, -1"""))
        assert WFL == 0
        chk = f"""v_and_b32 v{vPL}, v{vPL}, v{vPL+1}
v_and_b32 v{vPL+2}, v{vPL+2}, v{vPL+3}
v_and_b32 v{vPL}, v{vPL}, v{vPL+2}
v_cmp_eq_u32 vcc, 0, v{vPL}"""
        ld = f"buffer_load_dwordx4 {vr(vPL,4)}, v{vL16}, s[{sWS}:{sWS+3}], 0 offen sc1"
        if t == S_POLL:
            a(ld); self.avm.issue("pl")
        if t == S_POLL + 2:
            n = self.avm.need("pl")
            def retry():
                l, lp = a.label("pd"), a.label("pp")
                a(f"""s_mov_b32 s{sT+1}, 0x100000
{lp}:
{ld}
s_sub_u32 s{sT+1}, s{sT+1}, 1
s_cbranch_scc1 {l}
s_waitcnt vmcnt(0)
{chk}
s_cbranch_vccnz {lp}
{l}:""")
            self.ool(f"s_waitcnt vmcnt({n})\n{chk}\ns_cbranch_vccnz", retry)

    def strip_setup(self):
        a = self.a
        b4, r, sw, i, t0, t1 = 192, 193, 194, 195, 196, 197
        U = [90, 91, 93, 94]
        a(f"""s_load_dwordx2 s[52:53], s[0:1], 16
s_load_dwordx2 s[54:55], s[0:1], 48
s_load_dwordx4 s[56:59], s[0:1], 32
s_mov_b32 s{sTy}, 0
v_bfe_u32 v{b4}, v{vLANE}, 4, 1
v_bfe_u32 v{r}, v{vLANE}, 2, 2
v_and_b32 v{sw}, 1, v{vLANE}
v_lshlrev_b32 v{sw}, 1, v{sw}
v_bfe_u32 v{i}, v{vLANE}, 1, 1
v_or_b32 v{sw}, v{sw}, v{i}
v_and_b32 v{i}, 31, v{vLANE}
s_lshl_b32 s{sT}, s{sWAVE}, 12
s_add_u32 s{sT}, s{sT}, {7168 - 4096}
s_cmp_eq_u32 s{sWAVE}, 0
s_cselect_b32 s{sT}, 0, s{sT}
v_lshlrev_b32 v{vSC}, 3, v{vLANE}
v_add_u32 v{vSC}, s{sT}, v{vSC}
v_mov_b32 v{ONE}, 0x3f803f80
v_mov_b32 v{ONE+1}, 0x3f803f80
v_mov_b32 v{ONE+2}, 0x3f803f80
v_mov_b32 v{ONE+3}, 0x3f803f80
s_waitcnt lgkmcnt(0)
s_mov_b32 s{sSS}, s56
s_and_b32 s{sSS+1}, s57, 0xffff
s_mov_b32 s{sSS+2}, 0
s_mov_b32 s{sSS+3}, 0x20000
s_mov_b32 s{sBS}, s58
s_and_b32 s{sBS+1}, s59, 0xffff
s_mov_b32 s{sBS+2}, {F*2}
s_mov_b32 s{sBS+3}, 0x20000
s_cmp_lg_u32 s{sWAVE}, 0
s_cbranch_scc1 L_st_n80a
s_cmp_ge_u32 s2, 240
s_cbranch_scc1 L_st_done
s_cmp_ge_u32 s2, 192
s_cbranch_scc1 L_st_n80b
s_mov_b32 s{sTy}, 2
s_mov_b32 s{sSS}, s56
s_and_b32 s{sSS+1}, s57, 0xffff
s_mov_b32 s{sSS+2}, {D*F*2}
s_bfe_u32 s{U[0]}, s2, 0x10002
s_mul_i32 s{U[0]}, s{U[0]}, 24
s_add_u32 s{U[0]}, s{U[0]}, s{sJ}              ; strip
s_and_b32 s{sQd}, s2, 3
s_mul_i32 s{U[1]}, s{U[0]}, 0x5556
s_lshr_b32 s{U[1]}, s{U[1]}, 16            ; cb
s_mul_i32 s{U[2]}, s{U[1]}, 3
s_sub_u32 s{U[2]}, s{U[0]}, s{U[2]}           ; tile
s_lshl_b32 s{U[0]}, s{U[0]}, 5                 ; col0
v_lshlrev_b32 v{t0}, 4, v{b4}
v_lshl_add_u32 v{t0}, v{sw}, 2, v{t0}
v_add_u32 v{t0}, s{U[0]}, v{t0}
v_lshl_add_u32 v{t1}, v{vH}, 3, v{r}
v_mul_u32_u24 v{vSO}, 3072, v{t1}
v_lshl_add_u32 v{vSO}, v{t0}, 1, v{vSO}
s_mov_b32 s{sA}, {16*3072}
s_mov_b32 s{sBp}, {4*3072}
s_mul_i32 s{sSo}, s{sQd}, {160*3072}
v_and_b32 v{t0}, 19, v{i}
v_bfe_u32 v{t1}, v{i}, 2, 1
v_lshl_or_b32 v{t0}, v{t1}, 3, v{t0}
v_bfe_u32 v{t1}, v{i}, 3, 1
v_lshl_or_b32 v{t0}, v{t1}, 2, v{t0}
v_add_u32 v{t0}, s{U[0]}, v{t0}
v_lshlrev_b32 v{vBI}, 1, v{t0}
buffer_load_ushort v{vBI}, v{vBI}, s[{sBS}:{sBS+3}], 0 offen
v_mov_b32 v{vSD}, v{vL16}
s_mul_i32 s{sDs}, s{U[1]}, 122880
s_mul_i32 s{sT}, s{sQd}, 30720
s_add_u32 s{sDs}, s{sDs}, s{sT}
s_lshl_b32 s{sT}, s{U[2]}, 10
s_add_u32 s{sDs}, s{sDs}, s{sT}
s_add_u32 s{sDs}, s{sDs}, {W1_F}
s_mov_b32 s{sSt}, 3072
s_lshl_b32 s{sAx}, s{U[1]}, 12
s_add_u32 s{sAx}, s{sAx}, s{sT}
s_lshr_b32 s{sT}, s{sQd}, 1
s_lshl_b32 s{sT}, s{sT}, 9
s_add_u32 s{sAx}, s{sAx}, s{sT}
s_and_b32 s{sT}, s{sQd}, 1
s_lshl_b32 s{sT}, s{sT}, 3
s_add_u32 s{sAx}, s{sAx}, s{sT}
s_add_u32 s{sAx}, s{sAx}, {AUX1}
s_mov_b32 s{sSt0}, s{sSt}
s_branch L_st_done
L_st_n80b:
s_sub_u32 s{sT}, s2, 192
s_mul_i32 s{U[0]}, s{sT}, 0x5556
s_lshr_b32 s{U[0]}, s{U[0]}, 16
s_mul_i32 s{U[1]}, s{U[0]}, 3
s_sub_u32 s{U[1]}, s{sT}, s{U[1]}          ; tile
s_and_b32 s{U[2]}, s{U[0]}, 7                ; cb
s_lshr_b32 s{U[3]}, s{U[0]}, 3
s_add_u32 s{U[3]}, s{U[3]}, 32
s_branch L_st_n80
L_st_n80a:
s_and_b32 s{U[2]}, s{sJ}, 7
s_and_b32 s{U[3]}, s{sJ}, 24
s_add_u32 s{U[3]}, s{U[3]}, s{sG}
s_sub_u32 s{U[1]}, s{sWAVE}, 1
L_st_n80:
s_mov_b32 s{sTy}, 1
s_mov_b32 s{sBp}, {4*1280}
s_cmp_lt_u32 s{U[3]}, 10
s_cbranch_scc1 L_st_wo
s_sub_u32 s{U[3]}, s{U[3]}, 10
s_mov_b32 s{sSS}, s54
s_and_b32 s{sSS+1}, s55, 0xffff
s_mov_b32 s{sSS+2}, {F*D*2}
s_mov_b32 s{sA}, {32*1280}
s_mul_i32 s{sSo}, s{U[3]}, {64*1280}
s_mul_i32 s{sDs}, s{U[2]}, 245760
s_add_u32 s{sDs}, s{sDs}, {W2_F}
s_mov_b32 s{sQd}, 16
s_mov_b32 s{sAx}, 8
s_branch L_st_go
L_st_wo:
s_mov_b32 s{sSS}, s52
s_and_b32 s{sSS+1}, s53, 0xffff
s_mov_b32 s{sSS+2}, {D*D*2}
s_mul_i32 s{sDs}, s{U[2]}, 102400
s_add_u32 s{sDs}, s{sDs}, {WO_F}
s_mov_b32 s{sA}, {40*1280}
s_mul_i32 s{sSo}, s{U[3]}, {80*1280}
s_mov_b32 s{sQd}, 20
s_mov_b32 s{sAx}, 8
s_cmp_lt_u32 s{U[3]}, 8
s_cbranch_scc1 L_st_go
s_mov_b32 s{sA}, {160*1280}
s_mov_b32 s{sBp}, {20*1280}
s_sub_u32 s{sSo}, s{U[3]}, 8
s_mul_i32 s{sSo}, s{sSo}, {320*1280}
s_add_u32 s{sSo}, s{sSo}, {16*1280}
s_mov_b32 s{sQd}, 80
s_mov_b32 s{sAx}, 40
L_st_go:
v_mul_lo_u32 v{vSO}, s{sQd}, v{vH}
v_mul_lo_u32 v{t0}, s{sAx}, v{b4}
v_add3_u32 v{vSO}, v{vSO}, v{t0}, v{r}
v_mul_u32_u24 v{vSO}, 1280, v{vSO}
s_mul_i32 s{sT}, s{U[2]}, 160
s_lshl_b32 s{sT+1}, s{U[1]}, 6
s_add_u32 s{sT}, s{sT}, s{sT+1}
s_add_u32 s{sSo}, s{sSo}, s{sT}
s_mul_i32 s{U[3]}, s{U[3]}, 10240
s_add_u32 s{sDs}, s{sDs}, s{U[3]}
s_lshl_b32 s{sT}, s{U[1]}, 11
s_add_u32 s{sDs}, s{sDs}, s{sT}
s_cmp_eq_u32 s{U[1]}, 2
s_cselect_b32 s{sT+1}, 8, 16
s_mov_b32 s{sSt0}, {OOB}
s_cselect_b32 s{sSt0}, s{sSt0}, 1024
s_sub_u32 s{sSt}, 5120, s{sSt0}
v_and_b32 v{t0}, 3, v{vLANE}
v_mul_lo_u32 v{t0}, s{sT+1}, v{t0}
v_add_u32 v{vSO}, v{vSO}, v{t0}
v_mov_b32 v{vSD}, v{vL16}
L_st_done:
""")
        a("s_load_dwordx2 s[52:53], s[0:1], 56\ns_waitcnt lgkmcnt(0)")
        srd(a, sB2, 52, D*2)

    def split3(self, m):
        a = self.a
        a(f"""
v_sub_f32 v{vT}, 0, v{m}
v_and_b32 v{vT+1}, 0xffff0000, v{vT}
v_sub_f32 v{vT}, v{vT}, v{vT+1}
v_and_b32 v{vT+2}, 0xffff0000, v{vT}
v_sub_f32 v{vT}, v{vT}, v{vT+2}
v_lshrrev_b32 v{vT+1}, 16, v{vT+1}
v_cmp_gt_u32 vcc, 32, v{vLANE}
v_or_b32 v{vT+1}, v{vT+1}, v{vT+2}
v_lshrrev_b32 v{vT}, 16, v{vT}
v_cndmask_b32 v{Q2}, v{vT+1}, v{Q2}, vcc
v_cndmask_b32 v{Q2+1}, v{vT}, v{Q2+1}, vcc
""")

    def rowmax16(self, X, dst, init=None):
        a = self.a
        if init is None:
            a(f"v_max3_f32 v{dst}, v{X}, v{X+1}, v{X+2}")
            a(f"v_max_f32 v{dst}, v{dst}, v{X+3}")
            k0 = 4
        else:
            k0 = 0
        for k in range(k0, 16, 2):
            a(f"v_max3_f32 v{dst}, v{dst}, v{X+k}, v{X+k+1}")
    def crosshalf_max(self, m):
        a = self.a
        a(f"""v_mov_b32 v{vT}, v{m}
s_nop 1
v_permlane32_swap_b32 v{m}, v{vT}
s_nop 1
v_max_f32 v{m}, v{m}, v{vT}""")

    def tpos(self, dst, tok, tmp):
        self.a(f"""v_and_b32 v{dst}, 3, v{tok}
v_bfe_u32 v{tmp}, v{tok}, 3, 1
v_lshl_or_b32 v{dst}, v{tmp}, 2, v{dst}
v_bfe_u32 v{tmp}, v{tok}, 2, 1
v_lshl_or_b32 v{dst}, v{tmp}, 3, v{dst}
v_and_b32 v{tmp}, 16, v{tok}
v_or_b32 v{dst}, v{dst}, v{tmp}
v_xor_b32 v{dst}, {8 + 256}, v{dst}
v_lshlrev_b32 v{dst}, 3, v{dst}""")

    def attention(self):
        a = self.a
        a.c("================ attention")
        l1, l2, l3 = a.label("p1"), a.label("p2"), a.label("p3")
        a(f"""
v_and_b32 v{vT}, 19, v{vLANE}
v_bfe_u32 v{vT+1}, v{vLANE}, 2, 1
v_lshl_or_b32 v{vT}, v{vT+1}, 3, v{vT}
v_bfe_u32 v{vT+1}, v{vLANE}, 3, 1
v_lshl_or_b32 v{vT}, v{vT+1}, 2, v{vT}        ; pi
v_lshlrev_b32 v{vT+1}, 3, v{vH}
v_xor_b32 v{vT+1}, v{vT+1}, v{vT}
v_lshlrev_b32 v{vT+1}, 4, v{vT+1}
v_lshl_add_u32 v{vBK1}, v{vH}, 9, v{vT+1}      ; K1 base
""")
        self.tpos(vBK2, vT, vT+1)
        a(f"""v_lshlrev_b32 v{vT}, 30, v{vH}
v_add_u32 v31, v{vT}, v{vBK2}
v_add_u32 v30, v{vT}, v{vTL}""")
        a(f"""
s_mov_b32 s{sTL}, s{sWAVE}
s_mul_i32 s{sT}, s{sWAVE}, 2560
s_add_u32 s{sT}, s{sT}, {MISC}
v_lshlrev_b32 v{vT}, 3, v{vLANE}
v_add_u32 v{vT}, s{sT}, v{vT}
v_and_b32 v{vT+1}, 7, v{vLANE}
v_cmp_eq_u32 vcc, 2, v{vT+1}
v_mov_b32 v22, 0x3f803f80
v_mov_b32 v23, 0x3f80
v_cndmask_b32 v{vT+3}, 0, v22, vcc
v_cmp_eq_u32 vcc, 0, v{vT+1}
v_lshrrev_b32 v{vXC}, 2, v{vLANE}
v_lshlrev_b32 v{vXC}, 5, v{vXC}
v_and_or_b32 v{vXC}, v{vLANE}, 3, v{vXC}
v_lshlrev_b32 v{vXC}, 2, v{vXC}
v_cndmask_b32 v{vT+2}, v{vT+3}, v23, vcc
ds_write_b64 v{vT}, {vr(vT+2,2)}
v_mov_b32 v{vT+1}, {MISC + 16}
v_cmp_gt_u32 vcc, 32, v{vLANE}
v_sub_u32 v{vMK}, 1, v{vH}
s_nop 0
v_cndmask_b32 v{vBK2}, v{vT+1}, v{vBK2}, vcc     ; K2 base
""")
        def rest():
            a(f"""
v_bfe_u32 v{vT}, v{vLANE}, 2, 2               ; r
v_and_b32 v{vT+1}, 1, v{vLANE}                 ; c&1
v_xor_b32 v{vT+2}, v{vT+1}, v{vH}
v_lshl_add_u32 v{vT+2}, v{vT+2}, 3, v{vT}
v_lshlrev_b32 v{vT+2}, 4, v{vT+2}
v_lshl_add_u32 v{vT+2}, v{vT+1}, 9, v{vT+2}
v_bfe_u32 v{vT+1}, v{vLANE}, 1, 1
v_lshl_add_u32 v{vT+2}, v{vT+1}, 3, v{vT+2}    ; main (m=0,p=0) - 1024
v_lshlrev_b32 v{vT}, 3, v{vT}
v_lshl_add_u32 v{vT}, v{vH}, 5, v{vT}
v_xor_b32 v{vT+1}, 1, v{vT+1}
v_lshlrev_b32 v{vT+1}, 3, v{vT+1}
v_and_b32 v{vT+3}, 16, v{vLANE}
v_cmp_eq_u32 s[{sT}:{sT+1}], 0, v{vT+3}
v_and_b32 v{vT+3}, 19, v{vLANE}
v_cmp_lt_u32 vcc, 16, v{vT+3}
v_mov_b32 v{vT+3}, 1
s_nop 0
v_cndmask_b32 v{vMV}, v{vT+3}, 0, vcc
""")
            for m in range(2):
                for p in range(2):
                    d = vBV + 2*m + p
                    a(f"""v_add_u32 v22, {1024 + 256*m + 64*p}, v{vT+2}
v_add_u32 v23, {2048 + 256 + 128*m + 64*(1-p)}, v{vT}
v_add_u32 v{vT+3}, {MISC + 64*(1-p) + 128*(1-m)}, v{vT+1}
v_cndmask_b32 v{d}, v23, v22, s[{sT}:{sT+1}]
v_cndmask_b32 v{d}, v{d}, v{vT+3}, vcc
v_mov_b32 v{vVA+2*m+p}, v{d}""")
            a(f"v_mov_b32 v{vK1}, v{vBK1}\nv_mov_b32 v{vK2}, v{vBK2}")
            for k in range(16): a(f"v_mov_b32 v{O+k}, 0")
            for k in range(4): a(f"v_mov_b32 v{V1[1]+k}, 0")
            for k in range(4): a(f"v_mov_b32 v{P+4+k}, 0")
            a(f"v_mov_b32 v{SS[1]+14}, 0\nv_mov_b32 v{SS[1]+15}, 0")
            a(f"""
s_and_b32 s{sT+1}, s{sWAVE}, 3
s_lshl2_add_u32 s{sT}, s{sJ}, s{sT+1}          ; q
s_mul_i32 s{sT}, s{sT}, 6528
s_add_u32 s{sAR}, s{sAR}, s{sT}
s_lshl1_add_u32 s{sT}, s{sRB}, s{sT2}
s_mul_i32 s{sT}, s{sT}, 40960
s_mul_i32 s{sT+1}, s{sCB}, 5120
s_add_u32 s{sRES}, s{sRES}, s{sT}
s_add_u32 s{sRES}, s{sRES}, s{sT+1}
v_add_u32 v{vL16B}, 4096, v{vL16}
v_and_b32 v{vXC+1}, 31, v{vLANE}
v_lshlrev_b32 v{vXC+1}, 2, v{vXC+1}
s_lshr_b32 s{sT+6}, s{sJ}, 1
s_add_u32 s{sT+6}, s{sT+6}, 32
s_mul_i32 s{sT+6}, s{sT+6}, 163840
s_lshl3_add_u32 s{sT+7}, s{sG}, s{sWAVE}
s_mul_i32 s{sT+7}, s{sT+7}, 2560
s_add_u32 s{sT+6}, s{sT+6}, s{sT+7}
s_add_u32 s{sT+6}, s{sT+6}, s{sQIN}
s_and_b32 s{sT+7}, s{sJ}, 1
s_lshl_b32 s{sT+8}, s{sT+7}, 10
s_add_u32 s{sT+8}, s{sT+8}, s{sT+6}          ; Q main
s_lshl_b32 s{sT+7}, s{sT+7}, 8
s_add_u32 s{sT+7}, s{sT+7}, s{sT+6}          ; Q tail
s_mul_i32 s{sT+9}, s{sJ}, 163840
s_add_u32 s{sT+9}, s{sT+9}, s{sQIN}
s_mul_i32 s{sT+6}, s{sG}, {CH}
s_add_u32 s{sT+9}, s{sT+9}, s{sT+6}          ; first K/V chunk (own row block)
""")
        a(f"""s_mov_b32 s{sTy}, 0
s_cmp_ge_u32 s{sWAVE}, 4
s_cbranch_scc1 {l1}
v_mov_b32 v{vT}, 0
s_waitcnt vmcnt(0)
s_mov_b64 exec, 1
s_cmp_eq_u32 s{sLAST}, 0
s_cbranch_scc1 {l1}g
s_cmp_lg_u32 s{sSLOW}, 0
s_cbranch_scc1 {l1}s
buffer_store_dword v{vMK}, v{vT}, s[{sWS}:{sWS+3}], s{sRDY} offen
s_branch {l1}g
{l1}s:
buffer_store_dword v{vMK}, v{vT}, s[{sWS}:{sWS+3}], s{sRDY} offen sc0 sc1
{l1}g:
buffer_store_dword v{vMK}, v{vT}, s[{sWS}:{sWS+3}], s{sPUB} offen sc0 sc1
s_mov_b64 exec, -1
s_barrier
""")
        self.stamp("pub")
        a(f"s_cmp_lg_u32 s{sLAST}, 0\ns_cbranch_scc1 L_st_skip")
        self.strip_setup()
        a("L_st_skip:")
        rest()
        lp = a.label("qp")
        a(f"""s_branch {l2}
{l1}:""")
        rest()
        a(f"""s_cmp_lg_u32 s{sWAVE}, 4
s_cbranch_scc1 {l1}o
v_lshrrev_b32 v{vPL+1}, 3, v{vLANE}
v_mov_b32 v{vPL+2}, s{sPUB}
v_mov_b32 v{vPL+3}, s{sQFK}
v_cmp_eq_u32 vcc, 1, v{vPL+1}
v_and_b32 v{vPL}, 7, v{vLANE}
s_nop 0
v_cndmask_b32 v{vPL+2}, v{vPL+2}, v{vPL+3}, vcc
v_mov_b32 v{vPL+3}, s{sQFV}
v_cmp_eq_u32 vcc, 2, v{vPL+1}
s_lshl_b32 s{sT+4}, s{sG}, 8
s_nop 0
v_cndmask_b32 v{vPL+2}, v{vPL+2}, v{vPL+3}, vcc     ; row base
s_cmp_lg_u32 s{sLAST}, 0
s_cbranch_scc1 {l1}l
v_and_b32 v{vPL+1}, 0x8c, v{vXC}
v_add_u32 v{vPL+2}, v{vPL+2}, v{vPL+1}
s_branch {l1}p
{l1}l:
v_bfe_u32 v{vPL+2}, v{vPL+2}, 11, 4
v_lshlrev_b32 v{vPL+2}, 2, v{vPL+2}
v_lshl_add_u32 v{vPL+2}, v{vPL}, 7, v{vPL+2}
s_add_u32 s{sT+4}, s{sFLG}, 3072
{l1}p:
s_mov_b32 s{sT+5}, 0x100000
s_barrier
{lp}:
buffer_load_dword v{vPL}, v{vPL+2}, s[{sWS}:{sWS+3}], s{sT+4} offen sc1
s_sub_u32 s{sT+5}, s{sT+5}, 1
s_cbranch_scc1 {l2}
s_waitcnt vmcnt(0)
v_cmp_eq_u32 vcc, 0, v{vPL}
s_cbranch_vccnz {lp}
s_branch {l2}
{l1}o:
s_barrier
{l2}:
s_load_dwordx2 s[{sXP}:{sXP+1}], s[0:1], 0
s_barrier
""")
        self.stamp("rdy")
        a(f"s_mov_b32 s{sRDY}, 0")
        a(f"""buffer_load_dwordx4 {vr(Q1,4)}, v{vSW}, s[{sWS}:{sWS+3}], s{sT+8} offen sc1
buffer_load_dwordx4 {vr(K1,4)}, v{vBK1}, s[{sWS}:{sWS+3}], s{sT+9} offen
buffer_load_dwordx2 {vr(Q2,2)}, v30, s[{sWS}:{sWS+3}], s{sT+7} offen sc1
buffer_load_dwordx2 {vr(K2,2)}, v31, s[{sWS}:{sWS+3}], s{sT+9} offen
""")
        lw = a.label("w")
        def dma0():
            a(f"s_mov_b32 m0, s{sLDW}\ns_add_u32 s{sT}, s{sT+9}, s{sLDW}")
            self.dma5(sT)
        a(f"""v_cmp_gt_u32 vcc, 32, v{vLANE}
v_mov_b32 v22, 0x3f803f80
s_and_b32 s{sT+6}, s{sWAVE}, 6
s_cmp_lg_u32 s{sT+6}, 4
s_cbranch_scc1 {l3}""")
        dma0()
        a(f"""s_waitcnt vmcnt(5)
s_branch {lw}
{l3}:
s_waitcnt vmcnt(0)
s_cmp_lt_u32 s{sWAVE}, 6
s_cbranch_scc1 {lw}""")
        dma0()
        a(f"""{lw}:
v_cndmask_b32 v{K2}, v22, v{K2}, vcc
v_cndmask_b32 v{K2+1}, v22, v{K2+1}, vcc
v_mfma_f32_32x32x16_bf16 {vr(SS[0],16)}, {vr(K1,4)}, {vr(Q1,4)}, 0
s_nop 0
v_mfma_f32_32x32x8_bf16 {vr(SS[0],16)}, {vr(K2,2)}, {vr(Q2,2)}, {vr(SS[0],16)}
s_nop 12
""")
        self.rowmax16(SS[0], 22)
        self.crosshalf_max(22)
        self.split3(22)
        a(f"""
s_nop 1
v_mfma_f32_32x32x16_bf16 {vr(SS[0],16)}, {vr(K1,4)}, {vr(Q1,4)}, 0
v_mfma_f32_32x32x8_bf16 {vr(SS[0],16)}, {vr(K2,2)}, {vr(Q2,2)}, {vr(SS[0],16)}
""")
        self.stamp("attP")
        self.g16_patterns(vRS, vRSB)
        a(f"""v_add_u32 v{vRSB}, 4096, v{vRSB}
s_cmp_lg_u32 s{sROLE}, 0
s_cselect_b64 vcc, -1, 0
s_nop 1
v_cndmask_b32 v{vRS}, v{vRS}, v{vL16}, vcc
v_cndmask_b32 v{vRSB}, v{vRSB}, v{vL16B}, vcc""")
        self.avm = VM()
        if HALF0:
            a(f"s_and_b32 s{sT}, s{sWAVE}, 6\ns_cmp_lg_u32 s{sT}, 4\ns_cbranch_scc1 {lw}y\ns_waitcnt vmcnt(0)\n{lw}y:")
            for q in range(5): self.avm.issue(("c", 0))
        else:
            a(f"s_cmp_lt_u32 s{sWAVE}, 4\ns_cbranch_scc1 {lw}y\ns_waitcnt vmcnt(0)\n{lw}y:")
        a("s_waitcnt lgkmcnt(0)\ns_barrier")
        self.stamp(0)
        a(f"""
ds_read_b64_tr_b16 {vr(V1[0],2)}, v{vVA+2}
ds_read_b64_tr_b16 {vr(V1[0]+2,2)}, v{vVA+3}
ds_read_b128 {vr(K1,4)}, v{vK1} offset:2560
ds_read_b64 {vr(K2,2)}, v{vK2} offset:2560
ds_read_b64_tr_b16 {vr(V0,2)}, v{vVA}
ds_read_b64_tr_b16 {vr(V0+2,2)}, v{vVA+1}
s_setprio 3
s_nop 3
""")
        self.kv_flags_load(); self.avm.issue("kf"); self.avm.issue("kf")
        self.stamp("attL")
        for t in range(64): self.att_tile(t)
        a("s_nop 0")
        self.stamp("attX")
        a(f"""v_cvt_pk_bf16_f32 v{P+7}, v{SS[1]+14}, v{SS[1]+15}
s_setprio 0
s_nop 0
v_mfma_f32_32x32x16_bf16 {vr(O,16)}, {vr(V1[1],4)}, {vr(P+4,4)}, {vr(O,16)}
""")
        self.tt_off(sT+4, sOF, OSTR)
        a(f"""
s_lshl_b32 s{sT+5}, s{sJ}, 10
s_add_u32 s{sT+5}, s{sT+5}, s{sT+4}
s_lshr_b32 s{sT+6}, s{sJ}, 1
s_lshl_b32 s{sT+6}, s{sT+6}, 9               ; (head/4)*1024 + ((head%4)/2)*512
s_add_u32 s{sT+4}, s{sT+4}, s{sT+6}
s_and_b32 s{sT+6}, s{sJ}, 1
s_lshl_b32 s{sT+6}, s{sT+6}, 3
s_add_u32 s{sT+4}, s{sT+4}, s{sT+6}
s_add_u32 s{sT+4}, s{sT+4}, 32768
v_lshlrev_b32 v23, 30, v{vH}
v_add_u32 v23, v23, v{vL16}
s_mov_b32 s{sT+6}, {f2u(2.0**64):#x}
s_nop 5
v_cmp_lt_f32 vcc, v{O+12}, s{sT+6}
s_cmp_eq_u64 vcc, -1
{'s_nop 0' if 'nofb' in XP else 's_cbranch_scc0 L_att_fallback'}
L_att_fin:
v_rcp_f32 v22, v{O+12}
s_nop 0
""")
        for k in range(6):
            a(f"v_pk_mul_f32 {vr(O+2*k,2)}, {vr(O+2*k,2)}, v[22:23] op_sel_hi:[1,0]")
        for k in range(6):
            a(f"v_cvt_pk_bf16_f32 v{O+k}, v{O+2*k}, v{O+2*k+1}")
        lx, lxd = a.label("xpoll"), a.label("xdone")
        a(f"""
buffer_store_dwordx4 {vr(O,4)}, v{vL16}, s[{sWS}:{sWS+3}], s{sT+5} offen
buffer_store_dwordx2 {vr(O+4,2)}, v23, s[{sWS}:{sWS+3}], s{sT+4} offen
s_waitcnt vmcnt(2)
v_readfirstlane_b32 s{sT}, v{vXC+1}
s_nop 1
v_cmp_ne_u32 vcc, s{sT}, v{vXC+1}
s_cmp_lg_u64 vcc, 0
s_cselect_b32 s{sSLOW}, 1, 0
s_waitcnt lgkmcnt(0)
""")
        self.publish(0, sJ)
        self.stamp(1)

    def att_fallback(self):
        a = self.a
        X = SS[0]
        a(f"""
L_att_fallback:
s_waitcnt vmcnt(0) lgkmcnt(0)
s_mul_i32 s{sT+7}, s{sJ}, 163840
s_add_u32 s{sT+7}, s{sT+7}, s{sQIN}
v_cmp_gt_u32 vcc, 32, v{vLANE}
v_mov_b32 v{vT}, 0
s_nop 0
v_cndmask_b32 v{Q2}, v{vT}, v{Q2}, vcc
v_cndmask_b32 v{Q2+1}, v{vT}, v{Q2+1}, vcc
v_lshlrev_b32 v{vK2}, 30, v{vH}
v_add_u32 v{vK2}, v{vK2}, v{vBK2}              ; lower: tail offset in tile, upper: out of range
v_mov_b32 v22, 0xff800000
s_mov_b32 s{sT+8}, s{sT+7}
s_mov_b32 s{sT+9}, 64
L_fb_max:
buffer_load_dwordx4 {vr(K1,4)}, v{vBK1}, s[{sWS}:{sWS+3}], s{sT+8} offen
buffer_load_dwordx2 {vr(K2,2)}, v{vK2}, s[{sWS}:{sWS+3}], s{sT+8} offen
s_waitcnt vmcnt(0)
v_mfma_f32_32x32x16_bf16 {vr(X,16)}, {vr(K1,4)}, {vr(Q1,4)}, 0
v_mfma_f32_32x32x8_bf16 {vr(X,16)}, {vr(K2,2)}, {vr(Q2,2)}, {vr(X,16)}
s_nop 15
""")
        self.rowmax16(X, 22, init=True)
        a(f"""
s_add_u32 s{sT+8}, s{sT+8}, 2560
s_sub_u32 s{sT+9}, s{sT+9}, 1
s_cmp_lg_u32 s{sT+9}, 0
s_cbranch_scc1 L_fb_max
""")
        self.crosshalf_max(22)
        self.split3(22)
        a(f"""
s_mul_i32 s{sT+8}, s{sWAVE}, 2560
s_add_u32 s{sT+8}, s{sT+8}, {MISC + 512 - 1024}
v_mad_u32_u24 v{vVA}, s{sT+8}, v{vMV}, v{vBV}
v_mad_u32_u24 v{vVA+1}, s{sT+8}, v{vMV}, v{vBV+1}
v_mad_u32_u24 v{vVA+2}, s{sT+8}, v{vMV}, v{vBV+2}
v_mad_u32_u24 v{vVA+3}, s{sT+8}, v{vMV}, v{vBV+3}
v_add_u32 v{vK1}, s{sT+8}, v{vL16}
v_lshlrev_b32 v{SS[1]}, 3, v{vLANE}
v_add_u32 v{SS[1]+1}, s{sT+8}, v{SS[1]}
s_mov_b32 s{sT+8}, s{sT+7}
s_mov_b32 s{sT+9}, 64
""")
        for k in range(16): a(f"v_mov_b32 v{O+k}, 0")
        a(f"""
L_fb_pv:
buffer_load_dwordx4 {vr(K1,4)}, v{vBK1}, s[{sWS}:{sWS+3}], s{sT+8} offen
buffer_load_dwordx2 {vr(K2,2)}, v{vK2}, s[{sWS}:{sWS+3}], s{sT+8} offen
buffer_load_dwordx4 {vr(V0,4)}, v{vL16}, s[{sWS}:{sWS+3}], s{sT+8} offen offset:1024
buffer_load_dwordx2 {vr(V1[0],2)}, v{SS[1]}, s[{sWS}:{sWS+3}], s{sT+8} offen offset:2048
v_cmp_gt_u32 vcc, 32, v{vLANE}
v_mov_b32 v{vT}, 0x3f803f80
s_waitcnt vmcnt(0)
v_cndmask_b32 v{K2}, v{vT}, v{K2}, vcc
v_cndmask_b32 v{K2+1}, v{vT}, v{K2+1}, vcc
ds_write_b128 v{vK1}, {vr(V0,4)} offset:1024
ds_write_b64 v{SS[1]+1}, {vr(V1[0],2)} offset:2048
v_mfma_f32_32x32x16_bf16 {vr(X,16)}, {vr(K1,4)}, {vr(Q1,4)}, 0
v_mfma_f32_32x32x8_bf16 {vr(X,16)}, {vr(K2,2)}, {vr(Q2,2)}, {vr(X,16)}
s_waitcnt lgkmcnt(0)
ds_read_b64_tr_b16 {vr(V0,2)}, v{vVA}
ds_read_b64_tr_b16 {vr(V0+2,2)}, v{vVA+1}
ds_read_b64_tr_b16 {vr(V1[0],2)}, v{vVA+2}
ds_read_b64_tr_b16 {vr(V1[0]+2,2)}, v{vVA+3}
s_nop 12
""")
        for k in range(16): a(f"v_exp_f32 v{X+k}, v{X+k}")
        a("s_nop 0")
        for k in range(8): a(f"v_cvt_pk_bf16_f32 v{P+k}, v{X+2*k}, v{X+2*k+1}")
        a(f"""
s_waitcnt lgkmcnt(0)
s_nop 1
v_mfma_f32_32x32x16_bf16 {vr(O,16)}, {vr(V0,4)}, {vr(P,4)}, {vr(O,16)}
v_mfma_f32_32x32x16_bf16 {vr(O,16)}, {vr(V1[0],4)}, {vr(P+4,4)}, {vr(O,16)}
s_add_u32 s{sT+8}, s{sT+8}, 2560
s_sub_u32 s{sT+9}, s{sT+9}, 1
s_cmp_lg_u32 s{sT+9}, 0
s_cbranch_scc1 L_fb_pv
s_nop 15
s_branch L_att_fin
""")

    def prof_store(self, final=True):
        a = self.a
        if not self.prof: return
        a(f"""
s_waitcnt lgkmcnt(0)
{'s_memrealtime' if self.prof == 2 else 's_memtime'} s[{sPROF+22}:{sPROF+23}]
s_lshl_b32 s{sT}, s{sKID}, 8
s_add_u32 s{sT}, s{sT}, s2
s_lshl_b32 s{sT}, s{sT}, 3
s_add_u32 s{sT}, s{sT}, s{sWAVE}
s_lshl_b32 s{sT}, s{sT}, 6
s_add_u32 s{sT}, s{sT}, {PROF}
v_mov_b32 v{vT}, 0
s_waitcnt lgkmcnt(0)
s_mov_b64 exec, 1""")
        for i in range(12):
            a(f"v_mov_b32 v{vT+1}, s{sPROF+2*i}\nbuffer_store_dword v{vT+1}, v{vT}, s[{sWS}:{sWS+3}], s{sT} offen offset:{4*i}")
        a(f"v_mov_b32 v{vT+1}, s99\nbuffer_store_dword v{vT+1}, v{vT}, s[{sWS}:{sWS+3}], s{sT} offen offset:48")
        a(f"v_mov_b32 v{vT+1}, s{sSLOW}\nbuffer_store_dword v{vT+1}, v{vT}, s[{sWS}:{sWS+3}], s{sT} offen offset:52")
        if final: a("s_waitcnt vmcnt(0)")
        a(f"s_memrealtime s[100:101]\ns_waitcnt lgkmcnt(0)")
        a(f"v_mov_b32 v{vT+1}, s3\nbuffer_store_dword v{vT+1}, v{vT}, s[{sWS}:{sWS+3}], s{sT} offen offset:56")
        a(f"v_mov_b32 v{vT+1}, s100\nbuffer_store_dword v{vT+1}, v{vT}, s[{sWS}:{sWS+3}], s{sT} offen offset:60")
        if not final:
            a("s_mov_b64 exec, -1\ns_mov_b32 s3, s100")
            a(f"s_mov_b32 s99, s{sPROF+22}\ns_add_u32 s{sKID}, s{sKID}, 1")
            for i in range(12): a(f"s_mov_b64 s[{sPROF+2*i}:{sPROF+2*i+1}], 0")


def gen_main(a, prof=False):
    g = Gen(a, prof)
    a("L_layer:")
    g.prof_store(False)
    def params(k, qin, qout, res, stq, actq, of, x1f, hf, st1):
        for r, v in ((sQIN, qin), (sQOUT, qout), (sRES, res), (sFLG, A_FL + k*4096), (sSTQ, stq), (sACTQ, actq), (sOF, of), (sX1F, x1f), (sHF, hf), (sST1, st1)):
            a(f"s_mov_b32 s{r}, {v:#x}")
    a(f"s_cmp_lg_u32 s{sLAST}, 0\ns_cbranch_scc1 L_par2")
    params(0, QKV[0], QKV[1], X1F[0], STAT[2], X2F, OF[0], X1F[0], HF[0], STAT[1])
    a(f"s_branch L_par3\nL_par2:\ns_load_dwordx2 s[{sT}:{sT+1}], s[0:1], 64")
    params(1, QKV[1], 0, X2F, 0, 0, OF[1], X1F[1], HF[1], STAT[3])
    a("s_waitcnt lgkmcnt(0)")
    srd(a, sOUT, sT, S*D*2)
    a(f"""L_par3:
s_and_b32 s{sCB}, s{sJ}, 7
s_lshr_b32 s{sRB}, s{sJ}, 3
s_and_b32 s{sCB2}, s{sJ}, 15
s_lshr_b32 s{sRB2}, s{sJ}, 4
s_and_b32 s{sT2}, s{sWAVE}, 1
s_bfe_u32 s{sKH}, s{sWAVE}, 0x10001
s_mul_i32 s{sAR}, s{sG}, {AST}
s_add_u32 s{sAR}, s{sAR}, {ARENA}
s_add_u32 s{sFLG}, s{sFLG}, s{sAR}
s_add_u32 s{sRES}, s{sRES}, s{sAR}
s_add_u32 s{sSTQ}, s{sSTQ}, s{sAR}
s_add_u32 s{sACTQ}, s{sACTQ}, s{sAR}
s_add_u32 s{sOF}, s{sOF}, s{sAR}
s_add_u32 s{sX1F}, s{sX1F}, s{sAR}
s_add_u32 s{sHF}, s{sHF}, s{sAR}
s_add_u32 s{sST1}, s{sST1}, s{sAR}
s_mul_i32 s{sT+6}, s{sG}, {8*2560}
s_add_u32 s{sQOUT}, s{sQOUT}, s{sT+6}
s_and_b32 s{sLDW}, s{sWAVE}, 3
s_mul_i32 s{sLDW}, s{sLDW}, 5120
s_lshr_b32 s{sROLE}, s{sWAVE}, 2
s_mul_i32 s{sLDR}, s{sWAVE}, 5120
s_mul_i32 s{sWO}, s{sCB}, 102400
s_add_u32 s{sWO}, s{sWO}, {WO_F}
s_add_u32 s{sWO}, s{sWO}, s{sLDW}
s_mul_i32 s{sW1}, s{sCB2}, 122880
s_add_u32 s{sW1}, s{sW1}, {W1_F}
s_add_u32 s{sW1}, s{sW1}, s{sLDW}
s_mul_i32 s{sW2}, s{sCB}, 245760
s_add_u32 s{sW2}, s{sW2}, {W2_F}
s_add_u32 s{sW2}, s{sW2}, s{sLDW}
s_mul_i32 s{sWQ}, s{sCB2}, 163840
s_add_u32 s{sWQ}, s{sWQ}, {WQKV_F}
s_add_u32 s{sWQ}, s{sWQ}, s{sLDW}
s_mul_i32 s{sSRC}, s{sJ}, 163840
s_add_u32 s{sSRC}, s{sSRC}, s{sQIN}
s_add_u32 s{sSRC}, s{sSRC}, s{sLDW}
s_lshl_b32 s{sT}, s{sLAST}, 15
s_add_u32 s{sT}, s{sT}, {QF}
s_mul_i32 s{sT+1}, s{sJ}, 0x2aab
s_lshr_b32 s{sT+1}, s{sT+1}, 16
s_lshl_b32 s{sT+1}, s{sT+1}, 11
s_add_u32 s{sT+1}, s{sT+1}, s{sT}
s_cmp_lg_u32 s{sROLE}, 0
s_cselect_b32 s{sPUB}, s{sT+1}, s{sPUB}   ; flag row of Q (loader waves)
s_add_u32 s{sQFK}, s{sJ}, 32
s_mul_i32 s{sQFK}, s{sQFK}, 0x2aab
s_lshr_b32 s{sQFK}, s{sQFK}, 16
s_lshl_b32 s{sQFK}, s{sQFK}, 11
s_add_u32 s{sQFK}, s{sQFK}, s{sT}
s_add_u32 s{sQFV}, s{sJ}, 64
s_mul_i32 s{sQFV}, s{sQFV}, 0x2aab
s_lshr_b32 s{sQFV}, s{sQFV}, 16
s_lshl_b32 s{sQFV}, s{sQFV}, 11
s_add_u32 s{sQFV}, s{sQFV}, s{sT}
""")
    g.attention()
    g.left = {6: 0, 7: 0}
    g.acq = 7
    a(f"s_cmp_ge_u32 s{sWAVE}, 4\ns_cbranch_scc1 L_loader_main")
    if CPRIO: a(f's_setprio {CPRIO}')
    g.b2load(); g.aux_load(True)
    R = g.fifo_reg(E_RES)
    a(f"s_cmp_eq_u32 s{sLAST}, 0\ns_cbranch_scc1 L_res_x")
    a(f"""s_mov_b32 s{sT}, 0xffff0000
s_mov_b32 s{sT+1}, 0xffff0000
v_cndmask_b32 v{R+16}, v{R+16}, v{R+18}, s[{sT}:{sT+1}]
v_cndmask_b32 v{R+17}, v{R+17}, v{R+19}, s[{sT}:{sT+1}]""")
    g.unpack(OWN, R, 4)
    g.unpack(OWN+8, R+8, 4)
    g.unpack(OWN+16, R+16, 2)
    a("s_branch L_res_done\nL_res_x:")
    g.unpack(OWN, RX, 10)
    a("L_res_done:")
    if 'addsleep' in XP:
        a("s_sleep 79")
    if 'addmfma' in XP:
        for k in range(156): a(f"v_mfma_f32_32x32x16_bf16 {vr(ACC+16*(k%2),16)}, {vr(C13+4*(k%10),4)}, {vr(C13+4*((k*3+1)%10),4)}, {vr(ACC+16*(k%2),16)}")
    g.barrier(need=12, tag="E0")
    if PRE13:
        a(f"s_mul_i32 s{sT}, s{sWAVE}, 5120\nv_add_u32 v{vT}, s{sT}, v{vL16}")
        for c in (13, 14):
            a(f"v_add_u32 v{vT+1}, {(c % NSLOT)*CH}, v{vT}")
            for q in range(5):
                a(f"ds_write_b128 v{vT+1}, {vr(C13+20*(c-13)+4*q,4)} offset:{1024*q}")
        a("s_waitcnt lgkmcnt(0)")
    g.phase_n80(0, 8, 5)
    g.phase_w1(13)
    g.phase_n80(1, 19, 12)
    nb_last = len(g.bar)
    a("L_qkv_phase:")
    g.vm.drain()
    g.phase_qkv(31)
    a(f"s_lshl3_add_u32 s{sT+1}, s{sG}, s{sTL}")
    g.pub_addr(sT+1, 1)
    a(f"""s_lshl_b32 s{sRDY}, s{sTL}, 7
s_lshl2_add_u32 s{sRDY}, s{sCB2}, s{sRDY}
s_add_u32 s{sRDY}, s{sRDY}, s{sFLG}
s_add_u32 s{sRDY}, s{sRDY}, {4096 + 3072}
L_next:
s_mov_b32 s{sLAST}, 1
s_branch L_layer""")
    a("L_done:")
    g.prof_store()
    a("L_end:\ns_endpgm")
    g.final_out()
    a("s_branch L_done")
    g.att_fallback()
    a.L.extend(g.oolbuf)
    a(f"L_loader_main:\ns_cmp_lg_u32 s{sLAST}, 0\ns_cbranch_scc1 L_loader_last")
    g.loader3(g.bar, 38, PLAN, FL[0])
    a("s_branch L_next\nL_loader_last:")
    g.loader3(g.bar[:nb_last], 30, PLAN, FL[1])
    a("s_branch L_done")
    return g
```

```python
import math, struct, os
from dsl import *
from layout import *

OOB = 0x40000000
def f2u(x): return struct.unpack("<I", struct.pack("<f", x))[0]
QSCALE = DH ** -0.5 * math.log2(math.e)
EPS = 1e-5

sWS, sOUT, sB2 = 4, 8, 12
sWAVE, sG, sJ, sSLOW = 16, 17, 18, 19
sQIN, sQOUT, sRES, sFLG, sXCA, sLAST = 20, 21, 22, 23, 24, 25
sSTQ, sACTQ, sNOPOLL, sXCC = 26, 27, 28, 29
sOF, sX1F, sHF, sST1 = 30, 31, 32, 33
sCB, sRB, sCB2, sRB2 = 34, 35, 36, 37
sKH, sT2, sTL = 38, 39, 40
sSRC, sC, sSLOT, sLDW = 41, 42, 43, 44
sWO, sW1, sW2, sWQ = 45, 46, 47, 48
sT = 50
sPROF = 60
sQA = 84
sKID = 98
sWRM = 49
sAR1 = 96
sWRM2, sWRM3, sDST, sN, sAR = 93, 94, 95, 97, 92
vLANE, vL16, vSW, vTL, vH = 1, 2, 3, 4, 5
vK1, vK2, vVA = 6, 7, 8
vB0, vB1, vB2 = 6, 7, 8
vP0, vP1, vP2 = 9, 10, 11
vT = 12
Q1, Q2, K1, K2, V0, V1, P, SS, O = 16, 20, 24, 28, 32, [36, 40], 44, [52, 68], 84
vBK1, vBK2, vBV, vMK, vMV, vXC = 100, 101, 102, 106, 107, 108
vWRM, vDUM = 110, 111
SR, vSO, vSD, vBI, vSC, ONE, CSA = 208, 168, 169, 170, 171, 172, 176
sA, sBp, sSo, sDs, sSt, sAx, sQd, sTy, sSS, sBS = 84, 85, 86, 87, 88, 89, 42, 28, 8, 12
sDP, sFP, sLDR, sROLE = 93, 94, 96, 49
sZP = 24
sA0, sSt0 = 24, 94
sPUB, sRDY, sQFK, sQFV = 24, 29, 95, 97
vPL = 252
sXP, RX = 90, 112
vL16B = 110
E_RES, E_C13, E_C14, E_T0, E_T1 = 1, 2, 3, 5, 6
AUXB, AUXA, WF, ACC, ACT, STT = 38, 40, 48, 64, 128, 192
RA0, RA2, RA1 = 208, 224, 240
AUXB16, AUXA16 = 32, 36
OWN, OTH = 208, 228
WF16 = [48, 52, 56, 60, 176, 180, 184, 188, 192, 196]
T16, NPRE16, R16 = 2, int(os.environ.get('NPRE16', 8)), int(os.environ.get('R16', 2))
vRS, vRSB = 22, 23
NACT = 12
WFR = [48, 52, 56, 60, 176, 180, 184, 188]
NB3, NB4 = int(os.environ.get('NB3', 6)), int(os.environ.get('NB4', 8))
NPRE, ADEPTH, STAT_AT = int(os.environ.get('NPRE', 7)), int(os.environ.get('ADEPTH', 11)), 8
RAMP = int(os.environ.get('RAMP', 2))
GDEF = int(os.environ.get('GDEF', 3))
PRE13 = int(os.environ.get('PRE13', 1))
C13 = 152
N80_TAIL = 8
QTAIL = int(os.environ.get('QTAIL', 8))
QRATE = int(os.environ.get('QRATE', 3))
WR_LAG = 1
F0 = 13
NF = 7
FL = [eval(os.environ.get('FL0', '[26, 27, 28, 29, 30, 34, 35]')), [24, 25, 26, 27, 28, 29, 30]]
RS = eval(os.environ.get('RS', """[("S",1,3,1), ("S",2,10,1), ("D",3,26,2), ("D",5,45,2), ("F",0,68,1), ("F",4,73,1), ("D",7,78,1), ("D",9,83,1), ("F",2,88,1), ("F",3,93,1),
      ("F",5,98,2), ("D",11,108,1), ("F",6,113,1), ("F",1,118,1)]"""))
ROUNDS = {}
_span = {"F": [], "D": [], "T": []}
for _k, _n, _s0, _st in RS:
    _c = {'S': 3, 'T': 6}.get(_k, 5)
    _l = _span["D" if _k == "S" else _k]
    assert all(_s0 > b or _s0 + (_c-1)*_st < a_ for a_, b in _l), "rounds of one kind must not interleave"
    _l.append((_s0, _s0 + (_c-1)*_st))
    for _q in range(_c):
        assert _s0 + _q*_st not in ROUNDS
        ROUNDS[_s0 + _q*_st] = (_k, _n, _q)
RESX_AT = int(os.environ.get('RESX_AT', 39))
WQ_POLL = int(os.environ.get('WQ_POLL', -10))
HALF0 = int(os.environ.get('HALF0', 1))
S_LD, S_WR, S_FLAG, S_POLL = eval(os.environ.get('SS', '(7, 14, 22, 31)'))
XC_AT = 50
PRIO = {}
_P = eval(os.environ.get('PP', '{0: 3, 6: 2, 11: 1, 14: 0}'))
for _b in (22, 38):
    for _u, _v in _P.items(): PRIO[_b+_u] = _v
PRIO.update(eval(os.environ.get('PE', '{0: 2, 1: 1, 2: 3, 4: 1, 5: 0, 6: 3, 9: 2, 11: 1, 13: 0, 14: 3, 17: 2, 19: 1, 21: 0, 54: 3, 59: 2, 61: 1, 63: 0}')))
FIFO_ATT = eval(os.environ.get('FIFO_ATT', '{4: [0, 1], 5: [2, 3], 6: [4, 5], 7: [6]}'))
SYNC = eval(os.environ.get('SYNC', '{13: 16, 17: 18, 19: 23, 22: 0, 24: 25, 26: 27, 28: 30, 31: 34, 35: 35, 36: 38}'))
XFIFO = eval(os.environ.get('XFIFO', '{"E0": [(24, 9), (25, 10), (17, 7)], "Zo": [(18, 8)], "Zw": []}'))
PLAN = eval(os.environ.get('PLAN', '{"def": 0, "wdef": 10, "Zo": 10, "Zf": 25, "Zw": 15, "Hq9": 15, "wX0": 5, "wX1": 5, "wZw": 0}'))
HOL = eval(os.environ.get('HOL', '{"q": [(9, 8)]}'))
WPACE = int(os.environ.get('WPACE', 0))
DRIP = int(os.environ.get('DRIP', 2))
PKR = 112
import os
STD = ["att0", "attE", "woP", "woM", "w1P", "w1M", "w2P", "w2M", "qP", "qM", "qE"]
STAMPS = os.environ.get("STAMPS", ",".join(STD)).split(",")
SIDE = eval(os.environ.get('SIDE', "{3: ['w2a'], 4: ['w2b'], 5: ['ar0'], 6: ['ar1', 'res']}"))
XP = os.environ.get('XP', '')
ALF = os.environ.get('ALF', ' sc1')
CPRIO = int(os.environ.get('CPRIO', 1))
DIAG = os.environ.get('DIAG', '')
DIAGI = os.environ.get('DIAGI', 's_memrealtime')
QST = os.environ.get('QST', ' sc0 sc1')
CHAIN_TOUCH = 0
KV_NT = int(os.environ.get("KV_NT", 0))

class VM:
    def __init__(self): self.q = []
    def issue(self, tag): self.q.append(tag)
    def need(self, tag):
        if tag not in self.q: return None
        i = len(self.q) - 1 - self.q[::-1].index(tag)
        n = len(self.q) - 1 - i
        self.q = self.q[i+1:]
        return n
    def drain(self): self.q = []

class Gen:
    def __init__(self, a, prof):
        self.a = a; self.prof = prof
        self.bar = []
        self.acq = 8
        self.left = {}
        self.dsq = []
        self.freed = set()
        self.vm = VM()
        self.basechunk = {}
        self.seen = set()
        self.drip = []
        self.oolbuf = []
        self.rate = DRIP

    def stamp(self, name):
        if isinstance(name, int): name = STD[name]
        if DIAG and name == DIAG.split(":")[1]:
            ly = int(DIAG.split(":")[0]); l = self.a.label("dg")
            if ly >= 0: self.a(f"s_cmp_lg_u32 s{sLAST}, {ly}\ns_cbranch_scc1 {l}")
            self.a(f"{DIAGI} s[62:63]\n{l}:")
        name = {"F0": "att0", "g0": "attE", "g32": "woP", "g64": "woM", "g96": "w1P", "g128": "w1M", "FM": "qM", "FE": "qE"}.get(name, name) if name not in STAMPS else name
        if self.prof and name in STAMPS:
            i = STAMPS.index(name)
            self.a(f"{'s_memrealtime' if self.prof == 2 else 's_memtime'} s[{sPROF+2*i}:{sPROF+2*i+1}]")

    def barrier(self, need=None, tag=None):
        busy = {c for c, _ in self.dsq}
        fr = [c for c, n in sorted(self.left.items()) if n == 0 and c not in busy and c not in self.freed]
        self.freed |= set(fr)
        self.bar.append(dict(need=need, free=fr, tag=tag if tag else f"B{need}"))
        self.a("s_barrier")
        if need is not None: self.acq = need
    def lgkm(self, n):
        self.a(f"s_waitcnt lgkmcnt({n})")
        if len(self.dsq) > n: self.dsq = self.dsq[len(self.dsq)-n:] if n else []
    def dsneed(self, tag):
        tags = [t for _, t in self.dsq]
        if tag in tags:
            self.lgkm(len(tags) - 1 - tags.index(tag))
    def wread(self, dst, chunk, kind, off, tag=None):
        a = self.a
        if chunk not in self.seen:
            self.seen.add(chunk)
            if chunk in SYNC:
                self.barrier(max(SYNC[chunk], self.acq), tag=f"B{chunk}")
            assert chunk <= self.acq, (chunk, self.acq)
        if self.basechunk.get(kind) != chunk:
            a(f"v_add_u32 v{vB0+kind}, {(chunk % NSLOT)*CH}, v{vP0+kind}")
            self.basechunk[kind] = chunk
        a(f"ds_read_b128 {vr(dst,4)}, v{vB0+kind} offset:{off}")
        self.left[chunk] -= 1
        self.dsq.append((chunk, tag))

    def poll(self, phase, nslots):
        a = self.a
        lp, ld = a.label("poll"), a.label("polld")
        mask = (1 << nslots) - 1
        a(f"""
s_lshl_b32 s{sT}, s{sTL}, 7
s_add_u32 s{sT}, s{sT}, s{sFLG}
s_add_u32 s{sT}, s{sT}, {phase*1024}
v_and_b32 v{vT}, 31, v{vLANE}
v_lshlrev_b32 v{vT}, 2, v{vT}
s_mov_b32 s{sT+1}, 0x100000
{lp}:
buffer_load_dword v{vT+1}, v{vT}, s[{sWS}:{sWS+3}], s{sT} offen sc1
s_sub_u32 s{sT+1}, s{sT+1}, 1
s_cbranch_scc1 {ld}
s_waitcnt vmcnt(0)
v_cmp_eq_u32 vcc, 0, v{vT+1}
s_and_b32 s{sT+2}, vcc_lo, {mask:#x}
s_cbranch_scc1 {lp}
{ld}:
s_waitcnt vmcnt(0)
""")
        ls = a.label("noinv")
        a(f"""
s_cmp_eq_u32 s{sSLOW}, 0
s_cbranch_scc1 {ls}
buffer_inv sc1
s_waitcnt vmcnt(0)
{ls}:
""")
        self.vm.drain()

    def publish(self, phase, slot_sreg, vmn=0):
        a = self.a
        l1, l2 = a.label("pubslow"), a.label("pubdone")
        a(f"""
s_lshl_b32 s{sT}, s{sTL}, 7
s_add_u32 s{sT}, s{sT}, s{sFLG}
s_add_u32 s{sT}, s{sT}, {phase*1024}
s_lshl_b32 s{sT+1}, s{slot_sreg}, 2
s_add_u32 s{sT}, s{sT}, s{sT+1}
v_mov_b32 v{vT}, 0
v_mov_b32 v{vT+1}, 1
s_cmp_lg_u32 s{sSLOW}, 0
s_cbranch_scc1 {l1}
s_waitcnt vmcnt({vmn})
s_mov_b64 exec, 1
buffer_store_dword v{vT+1}, v{vT}, s[{sWS}:{sWS+3}], s{sT} offen
s_branch {l2}
{l1}:
s_waitcnt vmcnt(0)
buffer_wbl2 sc1
s_waitcnt vmcnt(0)
s_mov_b64 exec, 1
buffer_store_dword v{vT+1}, v{vT}, s[{sWS}:{sWS+3}], s{sT} offen sc1
{l2}:
s_mov_b64 exec, -1
""")
        self.vm.drain(); self.vm.issue("flag")

    def make_ops(self, nsteps, nt, tail=0, tail_order=None):
        ops = [(s, j) for s in range(nsteps - tail) for j in range(nt)]
        for j in (tail_order or range(nt)):
            ops += [(s, j) for s in range(nsteps - tail, nsteps)]
        return ops

    def first_w(self, ops, nb, frag):
        for k in range(nb):
            self.wread(WFR[k], *frag(*ops[k]), tag=k)

    def gemm(self, ops, nb, accs, frag, act_ks, sact, cinit, hooks, pre_stats=None, nm="", pre=()):
        a = self.a
        nsteps = max(s for s, _ in ops) + 1
        lastuse = {}
        for k, (s, j) in enumerate(ops): lastuse[s] = k
        cur = [None]; nxt = [0]
        tailn = N80_TAIL if nm in 'ow' else 0
        def aload():
            s = nxt[0]; nxt[0] += 1
            ks = act_ks(s)
            if cur[0] != ks // 4:
                cur[0] = ks // 4
                a(f"s_add_u32 s{sT+3}, s{sact}, {(ks//4)*4096}")
            if 'noA' in XP and s >= 2: return
            a(f"buffer_load_dwordx4 {vr(ACT+4*(s%NACT),4)}, v{vL16}, s[{sWS}:{sWS+3}], s{sT+3} offen offset:{(ks%4)*1024}{ALF}")
            self.vm.issue(("act", s))
        for _ in range(min(NPRE, nsteps)): aload()
        for h in pre: h()
        started = set()
        for k, (s, j) in enumerate(ops):
            n = self.vm.need(("act", s))
            if n is not None: a(f"s_waitcnt vmcnt({n})")
            self.dsneed(k)
            c = vr(accs[j], 16) if (j in started or cinit[j]) else "0"
            started.add(j)
            a(f"v_mfma_f32_32x32x16_bf16 {vr(accs[j],16)}, {vr(WFR[k%nb],4)}, {vr(ACT+4*(s%NACT),4)}, {c}")
            self.stamp(f"{nm}{k}")
            if k + nb < len(ops):
                self.wread(WFR[k%nb], *frag(*ops[k+nb]), tag=k+nb)
            hol = [h for h in HOL.get(nm, []) if h[0] <= s < h[0] + h[1]]
            if hol and s == hol[0][0] and j == 0: self.barrier(tag=f'H{nm}{s}')
            post = any(s >= h[0] + h[1] for h in HOL.get(nm, []))
            if not hol and (j == 0 or (j == 1 and (post or s % RAMP == RAMP-1)) or (s >= nsteps - tailn and j == 1)) and nxt[0] < nsteps and (nxt[0] < NACT or lastuse[nxt[0]-NACT] <= k) and nxt[0] <= s + ADEPTH:
                aload()
                if nxt[0] == nsteps and ("Z" + nm) in PLAN: self.barrier(tag="Z" + nm)
            if pre_stats and j == 2 and s % 2 == 0 and s // 2 < 2: pre_stats(s // 2)
            for h in hooks.get((s, j), []) + hooks.get(k - len(ops), []):
                h()
            for _ in range(self.rate):
                if self.drip:
                    d = self.drip.pop(0)
                    if callable(d): d()
                    else: a(d)
        assert nxt[0] == nsteps

    def stats_load(self, sbase):
        a = self.a
        def f(q):
            if q == 0: a(f"s_lshl_b32 s{sT+4}, s{sTL}, 12\ns_add_u32 s{sT+4}, s{sT+4}, s{sbase}")
            a(f"buffer_load_dwordx4 {vr(STT+4*q,4)}, v{vL16}, s[{sWS}:{sWS+3}], s{sT+4} offen offset:{1024*q} sc1")
            self.vm.issue(("st", q))
        return f

    def stats_math(self, double, summed=False):
        a = self.a
        L = []
        if not summed:
            def w():
                n = self.vm.need(("st", 1))
                if n is not None: a(f"s_waitcnt vmcnt({n})")
            L = [w]
            for q in range(4): L.append(f"v_add_f32 v{STT+q}, v{STT+q}, v{STT+4+q}")
            L += f"""v_add_f32 v{STT}, v{STT}, v{STT+2}
v_add_f32 v{STT+1}, v{STT+1}, v{STT+3}
v_add_f32 v{STT}, v{STT}, v{STT+1}""".split("\n")
        L += f"""v_mul_f32 v{STT}, {f2u(1.0/D):#x}, v{STT}
v_mov_b32 v{STT+1}, v{STT}
s_nop 1
v_permlane32_swap_b32 v{STT}, v{STT+1}
v_cmp_gt_u32 vcc, 32, v{vLANE}
v_fma_f32 v{STT+1}, -v{STT}, v{STT}, v{STT+1}
v_max_f32 v{STT+1}, 0, v{STT+1}
v_add_f32 v{STT+2}, {f2u(EPS):#x}, v{STT+1}
v_rsq_f32 v16, v{STT+2}
v_sub_f32 v{STT+4}, 0, v{STT}
v_mov_b32 v18, 0xffff0000
v_and_b32 v{STT+5}, 0xffff0000, v{STT+4}
v_sub_f32 v{STT+6}, v{STT+4}, v{STT+5}
v_lshrrev_b32 v{STT+5}, 16, v{STT+5}""".split("\n")
        if not double:
            L += f"""v_and_or_b32 v{AUXB}, v{STT+6}, v18, v{STT+5}
v_mov_b32 v{AUXB+1}, v{STT+5}""".split("\n")
            return L
        L += f"""v_mul_f32 v{STT+3}, v16, v16
v_mul_f32 v{STT+3}, v{STT+3}, v{STT+1}
v_add_f32 v{STT+3}, {f2u(EPS):#x}, v{STT+3}
v_rsq_f32 v{STT+3}, v{STT+3}
v_and_or_b32 v{AUXB16}, v{STT+6}, v18, v{STT+5}
v_mul_f32 v16, v16, v{STT+3}
v_rcp_f32 v17, v16
v_mov_b32 v{AUXB16+2}, v{AUXB16}
v_cndmask_b32 v{STT+7}, v17, 0, vcc
v_and_b32 v{STT+8}, 0xffff0000, v{STT+7}
v_sub_f32 v{STT+9}, v{STT+7}, v{STT+8}
v_or_b32 v{AUXB16+1}, v{STT+8}, v{STT+5}
v_and_or_b32 v{AUXB16+3}, v{STT+9}, v18, v{STT+5}""".split("\n")
        return L

    def aux_load(self, w1):
        a = self.a
        if w1:
            a(f"s_lshl_b32 s{sT}, s{sCB2}, 12\ns_add_u32 s{sT}, s{sT}, {AUX1}")
            for j in range(3):
                a(f"buffer_load_dwordx4 {vr(AUXA16+4*j,4)}, v{vL16}, s[{sWS}:{sWS+3}], s{sT} offen offset:{1024*j}")
                self.vm.issue(("aux", j))
        else:
            a(f"s_lshl_b32 s{sT}, s{sCB2}, 11\ns_add_u32 s{sT}, s{sT}, {AUXQ}\nv_lshlrev_b32 v{vT}, 3, v{vLANE}")
            for j in range(4):
                a(f"buffer_load_dwordx2 {vr(AUXA+2*j,2)}, v{vT}, s[{sWS}:{sWS+3}], s{sT} offen offset:{512*j}")
                self.vm.issue(("aux", j))

    def aux_mfma(self, acc, j, double):
        if double:
            self.a(f"v_mfma_f32_32x32x16_bf16 {vr(acc,16)}, {vr(AUXA16+4*j,4)}, {vr(AUXB16,4)}, {vr(acc,16)}")
        else:
            self.a(f"v_mfma_f32_32x32x8_bf16 {vr(acc,16)}, {vr(AUXA+2*j,2)}, {vr(AUXB,2)}, {vr(acc,16)}")

    def aux_hooks(self, hooks, nt, accs, double, s0, extra=()):
        L = self.stats_math(double) + list(extra)
        hooks.setdefault((s0, 0), []).append(lambda: self.drip.extend(L))
        sa = s0 + (len(L) + DRIP*nt - 1) // (DRIP*nt) + 1
        for j in range(nt):
            def mk(j):
                def f():
                    assert not self.drip
                    self.aux_mfma(accs[j], j, double)
                return f
            hooks.setdefault((sa, j), []).append(mk(j))

    def set_tl_128(self):
        a = self.a
        a(f"""s_lshl_b32 s{sTL}, s{sRB2}, 2
s_add_u32 s{sTL}, s{sTL}, s{sWAVE}""")
    def set_tl_64(self):
        a = self.a
        a(f"""s_lshl_b32 s{sTL}, s{sRB}, 1
s_add_u32 s{sTL}, s{sTL}, s{sT2}""")
    def tt_off(self, dst, base_sreg, tile_bytes):
        a = self.a
        a(f"""s_mul_i32 s{dst}, s{sTL}, {tile_bytes}
s_add_u32 s{dst}, s{dst}, s{base_sreg}""")

    def phase_qkv(self, c0):
        a = self.a
        a.c("================ QKV phase")
        for c in range(8): self.left[c0+c] = 20
        self.basechunk = {}
        def frag(s, j):
            c, u = divmod(s, 5)
            return (c0+c, 0, (u*3+j)*1024) if j < 3 else (c0+c, 1, 15360 + u*768)
        self.set_tl_128()
        a(f"""v_mov_b32 v{vP0}, v{vL16}
v_and_b32 v{vT}, 31, v{vLANE}
v_subrev_u32 v{vT+1}, 24, v{vT}
v_min_u32 v{vT}, v{vT}, v{vT+1}
v_lshlrev_b32 v{vT}, 4, v{vT}
v_mul_u32_u24 v{vP1}, 384, v{vH}
v_add_u32 v{vP1}, v{vP1}, v{vT}""")
        ops = self.make_ops(40, 4, QTAIL)
        self.stamp("x1e")
        self.first_w(ops, NB4, frag)
        self.stamp("x1f")
        self.poll(3, 16)
        self.stamp(8)
        self.tt_off(sT+6, sACTQ, 40960)
        accs = [ACC+16*j for j in range(4)]
        hooks = {}
        self.aux_hooks(hooks, 4, accs, False, 14, [f"v_mul_f32 v{20+2*jj}, v{20+2*jj}, v16" for jj in range(3)])
        if QTAIL:
            def mk(jj):
                def f():
                    self.rate = QRATE
                    b = sQA + 1 + 4*jj
                    for hf in range(2):
                        r = ACC + 16*jj + 8*hf
                        for k in range(4):
                            self.drip.append(f"v_mul_f32 v{r+2*k}, v{r+2*k}, v{20+2*jj}")
                            self.drip.append(f"v_mul_f32 v{r+2*k+1}, v{r+2*k+1}, v{20+2*jj}")
                            self.drip.append(f"v_cvt_pk_bf16_f32 v{r+k}, v{r+2*k}, v{r+2*k+1}")
                        self.drip.append(f"buffer_store_dwordx4 {vr(r,4)}, v{vSW}, s[{sWS}:{sWS+3}], s{b+hf} offen{QST}")
                return f
            for jj in range(3):
                hooks.setdefault(-(3-jj)*QTAIL + 3, []).append(mk(jj))
        self.gemm(ops, NB4, accs, frag, lambda s: s, sT+6, [False]*4, hooks, pre_stats=self.stats_load(sSTQ), nm='q', pre=[self.qkv_addr])
        self.rate = DRIP
        self.stamp(9)
        n = len(self.drip)
        for d in self.drip: a(d)
        self.drip = []
        if n < 12: a(f"s_nop {11 - n}")
        self.qkv_epilogue(range(0 if QTAIL else 3))
        self.stamp(10)

    def qkv_addr(self):
        a = self.a
        self.tt_off(sQA, sQOUT, 2560)
        for jj in range(3):
            b = sQA + 1 + 4*jj
            a(f"""s_mul_i32 s{sT+7}, s{sCB2}, 6
s_add_u32 s{sT+7}, s{sT+7}, {2*jj}
s_lshr_b32 s{sT+8}, s{sT+7}, 1
s_add_u32 s{sT+8}, s{sT+8}, 32
s_and_b32 s{sT+9}, s{sT+7}, 31
s_cmp_lt_u32 s{sT+7}, 32
s_cselect_b32 s{sT+8}, s{sT+8}, s{sT+9}
s_mov_b32 s{b+1}, 163840
s_cselect_b32 s{b+3}, 256, s{b+1}
s_cselect_b32 s{b+1}, 1024, s{b+1}
s_cselect_b32 s{sT+9}, {f2u(QSCALE):#x}, 1.0
v_mov_b32 v{20+2*jj}, s{sT+9}
s_mul_i32 s{sT+8}, s{sT+8}, 163840
s_add_u32 s{sT+8}, s{sT+8}, s{sQA}
s_cmp_ge_u32 s{sT+7}, 64
s_cselect_b32 s{b}, 1024, 0
s_cselect_b32 s{b+2}, 256, 0
s_add_u32 s{b}, s{b}, s{sT+8}
s_add_u32 s{b+2}, s{b+2}, s{sT+8}
s_add_u32 s{b+1}, s{b+1}, s{b}
v_mul_lo_u32 v{26+jj}, s{b+3}, v{vH}
v_add_u32 v{26+jj}, v{26+jj}, v{vTL}""")

    def qkv_epilogue(self, mains=range(3)):
        a = self.a
        for jj in mains:
            b = sQA + 1 + 4*jj
            for hf in range(2):
                r = ACC + 16*jj + 8*hf
                for k in range(4):
                    a(f"v_pk_mul_f32 {vr(r+2*k,2)}, {vr(r+2*k,2)}, {vr(20+2*jj,2)} op_sel_hi:[1,0]")
                for k in range(4):
                    a(f"v_cvt_pk_bf16_f32 v{r+k}, v{r+2*k}, v{r+2*k+1}")
                a(f"buffer_store_dwordx4 {vr(r,4)}, v{vSW}, s[{sWS}:{sWS+3}], s{b+hf} offen{QST}")
        for jj in range(3):
            b = sQA + 1 + 4*jj
            r = ACC + 48 + 4*jj
            for k in range(2):
                a(f"v_pk_mul_f32 {vr(r+2*k,2)}, {vr(r+2*k,2)}, {vr(20+2*jj,2)} op_sel_hi:[1,0]")
            for k in range(2):
                a(f"v_cvt_pk_bf16_f32 v{r+k}, v{r+2*k}, v{r+2*k+1}")
            a(f"buffer_store_dwordx2 {vr(r,2)}, v{26+jj}, s[{sWS}:{sWS+3}], s{b+2} offen{QST}")

    def unpack(self, dst, src, n):
        a = self.a
        for k in range(n):
            a(f"v_lshlrev_b32 v{dst+2*k}, 16, v{src+k}")
            a(f"v_and_b32 v{dst+2*k+1}, 0xffff0000, v{src+k}")

    def g16_patterns(self, dA, d5):
        self.a(f"""v_and_b32 v{vT}, 15, v{vLANE}
s_lshl_b32 s{sT}, s{sKH}, 4
v_lshrrev_b32 v{vT+1}, 4, v{vLANE}
v_add_u32 v{vT}, s{sT}, v{vT}
v_lshlrev_b32 v{d5}, 4, v{vT}
v_lshl_add_u32 v{dA}, v{vT+1}, 9, v{d5}
v_lshl_add_u32 v{d5}, v{vH}, 9, v{d5}""")

    def b2load(self):
        self.a(f"""s_mul_i32 s{sT}, s{sCB}, 160
v_lshrrev_b32 v{vT}, 4, v{vLANE}
v_lshlrev_b32 v{vT+1}, 3, v{vT}
v_lshlrev_b32 v{vT}, 4, v{vT}
buffer_load_dwordx4 v[24:27], v{vT}, s[{sB2}:{sB2+3}], s{sT} offen
buffer_load_dwordx4 v[28:31], v{vT}, s[{sB2}:{sB2+3}], s{sT} offen offset:64
buffer_load_dwordx2 v[32:33], v{vT+1}, s[{sB2}:{sB2+3}], s{sT} offen offset:128""")

    def gemm16(self, nsig, frag, sact, hooks, pre, nm):
        a = self.a
        nb = len(WF16)
        ops = [(sg, t, th) for sg in range(nsig - T16) for t in range(5) for th in (0, 1)]
        ops += [(sg, t, th) for th in (1, 0) for sg in range(nsig - T16, nsig) for t in range(5)]
        lastw, lasta = {}, {}
        for k, (sg, t, th) in enumerate(ops): lastw[5*sg+t] = k; lasta[2*sg+th] = k
        nact = 2*nsig; nxt = [0]; cur = [None]
        def aload():
            f = nxt[0]; nxt[0] += 1
            sg, th = divmod(f, 2)
            if cur[0] != sg // 2:
                cur[0] = sg // 2
                a(f"s_add_u32 s{sT+3}, s{sact}, {(sg//2)*8192}")
            a(f"buffer_load_dwordx4 {vr(ACT+4*(f%NACT),4)}, v{vP1+th}, s[{sWS}:{sWS+3}], s{sT+3} offen offset:{(sg%2)*2048} sc1")
            self.vm.issue(("act", f))
        for _ in range(NPRE16): aload()
        for h in pre: h()
        started = set()
        for k, (sg, t, th) in enumerate(ops):
            w = []
            n = self.vm.need(("act", 2*sg+th))
            if n is not None: w.append(f"vmcnt({n})")
            tags = [x for _, x in self.dsq]
            if 5*sg+t in tags:
                n = len(tags) - 1 - tags.index(5*sg+t)
                w.append(f"lgkmcnt({n})"); self.dsq = self.dsq[len(self.dsq)-n:] if n else []
            if w: a("s_waitcnt " + " ".join(w))
            d = (OWN, OTH)[th] + 4*t
            c = vr(d, 4) if (th == 0 or t in started) else "0"
            if th == 1: started.add(t)
            a(f"v_mfma_f32_16x16x32_bf16 {vr(d,4)}, {vr(WF16[(5*sg+t) % nb],4)}, {vr(ACT+4*((2*sg+th)%NACT),4)}, {c}")
            self.stamp(f"{nm}{k}")
            f = 5*sg + t
            if lastw[f] == k and f + nb < 5*nsig:
                self.wread(WF16[f % nb], *frag(f + nb), tag=f + nb)
            elif th == 0 and (t in (1, 3) or (t == 2 and sg % R16 == R16-1)) and nxt[0] < nact and (nxt[0] < NACT or lasta[nxt[0]-NACT] <= k):
                aload()
                if nxt[0] == nact and ("Z" + nm) in PLAN: self.barrier(tag="Z" + nm)
            for h in hooks.get(k - len(ops), []): h()
        assert nxt[0] == nact

    def phase_n80(self, which, c0, nchunks):
        a = self.a
        a.c(f"================ {'WO' if which == 0 else 'W2'} phase")
        for c in range(nchunks): self.left[c0+c] = 10
        self.basechunk = {}
        def frag(f):
            c, u = divmod(f, 10)
            return (c0+c, 0, u*1024)
        self.set_tl_64()
        self.g16_patterns(vP1, 22)
        a(f"""s_mul_i32 s{sT}, s{sKH}, 10240
v_add_u32 v{vP0}, s{sT}, v{vL16}
v_xor_b32 v{vP2}, 256, v{vP1}""")
        for f in range(len(WF16)): self.wread(WF16[f], *frag(f), tag=f)
        self.tt_off(sT+6, sOF if which == 0 else sHF, OSTR if which == 0 else 98304)
        a(f"s_lshl_b32 s{sT}, s{sKH}, 12\ns_add_u32 s{sT+6}, s{sT+6}, s{sT}")
        self.poll(0 if which == 0 else 2, 32 if which == 0 else 16)
        self.stamp(2 if which == 0 else 6)
        def addr():
            a(f"""s_mul_i32 s{sT}, s{sWAVE}, 5120
s_add_u32 s{sT}, s{sT}, {MISC}
v_add_u32 v20, s{sT}, v{vL16}
s_xor_b32 s{sT}, s{sWAVE}, 2
s_mul_i32 s{sT}, s{sT}, 5120
s_add_u32 s{sT}, s{sT}, {MISC}
v_add_u32 v21, s{sT}, v{vL16}
v_bfe_u32 v{vT}, v{vLANE}, 4, 1
v_lshlrev_b32 v{vT+1}, 30, v{vT}
v_add_u32 v35, v{vT+1}, v22
v_lshl_add_u32 v22, v{vT}, 3, v22""")
            self.tt_off(sQA, sX1F if which == 0 else sACTQ, 40960)
            self.tt_off(sQA+2, sST1 if which == 0 else sSTQ, 4096)
            a(f"""s_mul_i32 s{sT}, s{sCB}, 5120
s_add_u32 s{sQA}, s{sQA}, s{sT}
s_add_u32 s{sQA+1}, s{sQA}, 4096
s_lshl1_add_u32 s{sQA+3}, s{sCB}, s{sKH}
s_lshr_b32 s{sT}, s{sCB}, 2
s_lshl_b32 s{sT}, s{sT}, 10
s_add_u32 s{sQA+2}, s{sQA+2}, s{sT}
s_and_b32 s{sT}, s{sCB}, 3
s_lshl2_add_u32 s{sQA+2}, s{sT}, s{sQA+2}""")
            if which == 1:
                a(f"""v_and_b32 v{vT}, 15, v{vLANE}
s_lshl_b32 s{sT}, s{sKH}, 4
v_add_u32 v{vT}, s{sT}, v{vT}
v_mul_u32_u24 v{vT}, 1280, v{vT}
v_lshrrev_b32 v{vT+1}, 4, v{vLANE}
v_lshl_add_u32 v23, v{vT+1}, 4, v{vT}
v_lshl_add_u32 v34, v{vT+1}, 3, v{vT}
s_lshl3_add_u32 s{sQA+4}, s{sG}, s{sTL}
s_mul_i32 s{sQA+4}, s{sQA+4}, 40960
s_mul_i32 s{sT}, s{sCB}, 160
s_add_u32 s{sQA+4}, s{sQA+4}, s{sT}""")
        hooks = {}
        def wr(q):
            def f():
                a(f"ds_write_b128 v20, {vr(OTH+4*q,4)} offset:{1024*q}")
                self.dsq.append((None, ("xw", q)))
            return f
        for q in range(5):
            hooks.setdefault(-5*T16 + 3 + q, []).append(wr(q))
        self.gemm16(nchunks*2, frag, sT+6, hooks, [addr], 'ow'[which])
        self.stamp(3 if which == 0 else 7)
        self.lgkm(0)
        self.stamp(f"x{which}a")
        self.barrier(tag=f"X{which}")
        self.stamp(f"x{which}b")
        for q in range(5):
            a(f"ds_read_b128 {vr(OTH+4*q,4)}, v21 offset:{1024*q}")
        a("v_mov_b32 v16, 0\nv_mov_b32 v17, 0\nv_mov_b32 v18, 0\nv_mov_b32 v19, 0")
        lfin = a.label("fin")
        PK = PKR
        def block(p):
            n = 4 if p < 2 else 2
            a(f"s_waitcnt lgkmcnt({(3, 1, 0)[p]})")
            for k in range(n):
                a(f"v_pk_add_f32 {vr(OWN+8*p+2*k,2)}, {vr(OWN+8*p+2*k,2)}, {vr(OTH+8*p+2*k,2)}")
            for k in range(n):
                a(f"v_cvt_pk_bf16_f32 v{PK+4*p+k}, v{OWN+8*p+2*k}, v{OWN+8*p+2*k+1}")
        block(0)
        if which == 1:
            a(f"s_cmp_lg_u32 s{sLAST}, 0\ns_cbranch_scc1 {lfin}")
        a(f"buffer_store_dwordx4 {vr(PK,4)}, v{vP1}, s[{sWS}:{sWS+3}], s{sQA} offen")
        block(1)
        a(f"buffer_store_dwordx4 {vr(PK+4,4)}, v{vP1}, s[{sWS}:{sWS+3}], s{sQA} offen offset:2048")
        block(2)
        a(f"buffer_store_dwordx2 {vr(PK+8,2)}, v22, s[{sWS}:{sWS+3}], s{sQA+1} offen")
        for k in range(10):
            a(f"v_pk_add_f32 v[16:17], v[16:17], {vr(OWN+2*k,2)}")
            a(f"v_pk_fma_f32 v[18:19], {vr(OWN+2*k,2)}, {vr(OWN+2*k,2)}, v[18:19]")
        a(f"""v_add_f32 v16, v16, v17
v_add_f32 v18, v18, v19
s_nop 1
v_permlane32_swap_b32 v16, v18
s_nop 1
v_add_f32 v16, v16, v18
v_mov_b32 v17, v16
s_nop 1
v_permlane16_swap_b32 v16, v17
s_nop 1
v_add_f32 v16, v16, v17
buffer_store_dword v16, v35, s[{sWS}:{sWS+3}], s{sQA+2} offen""")
        self.stamp(f"x{which}c")
        self.publish(1 if which == 0 else 3, sQA+3)
        self.stamp(f"x{which}d")
        if which == 0:
            def rinit():
                for k in range(10):
                    self.unpack(OWN+2*k, PK+k, 1)
                    self.unpack(OTH, 24+k, 1)
                    a(f"v_pk_add_f32 {vr(OWN+2*k,2)}, {vr(OWN+2*k,2)}, {vr(OTH,2)}")
            self.deferred = [rinit]
        else:
            self.final_label = lfin
            self.final_block = block

    def final_out(self):
        a = self.a
        PK = PKR
        a(f"{self.final_label}:")
        a(f"buffer_store_dwordx4 {vr(PK,4)}, v23, s[{sOUT}:{sOUT+3}], s{sQA+4} offen")
        self.final_block(1)
        a(f"buffer_store_dwordx4 {vr(PK+4,4)}, v23, s[{sOUT}:{sOUT+3}], s{sQA+4} offen offset:64")
        self.final_block(2)
        a(f"buffer_store_dwordx2 {vr(PK+8,2)}, v34, s[{sOUT}:{sOUT+3}], s{sQA+4} offen offset:128")
        self.stamp(8)

    def phase_w1(self, c0):
        a = self.a
        a.c("================ W1 phase")
        for c in range(6): self.left[c0+c] = 20
        self.basechunk = {}
        def frag(s, j):
            c, u = divmod(3*s+j, 20)
            return (c0+c, 0, u*1024)
        self.set_tl_128()
        a(f"v_mov_b32 v{vP0}, v{vL16}")
        ops = self.make_ops(40, 3)
        self.stamp("x0e")
        self.first_w(ops, NB3, frag)
        self.stamp("x0f")
        self.poll(1, 16)
        self.stamp(4)
        self.tt_off(sT+6, sX1F, 40960)
        accs = [ACC+16*j for j in range(3)]
        hooks = {}
        k1 = -2.0*math.sqrt(2.0/math.pi)*math.log2(math.e)
        k3 = k1*0.044715
        consts = f"""v_mul_f32 v20, {f2u(k1):#x}, v16
v_mul_f32 v22, v16, v16
v_mul_f32 v22, v22, v16
v_mul_f32 v22, {f2u(k3):#x}, v22
v_mov_b32 v24, v17""".split("\n")
        self.aux_hooks(hooks, 3, accs, True, 14, consts)
        hooks.setdefault((26, 2), []).append(lambda: self.aux_load(False))
        def oaddr():
            self.tt_off(sQA, sHF, 98304)
            a(f"""s_mul_i32 s{sT}, s{sCB2}, 6144
s_add_u32 s{sQA}, s{sQA}, s{sT}
s_add_u32 s{sQA+1}, s{sQA}, 4096""")
        self.gemm(ops, NB3, accs, frag, lambda s: s, sT+6, [False]*3, hooks, pre_stats=self.stats_load(sST1), nm='f', pre=[oaddr] + self.deferred)
        self.stamp(5)
        if "E1" in PLAN: self.barrier(tag="E1")
        a("s_nop 9")
        T = ACT
        for blk in range(6):
            r = ACC + 8*blk
            t = T + 8*(blk % 2)
            for k in range(4):
                a(f"v_pk_mul_f32 {vr(t+2*k,2)}, {vr(r+2*k,2)}, {vr(r+2*k,2)}")
            for k in range(4):
                a(f"v_pk_fma_f32 {vr(t+2*k,2)}, {vr(t+2*k,2)}, v[22:23], v[20:21] op_sel_hi:[1,0,0]")
            for k in range(4):
                a(f"v_pk_mul_f32 {vr(t+2*k,2)}, {vr(t+2*k,2)}, {vr(r+2*k,2)}")
            for k in range(8):
                a(f"v_exp_f32 v{t+k}, v{t+k}")
            for k in range(4):
                a(f"v_pk_fma_f32 {vr(t+2*k,2)}, {vr(t+2*k,2)}, v[24:25], v[24:25] op_sel_hi:[1,0,0]")
            for k in range(8):
                a(f"v_rcp_f32 v{t+k}, v{t+k}")
            for k in range(4):
                a(f"v_pk_mul_f32 {vr(t+2*k,2)}, {vr(t+2*k,2)}, {vr(r+2*k,2)}")
            for k in range(4):
                a(f"v_cvt_pk_bf16_f32 v{r+k}, v{t+2*k}, v{t+2*k+1}")
            if blk >= GDEF:
                for b2 in (range(blk+1) if blk == GDEF else [blk]):
                    a(f"buffer_store_dwordx4 {vr(ACC+8*b2,4)}, v{vL16}, s[{sWS}:{sWS+3}], s{sQA + b2//4} offen offset:{(b2%4)*1024}")
        self.stamp("y1c")
        self.publish(2, sCB2)
        self.stamp("y1d")

    def dma_chunk_static(self, n):
        a = self.a
        if n < 8: base, k = sSRC, n
        elif n < 13: base, k = sWO, n-8
        elif n < 19: base, k = sW1, n-13
        elif n < 31: base, k = sW2, n-19
        else: base, k = sWQ, n-31
        a(f"s_add_u32 m0, s{sLDW}, {(n % NSLOT)*CH}\ns_add_u32 s{sT}, s{base}, {k*CH}")
        self.dma5(sT, " nt" if (n < 8 and KV_NT) else "")
    def dma5(self, so, fl=""):
        a = self.a
        for q in range(4):
            a(f"buffer_load_dwordx4 v{vL16}, s[{sWS}:{sWS+3}], s{so} offen offset:{1024*q} lds{fl}" if False else
              f"buffer_load_dwordx4 v{vL16}, s[{sWS}:{sWS+3}], s{so} offen offset:{1024*q}{fl} lds")
        a(f"s_add_u32 m0, m0, 4096\ns_add_u32 s{sT+1}, s{so}, 4096")
        a(f"buffer_load_dwordx4 v{vL16}, s[{sWS}:{sWS+3}], s{sT+1} offen{fl} lds")

    def loader(self, bars, issued, last, touches=None):
        a = self.a
        issued = list(issued)
        touches = touches or {}
        for bi, b in enumerate(bars):
            if b["need"] is not None:
                assert b["need"] in issued, (b, issued)
                n = 5*(len(issued) - 1 - issued.index(b["need"]))
                a(f"s_waitcnt vmcnt({n})")
            a("s_barrier")
            for f in b["free"]:
                nx = f + NSLOT
                if nx <= last and nx not in issued:
                    self.dma_chunk_static(nx); issued.append(nx)
            if bi in touches:
                w, base, off = touches[bi]
                l = a.label("tch")
                a(f"""s_cmp_lg_u32 s{sWAVE}, {w}
s_cbranch_scc1 {l}
s_add_u32 s{sT}, s{base}, {off}
buffer_load_dword v{vDUM}, v{vWRM}, s[{sWS}:{sWS+3}], s{sT} offen
{l}:""")

    def chunk_src(self, n):
        if n < 13: return sWO, n-8
        if n < 19: return sW1, n-13
        if n < 31: return sW2, n-19
        return sWQ, n-31
    def fifo_reg(self, e):
        return 112 + 20*e if e < 7 else 16 + 20*(e-7)
    def fifo_load(self, n, e):
        a = self.a
        r = self.fifo_reg(e)
        (b0, k0), (b1, k1) = self.chunk_src(FL[0][e]), self.chunk_src(FL[1][e])
        a(f"s_add_u32 s{sT}, s{b0}, {k0*CH}")
        if (b0, k0) != (b1, k1):
            a(f"s_add_u32 s{sT+1}, s{b1}, {k1*CH}\ns_cmp_lg_u32 s{sLAST}, 0\ns_cselect_b32 s{sT}, s{sT+1}, s{sT}")
        a(f"s_add_u32 s{sT+1}, s{sT}, 4096")
        for q in range(4):
            a(f"buffer_load_dwordx4 {vr(r+4*q,4)}, v{vL16}, s[{sWS}:{sWS+3}], s{sT} offen offset:{1024*q}")
        a(f"buffer_load_dwordx4 {vr(r+16,4)}, v{vL16}, s[{sWS}:{sWS+3}], s{sT+1} offen")

    def loader2(self, bars, last, plan, npre):
        a = self.a
        vm = VM()
        a(f"v_add_u32 v{vT}, s{sLDW}, v{vL16}")
        NE = 11
        ent = {F0+e: e for e in range(npre)}
        loadbar = {F0+e: -10 for e in range(npre)}
        free_e = list(range(npre, NE))
        nload = F0 + npre; nwrite = F0
        slotfree = set(); inlds = set(range(F0))
        wq = []
        log = []
        def wdone(c):
            nonlocal wq, free_e
            if c in wq:
                i = wq.index(c)
                n = 5*(len(wq) - 1 - i)
                a(f"s_waitcnt lgkmcnt({min(n, 15) if n <= 15 else 15})" if n <= 15 else "s_waitcnt lgkmcnt(15)")
                if n > 15:
                    i = len(wq) - 4
                for x in wq[:i+1]: free_e.append(ent[x])
                wq = wq[i+1:]
        for bi, b in enumerate(bars):
            if b["need"] is not None:
                nd = min(b["need"], last)
                assert all(c in inlds for c in range(nd+1)), (b, sorted(inlds), log)
                wdone(nd)
            a("s_barrier")
            acts = []
            for f in b["free"]: slotfree.add(f + NSLOT)
            k = plan.get(b["tag"], 0)
            def loads(k):
                nonlocal nload
                while k > 0 and nload <= last:
                    if not free_e:
                        if not wq: break
                        wdone(wq[0])
                    e = free_e.pop(0)
                    self.fifo_load(nload, e)
                    for q in range(5): vm.issue(("c", nload))
                    ent[nload] = e; loadbar[nload] = bi
                    acts.append(f"L{nload}"); nload += 1; k -= 1
                return k
            k0 = min(k, len(free_e))
            k -= k0; loads(k0)
            nw = 0
            while nwrite <= last and nwrite in slotfree and nwrite in ent and bi - loadbar[nwrite] >= WR_LAG and nw < plan.get("w" + b["tag"], 2):
                n = vm.need(("c", nwrite))
                if n is not None: a(f"s_waitcnt vmcnt({n})")
                r = self.fifo_reg(ent[nwrite])
                a(f"v_add_u32 v{vT+1}, {(nwrite % NSLOT)*CH}, v{vT}")
                for q in range(5):
                    a(f"ds_write_b128 v{vT+1}, {vr(r+4*q,4)} offset:{1024*q}")
                wq.append(nwrite); inlds.add(nwrite)
                acts.append(f"w{nwrite}"); nwrite += 1; nw += 1
            loads(k)
            log.append(f"{b['tag']}:{','.join(acts)}")
        assert nwrite == last + 1, (nwrite, last, log)
        if os.environ.get("VERBOSE"): print(" ".join(log))

    def loader3(self, bars, last, plan, f0):
        a = self.a
        vm = VM()
        a(f"v_add_u32 v{vT}, s{sLDW}, v{vL16}")
        ent = {c: e for e, c in enumerate(f0)}
        xl = {}
        for tag, cs in XFIFO.items():
            for c, e in cs:
                if c not in f0: ent[c] = e
        loaded = set(f0)
        slotfree = set(); prog = {c: 5 for c in range(15 if PRE13 else 13)}; wq = []; log = []
        for bi, b in enumerate(bars):
            if b["need"] is not None:
                nd = min(b["need"], last)
                assert all(prog.get(c, 0) == 5 for c in range(nd+1)), (b, prog, log)
                for c in range(nd, 12, -1):
                    n = vm.need(("c", c))
                    if n is not None: a(f"s_waitcnt vmcnt({n})")
                if any(c <= nd for c in wq):
                    i = max(i for i, c in enumerate(wq) if c <= nd)
                    a(f"s_waitcnt lgkmcnt({min(15, len(wq)-1-i)})")
                    wq = wq[i+1:]
            a("s_barrier")
            acts = []
            for f in b["free"]: slotfree.add(f + NSLOT)
            k = plan.get(b["tag"], plan["def"]); nw = plan.get("w" + b["tag"], plan["wdef"])
            thr = plan.get("t" + b["tag"], plan.get("tdef"))
            items = []
            for c in sorted(slotfree):
                if c > last or c in ent: continue
                while k > 0 and prog.get(c, 0) < 5:
                    q = prog.get(c, 0); items.append(("D", c, q)); prog[c] = q + 1; k -= 1
            witems = []
            for c in sorted(slotfree):
                if c > last or c not in loaded: continue
                while nw > 0 and prog.get(c, 0) < 5:
                    q = prog.get(c, 0); witems.append(("w", c, q)); prog[c] = q + 1; nw -= 1
            cur = None; curw = None
            def emit(it):
                nonlocal cur, curw
                kind, c, q = it
                if kind == "D":
                    base, kk = self.chunk_src(c)
                    if cur != (c, q // 4):
                        cur = (c, q // 4)
                        a(f"s_add_u32 m0, s{sLDW}, {(c % NSLOT)*CH + (q//4)*4096}\ns_add_u32 s{sT}, s{base}, {kk*CH + (q//4)*4096}")
                    if thr is not None and len(vm.q) > thr:
                        a(f"s_waitcnt vmcnt({thr})"); vm.q = vm.q[len(vm.q)-thr:] if thr else []
                    a(f"buffer_load_dwordx4 v{vL16}, s[{sWS}:{sWS+3}], s{sT} offen offset:{1024*(q%4)} lds")
                    vm.issue(("c", c))
                else:
                    if curw != c:
                        curw = c
                        n = vm.need(("x", c))
                        if n is not None: a(f"s_waitcnt vmcnt({n})")
                        a(f"v_add_u32 v{vT+1}, {(c % NSLOT)*CH}, v{vT}")
                    a(f"ds_write_b128 v{vT+1}, {vr(self.fifo_reg(ent[c])+4*q,4)} offset:{1024*q}")
                    wq.append(c)
                acts.append(f"{kind}{c}")
            for it in ([] if 'noD' in XP else items) + ([] if 'noW' in XP else witems): emit(it)
            for c, e in XFIFO.get(b["tag"], []):
                if c > last or c in f0: continue
                prev = [x for x in ent if ent[x] == e and x < c]
                assert all(prog.get(x, 0) == 5 for x in prev), (c, e)
                if any(x in wq for x in prev): a("s_waitcnt lgkmcnt(0)"); wq.clear()
                if 'noD' in XP: loaded.add(c); continue
                base, kk = self.chunk_src(c); r = self.fifo_reg(ent[c])
                a(f"s_add_u32 s{sT}, s{base}, {kk*CH}\ns_add_u32 s{sT+1}, s{base}, {kk*CH+4096}")
                for q in range(5):
                    a(f"buffer_load_dwordx4 {vr(r+4*q,4)}, v{vL16}, s[{sWS}:{sWS+3}], s{sT + q//4} offen offset:{1024*(q%4)}")
                    vm.issue(("x", c))
                loaded.add(c); acts.append(f"L{c}")
            import itertools
            log.append(f"{b['tag']}:" + ",".join(f"{k_}x{len(list(g_))}" for k_, g_ in itertools.groupby(acts)))
        assert all(prog.get(c, 0) == 5 for c in range(last+1)), log
        if os.environ.get("VERBOSE"): print(" ".join(log))

    def att_tile(self, t):
        a = self.a
        u = t % 8; cc = t // 8
        X, Y = SS[u % 2], SS[(u+1) % 2]
        e = lambda k: a(f"v_exp_f32 v{X+k}, v{X+k}")
        c = lambda k: a(f"v_cvt_pk_bf16_f32 v{P+k}, v{X+2*k}, v{X+2*k+1}")
        kt, vt = (u+2) % 8, (u+1) % 8
        vb = V1[(u+1) % 2]
        last = t == 63
        self.stamp(f"t{t}")
        upd = lambda q: a(f"v_mad_u32_u24 v{vVA+q}, s{sSLOT}, v{vMV}, v{vBV+q}")
        if u == 7 and not last: upd(2)
        e(0)
        a(f"v_cvt_pk_bf16_f32 v{P+7}, v{Y+14}, v{Y+15}")
        if u == 7 and not last: upd(3)
        e(1); e(2)
        a(f"v_mfma_f32_32x32x16_bf16 {vr(O,16)}, {vr(vb,4)}, {vr(P+4,4)}, {vr(O,16)}")
        if not last:
            a(f"ds_read_b64_tr_b16 {vr(vb,2)}, v{vVA+2} offset:{vt*2560}")
            a(f"ds_read_b64_tr_b16 {vr(vb+2,2)}, v{vVA+3} offset:{vt*2560}")
        if u == 7 and not last: upd(0); upd(1)
        c(0); e(3); e(4); c(1); e(5); e(6)
        a(f"s_waitcnt lgkmcnt({0 if last else 2})")
        if not last:
            a(f"v_mfma_f32_32x32x16_bf16 {vr(Y,16)}, {vr(K1,4)}, {vr(Q1,4)}, 0")
        if u == 6 and cc < 7:
            a(f"""s_mov_b32 s{sSLOT}, {((cc+1) % NSLOT)*CH}
v_add_u32 v{vK1}, s{sSLOT}, v{vBK1}
v_mad_u32_u24 v{vK2}, s{sSLOT}, v{vMK}, v{vBK2}""")
            if cc % 2 == 0 or cc == 1:
                n = self.avm.need(("c", cc+1))
                if t == S_FLAG: n = 0; self.avm.drain()
                if n is not None: a(f"s_waitcnt vmcnt({n})")
                a("s_barrier")
        if t == 2:
            n = self.avm.need(("c", 0))
            if n is not None: a(f"s_waitcnt vmcnt({n})")
            a("s_barrier")
        if t < 62:
            a(f"ds_read_b128 {vr(K1,4)}, v{vK1} offset:{kt*2560}")
        if t in PRIO: a(f"s_setprio {PRIO[t]}")
        self.att_round(2*t)
        c(2); e(7); e(8); c(3); e(9); e(10)
        if not last:
            a(f"v_mfma_f32_32x32x8_bf16 {vr(Y,16)}, {vr(K2,2)}, {vr(Q2,2)}, {vr(Y,16)}")
        if t < 62:
            a(f"ds_read_b64 {vr(K2,2)}, v{vK2} offset:{kt*2560}")
        self.att_side(t)
        self.att_round(2*t+1)
        c(4); e(11); e(12); c(5); e(13); e(14)
        a(f"v_mfma_f32_32x32x16_bf16 {vr(O,16)}, {vr(V0,4)}, {vr(P,4)}, {vr(O,16)}")
        if not last:
            a(f"ds_read_b64_tr_b16 {vr(V0,2)}, v{vVA} offset:{vt*2560}")
            a(f"ds_read_b64_tr_b16 {vr(V0+2,2)}, v{vVA+1} offset:{vt*2560}")
        c(6); e(15)

    def ool(self, cond, body):
        a = self.a
        lo, lb = a.label("ool"), a.label("back")
        a(f"{cond} {lo}\n{lb}:")
        sav = a.L; a.L = self.oolbuf
        a(f"{lo}:"); body(); a(f"s_branch {lb}")
        a.L = sav

    def att_round(self, slot):
        a = self.a
        if 'noside' in XP or slot not in ROUNDS: return
        kind, n, q = ROUNDS[slot]; t = slot // 2
        if kind == "S":
            if q == 0:
                a(f"""s_xor_b32 s{sT+4}, s{sG}, {n}
s_mul_i32 s{sDP}, s{sT+4}, {CH}
s_add_u32 s{sDP}, s{sDP}, s{sSRC}
s_sub_u32 s{sDP}, s{sDP}, s{sLDW}
s_mul_i32 s{sT+6}, s{sWAVE}, 2560
s_min_u32 s{sT+6}, s{sT+6}, {CH - 3072}
s_add_u32 s{sDP}, s{sDP}, s{sT+6}""")
                self.ool(f"s_cmp_eq_u32 s{sRDY}, 0\ns_cbranch_scc1", self.kv_check)
                a(f"s_add_u32 m0, s{sT+6}, {n*CH}\ns_nop 0")
            a(f"buffer_load_dwordx4 v{vL16}, s[{sWS}:{sWS+3}], s{sDP} offen offset:{1024*q} lds")
            self.avm.issue(("c", n))
        elif kind == "T":
            if q == 0:
                a(f"""s_lshl3_add_u32 s{sT}, s{sJ}, s{sWAVE}
s_mul_i32 s{sT}, s{sT}, 6144
s_mul_i32 s{sZP}, s{sG}, {AST}
s_add_u32 s{sZP}, s{sZP}, s{sT}
s_add_u32 s{sZP}, s{sZP}, {ARENA}
s_cmp_lg_u32 s{sLAST}, 0
s_cselect_b32 s{sZP}, {OOB}, s{sZP}""")
            r = self.fifo_reg(1)
            a(f"buffer_load_dwordx4 {vr(r,4)}, v{vL16 if q < 4 else vL16B}, s[{sWS}:{sWS+3}], s{sZP} offen offset:{1024*(q%4)}")
            self.avm.issue(("t", n))
        elif kind == "D":
            if q == 0:
                if n >= NSLOT: assert slot >= 2*(8*(n + 1 - NSLOT + 1) + 6), (slot, n)
                if n >= 7: assert t > S_POLL + 2
                if n < 8:
                    a(f"""s_add_u32 s{sT+4}, s{sROLE}, {n}
s_xor_b32 s{sT+4}, s{sT+4}, s{sG}
s_and_b32 s{sT+4}, s{sT+4}, 7
s_mul_i32 s{sDP}, s{sT+4}, {CH}
s_add_u32 s{sDP}, s{sDP}, s{sSRC}""")
                    self.ool(f"s_cmp_eq_u32 s{sRDY}, 0\ns_cbranch_scc1", self.kv_check)
                    if n == 7: a(f"s_cmp_lg_u32 s{sROLE}, 0\ns_cselect_b32 s{sDP}, s{sWO}, s{sDP}")
                else:
                    a(f"s_mul_i32 s{sDP}, s{sROLE}, {CH}\ns_add_u32 s{sDP}, s{sDP}, s{sWO}\ns_add_u32 s{sDP}, s{sDP}, {(n-8)*CH}")
                a(f"s_add_u32 m0, s{sLDR}, {(n % NSLOT)*CH}\ns_nop 0")
            if q < 4:
                a(f"buffer_load_dwordx4 v{vL16}, s[{sWS}:{sWS+3}], s{sDP} offen offset:{1024*q} lds")
            else:
                a(f"s_add_u32 m0, m0, 4096\ns_nop 0\nbuffer_load_dwordx4 v{vL16B}, s[{sWS}:{sWS+3}], s{sDP} offen lds")
            self.avm.issue(("c", n))
        else:
            assert t > (WQ_POLL if (WQ_POLL > 0 and FL[0][n] >= 31 and n in (E_T0, E_T1)) else S_POLL) + 2
            if q == 0:
                (b0, k0), (b1, k1) = self.chunk_src(FL[0][n]), self.chunk_src(FL[1][n])
                a(f"s_add_u32 s{sFP}, s{b0}, {k0*CH}")
                if (b0, k0) != (b1, k1):
                    a(f"s_add_u32 s{sT}, s{b1}, {k1*CH}\ns_cmp_lg_u32 s{sLAST}, 0\ns_cselect_b32 s{sFP}, s{sT}, s{sFP}")
                if n == E_RES: src = f"s{sRES}"
                elif n in (E_C13, E_C14): a(f"s_add_u32 s{sT}, s{sW1}, {(n-E_C13)*CH}"); src = f"s{sT}"
                elif n in (E_T0, E_T1): a(f"s_add_u32 s{sT}, s{sAR}, {(n-E_T0)*2048}"); src = f"s{sT}"
                else: src = f"{OOB:#x}"
                a(f"s_cmp_eq_u32 s{sROLE}, 0\ns_cselect_b32 s{sFP}, {src}, s{sFP}")
            r = self.fifo_reg(n) + 4*q
            fl = " sc1" if n == E_RES else ""
            v0_, v1_ = (vRS, vRSB) if n == E_RES else (vL16, vL16B)
            if q < 4: a(f"buffer_load_dwordx4 {vr(r,4)}, v{v0_}, s[{sWS}:{sWS+3}], s{sFP} offen offset:{1024*q}{fl}")
            else: a(f"buffer_load_dwordx4 {vr(r,4)}, v{v1_}, s[{sWS}:{sWS+3}], s{sFP} offen{fl}")
            self.avm.issue(("f", n))

    def att_side(self, t):
        a = self.a
        if 'noside' in XP: return
        if t == XC_AT:
            a(f"""s_lshl_b32 s{sT}, s{sG}, 7
s_add_u32 s{sT}, s{sT}, {XCC}
buffer_load_dword v{vXC+1}, v{vXC+1}, s[{sWS}:{sWS+3}], s{sT} offen sc1""")
            self.avm.issue("xc")
        if any(k in "SD" and 1 < n < 8 and q == 0 and sl // 2 == t + 2 for sl, (k, n, q) in ROUNDS.items()):
            assert not (S_POLL - 2 <= t <= S_POLL + 2)
            self.ool(f"s_cmp_eq_u32 s{sRDY}, 0\ns_cbranch_scc1", self.kv_flags_load)
        self.strip_side(t)
        if t == RESX_AT:
            def resx():
                self.set_tl_64()
                srd(a, sSS, sXP, S*D*2)
                a(f"""s_lshl3_add_u32 s{sT}, s{sG}, s{sTL}
s_mul_i32 s{sT}, s{sT}, 40960
s_mul_i32 s{sT+1}, s{sCB}, 160
s_add_u32 s{sT}, s{sT}, s{sT+1}
s_lshl_b32 s{sT+1}, s{sKH}, 4
v_and_b32 v{vDUM}, 15, v{vLANE}
v_add_u32 v{vDUM}, s{sT+1}, v{vDUM}
v_mul_u32_u24 v{vDUM}, 1280, v{vDUM}
v_lshrrev_b32 v30, 4, v{vLANE}
v_lshl_add_u32 v31, v30, 3, v{vDUM}
v_lshl_add_u32 v{vDUM}, v30, 4, v{vDUM}
buffer_load_dwordx4 {vr(RX,4)}, v{vDUM}, s[{sSS}:{sSS+3}], s{sT} offen
buffer_load_dwordx4 {vr(RX+4,4)}, v{vDUM}, s[{sSS}:{sSS+3}], s{sT} offen offset:64
buffer_load_dwordx2 {vr(RX+8,2)}, v31, s[{sSS}:{sSS+3}], s{sT} offen offset:128
s_mov_b32 s{sTL}, s{sWAVE}""")
            assert all(sl < 2*t for sl, (k, n, q) in ROUNDS.items() if k == "F" and n == 0)
            self.ool(f"s_or_b32 s{sT}, s{sROLE}, s{sLAST}\ns_cbranch_scc0", resx)

    def pub_addr(self, stt, layer):
        self.a(f"""s_lshr_b32 s{sPUB}, s{stt}, 2
s_lshl_b32 s{sPUB}, s{sPUB}, 7
s_and_b32 s{sT}, s{stt}, 3
s_lshl2_add_u32 s{sPUB}, s{sT}, s{sPUB}
s_lshl_b32 s{sT}, s{sCB2}, 11
s_add_u32 s{sPUB}, s{sPUB}, s{sT}
s_add_u32 s{sPUB}, s{sPUB}, {QF + 32768*layer}""")

    def kv_flags_load(self):
        self.a(f"""buffer_load_dword v{vPL}, v{vXC}, s[{sWS}:{sWS+3}], s{sQFK} offen sc1
buffer_load_dword v{vPL+1}, v{vXC}, s[{sWS}:{sWS+3}], s{sQFV} offen sc1""")
    def kv_check(self):
        a = self.a
        l, lp = a.label("kc"), a.label("kp")
        a(f"""s_lshl_b32 s{sT+4}, s{sT+4}, 3
s_mov_b32 s{sT+5}, 0x100000
{lp}:
s_waitcnt vmcnt(0)
v_and_b32 v{vPL}, v{vPL}, v{vPL+1}
v_cmp_ne_u32 s[{sT+2}:{sT+3}], 0, v{vPL}
s_cmp_eq_u64 s[{sT+2}:{sT+3}], -1
s_cselect_b32 s{sRDY}, 1, 0
s_lshr_b64 s[{sT+2}:{sT+3}], s[{sT+2}:{sT+3}], s{sT+4}
s_and_b32 s{sT+2}, s{sT+2}, 0xff
s_cmp_eq_u32 s{sT+2}, 0xff
s_cbranch_scc1 {l}
s_sub_u32 s{sT+5}, s{sT+5}, 1
s_cbranch_scc1 {l}""")
        self.kv_flags_load()
        a(f"s_branch {lp}\n{l}:")

    def strip_side(self, t):
        a = self.a
        def only(ty, f):
            self.ool(f"s_cmp_ge_u32 s{sTy}, {ty}\ns_cbranch_scc1", f)
        def two(f4, f10):
            def body():
                l = a.label("st")
                f4()
                a(f"s_cmp_eq_u32 s{sTy}, 1\ns_cbranch_scc1 {l}")
                f10()
                a(f"{l}:")
            only(1, body)
        def loads(js):
            for j in js:
                a(f"""s_add_u32 s{sT+1}, s{sSo}, s{sBp}
buffer_load_dwordx2 {vr(SR+4*j,2)}, v{vSO}, s[{sSS}:{sSS+3}], s{sSo} offen
buffer_load_dwordx2 {vr(SR+4*j+2,2)}, v{vSO}, s[{sSS}:{sSS+3}], s{sT+1} offen
s_add_u32 s{sSo}, s{sSo}, s{sA}""")
        assert S_WR >= 14
        wr = lambda ks: [a(f"ds_write_b64 v{vSC}, {vr(SR+2*k,2)} offset:{512*(k % 14)}") for k in ks]
        rd = lambda ks: [a(f"ds_read_b64_tr_b16 {vr(SR+2*k,2)}, v{vSC} offset:{512*(k % 14)}") for k in ks]
        def st(js):
            for j in js:
                a(f"buffer_store_dwordx4 {vr(SR+4*j,4)}, v{vSD}, s[{sWS}:{sWS+3}], s{sDs} offen sc0 sc1\ns_add_u32 s{sDs}, s{sDs}, s{sSt if j % 2 else sSt0}")
        def aux():
            a(f"""s_cmp_ge_u32 s{sQd}, 2
s_cselect_b32 s{sT}, -1, 0
v_and_b32 v{CSA+1}, 0xffff0000, v{CSA}
v_sub_f32 v{CSA+3}, v{CSA}, v{CSA+1}
v_lshrrev_b32 v{CSA+2}, 16, v{CSA+1}
v_or_b32 v{CSA+2}, v{CSA+2}, v{CSA+1}
v_lshrrev_b32 v{CSA+3}, 16, v{CSA+3}
v_and_b32 v{vBI}, s{sT}, v{vBI}
v_lshl_or_b32 v{CSA+3}, v{vBI}, 16, v{CSA+3}
v_lshlrev_b32 v{CSA}, 30, v{vH}
v_add_u32 v{CSA}, v{CSA}, v{vL16}
buffer_store_dwordx2 {vr(CSA+2,2)}, v{CSA}, s[{sWS}:{sWS+3}], s{sAx} offen sc0 sc1""")
        mf = lambda js: [a(f"v_mfma_f32_32x32x16_bf16 {vr(CSA,16)}, {vr(ONE,4)}, {vr(SR+4*j,4)}, {'0' if j == 0 else vr(CSA,16)}") for j in js]
        def either(f1, f2):
            def body():
                l, le = a.label("e2"), a.label("ee")
                a(f"s_cmp_eq_u32 s{sTy}, 2\ns_cbranch_scc1 {l}")
                f1()
                a(f"s_branch {le}\n{l}:")
                f2()
                a(f"{le}:")
            only(1, body)
        def loads16(sg):
            a(f"""s_add_u32 s{sT+1}, s{sSo}, s{sBp}
buffer_load_dwordx4 {vr(SR+8*sg,4)}, v{vSO}, s[{sSS}:{sSS+3}], s{sSo} offen
buffer_load_dwordx4 {vr(SR+8*sg+4,4)}, v{vSO}, s[{sSS}:{sSS+3}], s{sT+1} offen
s_add_u32 s{sSo}, s{sSo}, s{sA}""")
        def wr16():
            for sg in range(2):
                for ab in range(2):
                    for p in range(2):
                        a(f"ds_write_b64 v{vSC}, {vr(SR+8*sg+4*p+2*ab,2)} offset:{512*(4*sg+2*ab+p)}")
        k = t - S_LD
        if k in (0, 1): either(lambda: loads16(k), lambda: loads([2*k, 2*k+1]))
        if k in (2, 3, 4): only(2, lambda: loads([2*k, 2*k+1]))
        k = t - S_WR
        if k == 0: either(lambda: (a("s_waitcnt vmcnt(0)"), wr16()), lambda: (a("s_waitcnt vmcnt(0)"), wr(range(8))))
        if k == 1: two(lambda: rd(range(8)), lambda: wr(range(8, 14)))
        if k == 2: two(lambda: st(range(4)), lambda: (wr(range(14, 20)), rd(range(8, 14))))
        if k == 3: only(2, lambda: (rd(range(14, 20)), st(range(4, 7)), mf(range(0, 3))))
        if k == 4: only(2, lambda: (st(range(7, 10)), mf(range(3, 6))))
        if k == 5: only(2, lambda: mf(range(6, 10)))
        if k == 6: only(2, aux)
        if t == S_FLAG:
            self.ool(f"s_or_b32 s{sT}, s{sWAVE}, s{sLAST}\ns_cbranch_scc0", lambda: a(f"""s_lshl_b32 s{sT}, s2, 2
s_add_u32 s{sT}, s{sT}, {WFL}
s_mov_b64 exec, 1
buffer_store_dword v{vMK}, v{vL16}, s[{sWS}:{sWS+3}], s{sT} offen sc0 sc1
s_mov_b64 exec, -1"""))
        assert WFL == 0
        chk = f"""v_and_b32 v{vPL}, v{vPL}, v{vPL+1}
v_and_b32 v{vPL+2}, v{vPL+2}, v{vPL+3}
v_and_b32 v{vPL}, v{vPL}, v{vPL+2}
v_cmp_eq_u32 vcc, 0, v{vPL}"""
        ld = f"buffer_load_dwordx4 {vr(vPL,4)}, v{vL16}, s[{sWS}:{sWS+3}], 0 offen sc1"
        ldq = f"buffer_load_dword v{vPL+2}, v{vXC}, s[{sWS}:{sWS+3}], s{sT} offen sc1"
        adq = f"s_lshl_b32 s{sT}, s{sCB2}, 11\ns_add_u32 s{sT}, s{sT}, {QF}"
        if t == WQ_POLL:
            a(adq + "\n" + ldq); self.avm.issue("wq")
        if t == WQ_POLL + 2:
            n = self.avm.need("wq")
            def retryq():
                l, lp = a.label("qd"), a.label("qq")
                a(f"""{adq}
s_mov_b32 s{sT+1}, 0x100000
{lp}:
{ldq}
s_sub_u32 s{sT+1}, s{sT+1}, 1
s_cbranch_scc1 {l}
s_waitcnt vmcnt(0)
v_cmp_eq_u32 vcc, 0, v{vPL+2}
s_cbranch_vccnz {lp}
{l}:""")
            self.ool((f"s_waitcnt vmcnt({n})\n" if n is not None else "") + f"v_cmp_eq_u32 vcc, 0, v{vPL+2}\ns_cbranch_vccnz", retryq)
        if t == S_POLL:
            a(ld); self.avm.issue("pl")
        if t == S_POLL + 2:
            n = self.avm.need("pl")
            def retry():
                l, lp = a.label("pd"), a.label("pp")
                a(f"""s_mov_b32 s{sT+1}, 0x100000
{lp}:
{ld}
s_sub_u32 s{sT+1}, s{sT+1}, 1
s_cbranch_scc1 {l}
s_waitcnt vmcnt(0)
{chk}
s_cbranch_vccnz {lp}
{l}:""")
            self.ool(f"s_waitcnt vmcnt({n})\n{chk}\ns_cbranch_vccnz", retry)

    def strip_setup(self):
        a = self.a
        b4, r, sw, i, t0, t1 = 192, 193, 194, 195, 196, 197
        U = [90, 91, 93, 94]
        a(f"""s_load_dwordx2 s[52:53], s[0:1], 16
s_load_dwordx2 s[54:55], s[0:1], 48
s_load_dwordx4 s[56:59], s[0:1], 32
s_mov_b32 s{sTy}, 0
v_bfe_u32 v{b4}, v{vLANE}, 4, 1
v_bfe_u32 v{r}, v{vLANE}, 2, 2
v_and_b32 v{sw}, 1, v{vLANE}
v_lshlrev_b32 v{sw}, 1, v{sw}
v_bfe_u32 v{i}, v{vLANE}, 1, 1
v_or_b32 v{sw}, v{sw}, v{i}
v_and_b32 v{i}, 31, v{vLANE}
s_lshl_b32 s{sT}, s{sWAVE}, 12
s_add_u32 s{sT}, s{sT}, {7168 - 4096}
s_cmp_eq_u32 s{sWAVE}, 0
s_cselect_b32 s{sT}, 0, s{sT}
v_lshlrev_b32 v{vSC}, 3, v{vLANE}
v_add_u32 v{vSC}, s{sT}, v{vSC}
v_mov_b32 v{ONE}, 0x3f803f80
v_mov_b32 v{ONE+1}, 0x3f803f80
v_mov_b32 v{ONE+2}, 0x3f803f80
v_mov_b32 v{ONE+3}, 0x3f803f80
s_waitcnt lgkmcnt(0)
s_mov_b32 s{sSS}, s56
s_and_b32 s{sSS+1}, s57, 0xffff
s_mov_b32 s{sSS+2}, 0
s_mov_b32 s{sSS+3}, 0x20000
s_mov_b32 s{sBS}, s58
s_and_b32 s{sBS+1}, s59, 0xffff
s_mov_b32 s{sBS+2}, {F*2}
s_mov_b32 s{sBS+3}, 0x20000
s_cmp_lg_u32 s{sWAVE}, 0
s_cbranch_scc1 L_st_n80a
s_cmp_ge_u32 s2, 240
s_cbranch_scc1 L_st_done
s_cmp_ge_u32 s2, 192
s_cbranch_scc1 L_st_n80b
s_mov_b32 s{sTy}, 2
s_mov_b32 s{sSS}, s56
s_and_b32 s{sSS+1}, s57, 0xffff
s_mov_b32 s{sSS+2}, {D*F*2}
s_bfe_u32 s{U[0]}, s2, 0x10002
s_mul_i32 s{U[0]}, s{U[0]}, 24
s_add_u32 s{U[0]}, s{U[0]}, s{sJ}              ; strip
s_and_b32 s{sQd}, s2, 3
s_mul_i32 s{U[1]}, s{U[0]}, 0x5556
s_lshr_b32 s{U[1]}, s{U[1]}, 16            ; cb
s_mul_i32 s{U[2]}, s{U[1]}, 3
s_sub_u32 s{U[2]}, s{U[0]}, s{U[2]}           ; tile
s_lshl_b32 s{U[0]}, s{U[0]}, 5                 ; col0
v_lshlrev_b32 v{t0}, 4, v{b4}
v_lshl_add_u32 v{t0}, v{sw}, 2, v{t0}
v_add_u32 v{t0}, s{U[0]}, v{t0}
v_lshl_add_u32 v{t1}, v{vH}, 3, v{r}
v_mul_u32_u24 v{vSO}, 3072, v{t1}
v_lshl_add_u32 v{vSO}, v{t0}, 1, v{vSO}
s_mov_b32 s{sA}, {16*3072}
s_mov_b32 s{sBp}, {4*3072}
s_mul_i32 s{sSo}, s{sQd}, {160*3072}
v_and_b32 v{t0}, 19, v{i}
v_bfe_u32 v{t1}, v{i}, 2, 1
v_lshl_or_b32 v{t0}, v{t1}, 3, v{t0}
v_bfe_u32 v{t1}, v{i}, 3, 1
v_lshl_or_b32 v{t0}, v{t1}, 2, v{t0}
v_add_u32 v{t0}, s{U[0]}, v{t0}
v_lshlrev_b32 v{vBI}, 1, v{t0}
buffer_load_ushort v{vBI}, v{vBI}, s[{sBS}:{sBS+3}], 0 offen
v_mov_b32 v{vSD}, v{vL16}
s_mul_i32 s{sDs}, s{U[1]}, 122880
s_mul_i32 s{sT}, s{sQd}, 30720
s_add_u32 s{sDs}, s{sDs}, s{sT}
s_lshl_b32 s{sT}, s{U[2]}, 10
s_add_u32 s{sDs}, s{sDs}, s{sT}
s_add_u32 s{sDs}, s{sDs}, {W1_F}
s_mov_b32 s{sSt}, 3072
s_lshl_b32 s{sAx}, s{U[1]}, 12
s_add_u32 s{sAx}, s{sAx}, s{sT}
s_lshr_b32 s{sT}, s{sQd}, 1
s_lshl_b32 s{sT}, s{sT}, 9
s_add_u32 s{sAx}, s{sAx}, s{sT}
s_and_b32 s{sT}, s{sQd}, 1
s_lshl_b32 s{sT}, s{sT}, 3
s_add_u32 s{sAx}, s{sAx}, s{sT}
s_add_u32 s{sAx}, s{sAx}, {AUX1}
s_mov_b32 s{sSt0}, s{sSt}
s_branch L_st_done
L_st_n80b:
s_sub_u32 s{sT}, s2, 192
s_mul_i32 s{U[0]}, s{sT}, 0x5556
s_lshr_b32 s{U[0]}, s{U[0]}, 16
s_mul_i32 s{U[1]}, s{U[0]}, 3
s_sub_u32 s{U[1]}, s{sT}, s{U[1]}          ; tile
s_and_b32 s{U[2]}, s{U[0]}, 7                ; cb
s_lshr_b32 s{U[3]}, s{U[0]}, 3
s_add_u32 s{U[3]}, s{U[3]}, 32
s_branch L_st_n80
L_st_n80a:
s_and_b32 s{U[2]}, s{sJ}, 7
s_and_b32 s{U[3]}, s{sJ}, 24
s_add_u32 s{U[3]}, s{U[3]}, s{sG}
s_sub_u32 s{U[1]}, s{sWAVE}, 1
L_st_n80:
s_mov_b32 s{sTy}, 1
s_mov_b32 s{sBp}, {4*1280}
s_cmp_lt_u32 s{U[3]}, 10
s_cbranch_scc1 L_st_wo
s_sub_u32 s{U[3]}, s{U[3]}, 10
s_mov_b32 s{sSS}, s54
s_and_b32 s{sSS+1}, s55, 0xffff
s_mov_b32 s{sSS+2}, {F*D*2}
s_mov_b32 s{sA}, {32*1280}
s_mul_i32 s{sSo}, s{U[3]}, {64*1280}
s_mul_i32 s{sDs}, s{U[2]}, 245760
s_add_u32 s{sDs}, s{sDs}, {W2_F}
s_mov_b32 s{sQd}, 16
s_mov_b32 s{sAx}, 8
s_branch L_st_go
L_st_wo:
s_mov_b32 s{sSS}, s52
s_and_b32 s{sSS+1}, s53, 0xffff
s_mov_b32 s{sSS+2}, {D*D*2}
s_mul_i32 s{sDs}, s{U[2]}, 102400
s_add_u32 s{sDs}, s{sDs}, {WO_F}
s_mov_b32 s{sA}, {40*1280}
s_mul_i32 s{sSo}, s{U[3]}, {80*1280}
s_mov_b32 s{sQd}, 20
s_mov_b32 s{sAx}, 8
s_cmp_lt_u32 s{U[3]}, 8
s_cbranch_scc1 L_st_go
s_mov_b32 s{sA}, {160*1280}
s_mov_b32 s{sBp}, {20*1280}
s_sub_u32 s{sSo}, s{U[3]}, 8
s_mul_i32 s{sSo}, s{sSo}, {320*1280}
s_add_u32 s{sSo}, s{sSo}, {16*1280}
s_mov_b32 s{sQd}, 80
s_mov_b32 s{sAx}, 40
L_st_go:
v_mul_lo_u32 v{vSO}, s{sQd}, v{vH}
v_mul_lo_u32 v{t0}, s{sAx}, v{b4}
v_add3_u32 v{vSO}, v{vSO}, v{t0}, v{r}
v_mul_u32_u24 v{vSO}, 1280, v{vSO}
s_mul_i32 s{sT}, s{U[2]}, 160
s_lshl_b32 s{sT+1}, s{U[1]}, 6
s_add_u32 s{sT}, s{sT}, s{sT+1}
s_add_u32 s{sSo}, s{sSo}, s{sT}
s_mul_i32 s{U[3]}, s{U[3]}, 10240
s_add_u32 s{sDs}, s{sDs}, s{U[3]}
s_lshl_b32 s{sT}, s{U[1]}, 11
s_add_u32 s{sDs}, s{sDs}, s{sT}
s_cmp_eq_u32 s{U[1]}, 2
s_cselect_b32 s{sT+1}, 8, 16
s_mov_b32 s{sSt0}, {OOB}
s_cselect_b32 s{sSt0}, s{sSt0}, 1024
s_sub_u32 s{sSt}, 5120, s{sSt0}
v_and_b32 v{t0}, 3, v{vLANE}
v_mul_lo_u32 v{t0}, s{sT+1}, v{t0}
v_add_u32 v{vSO}, v{vSO}, v{t0}
v_mov_b32 v{vSD}, v{vL16}
L_st_done:
""")
        a("s_load_dwordx2 s[52:53], s[0:1], 56\ns_waitcnt lgkmcnt(0)")
        srd(a, sB2, 52, D*2)

    def split3(self, m):
        a = self.a
        a(f"""
v_sub_f32 v{vT}, 0, v{m}
v_and_b32 v{vT+1}, 0xffff0000, v{vT}
v_sub_f32 v{vT}, v{vT}, v{vT+1}
v_and_b32 v{vT+2}, 0xffff0000, v{vT}
v_sub_f32 v{vT}, v{vT}, v{vT+2}
v_lshrrev_b32 v{vT+1}, 16, v{vT+1}
v_cmp_gt_u32 vcc, 32, v{vLANE}
v_or_b32 v{vT+1}, v{vT+1}, v{vT+2}
v_lshrrev_b32 v{vT}, 16, v{vT}
v_cndmask_b32 v{Q2}, v{vT+1}, v{Q2}, vcc
v_cndmask_b32 v{Q2+1}, v{vT}, v{Q2+1}, vcc
""")

    def rowmax16(self, X, dst, init=None):
        a = self.a
        if init is None:
            a(f"v_max3_f32 v{dst}, v{X}, v{X+1}, v{X+2}")
            a(f"v_max_f32 v{dst}, v{dst}, v{X+3}")
            k0 = 4
        else:
            k0 = 0
        for k in range(k0, 16, 2):
            a(f"v_max3_f32 v{dst}, v{dst}, v{X+k}, v{X+k+1}")
    def crosshalf_max(self, m):
        a = self.a
        a(f"""v_mov_b32 v{vT}, v{m}
s_nop 1
v_permlane32_swap_b32 v{m}, v{vT}
s_nop 1
v_max_f32 v{m}, v{m}, v{vT}""")

    def tpos(self, dst, tok, tmp):
        self.a(f"""v_and_b32 v{dst}, 3, v{tok}
v_bfe_u32 v{tmp}, v{tok}, 3, 1
v_lshl_or_b32 v{dst}, v{tmp}, 2, v{dst}
v_bfe_u32 v{tmp}, v{tok}, 2, 1
v_lshl_or_b32 v{dst}, v{tmp}, 3, v{dst}
v_and_b32 v{tmp}, 16, v{tok}
v_or_b32 v{dst}, v{dst}, v{tmp}
v_xor_b32 v{dst}, {8 + 256}, v{dst}
v_lshlrev_b32 v{dst}, 3, v{dst}""")

    def attention(self):
        a = self.a
        a.c("================ attention")
        l1, l2, l3 = a.label("p1"), a.label("p2"), a.label("p3")
        a(f"""
v_and_b32 v{vT}, 19, v{vLANE}
v_bfe_u32 v{vT+1}, v{vLANE}, 2, 1
v_lshl_or_b32 v{vT}, v{vT+1}, 3, v{vT}
v_bfe_u32 v{vT+1}, v{vLANE}, 3, 1
v_lshl_or_b32 v{vT}, v{vT+1}, 2, v{vT}        ; pi
v_lshlrev_b32 v{vT+1}, 3, v{vH}
v_xor_b32 v{vT+1}, v{vT+1}, v{vT}
v_lshlrev_b32 v{vT+1}, 4, v{vT+1}
v_lshl_add_u32 v{vBK1}, v{vH}, 9, v{vT+1}      ; K1 base
""")
        self.tpos(vBK2, vT, vT+1)
        a(f"""v_lshlrev_b32 v{vT}, 30, v{vH}
v_add_u32 v31, v{vT}, v{vBK2}
v_add_u32 v30, v{vT}, v{vTL}""")
        a(f"""
s_mov_b32 s{sTL}, s{sWAVE}
s_mul_i32 s{sT}, s{sWAVE}, 2560
s_add_u32 s{sT}, s{sT}, {MISC}
v_lshlrev_b32 v{vT}, 3, v{vLANE}
v_add_u32 v{vT}, s{sT}, v{vT}
v_and_b32 v{vT+1}, 7, v{vLANE}
v_cmp_eq_u32 vcc, 2, v{vT+1}
v_mov_b32 v22, 0x3f803f80
v_mov_b32 v23, 0x3f80
v_cndmask_b32 v{vT+3}, 0, v22, vcc
v_cmp_eq_u32 vcc, 0, v{vT+1}
v_lshrrev_b32 v{vXC}, 2, v{vLANE}
v_lshlrev_b32 v{vXC}, 5, v{vXC}
v_and_or_b32 v{vXC}, v{vLANE}, 3, v{vXC}
v_lshlrev_b32 v{vXC}, 2, v{vXC}
v_cndmask_b32 v{vT+2}, v{vT+3}, v23, vcc
ds_write_b64 v{vT}, {vr(vT+2,2)}
v_mov_b32 v{vT+1}, {MISC + 16}
v_cmp_gt_u32 vcc, 32, v{vLANE}
v_sub_u32 v{vMK}, 1, v{vH}
s_nop 0
v_cndmask_b32 v{vBK2}, v{vT+1}, v{vBK2}, vcc     ; K2 base
""")
        def rest():
            a(f"""
v_bfe_u32 v{vT}, v{vLANE}, 2, 2               ; r
v_and_b32 v{vT+1}, 1, v{vLANE}                 ; c&1
v_xor_b32 v{vT+2}, v{vT+1}, v{vH}
v_lshl_add_u32 v{vT+2}, v{vT+2}, 3, v{vT}
v_lshlrev_b32 v{vT+2}, 4, v{vT+2}
v_lshl_add_u32 v{vT+2}, v{vT+1}, 9, v{vT+2}
v_bfe_u32 v{vT+1}, v{vLANE}, 1, 1
v_lshl_add_u32 v{vT+2}, v{vT+1}, 3, v{vT+2}    ; main (m=0,p=0) - 1024
v_lshlrev_b32 v{vT}, 3, v{vT}
v_lshl_add_u32 v{vT}, v{vH}, 5, v{vT}
v_xor_b32 v{vT+1}, 1, v{vT+1}
v_lshlrev_b32 v{vT+1}, 3, v{vT+1}
v_and_b32 v{vT+3}, 16, v{vLANE}
v_cmp_eq_u32 s[{sT}:{sT+1}], 0, v{vT+3}
v_and_b32 v{vT+3}, 19, v{vLANE}
v_cmp_lt_u32 vcc, 16, v{vT+3}
v_mov_b32 v{vT+3}, 1
s_nop 0
v_cndmask_b32 v{vMV}, v{vT+3}, 0, vcc
""")
            for m in range(2):
                for p in range(2):
                    d = vBV + 2*m + p
                    a(f"""v_add_u32 v22, {1024 + 256*m + 64*p}, v{vT+2}
v_add_u32 v23, {2048 + 256 + 128*m + 64*(1-p)}, v{vT}
v_add_u32 v{vT+3}, {MISC + 64*(1-p) + 128*(1-m)}, v{vT+1}
v_cndmask_b32 v{d}, v23, v22, s[{sT}:{sT+1}]
v_cndmask_b32 v{d}, v{d}, v{vT+3}, vcc
v_mov_b32 v{vVA+2*m+p}, v{d}""")
            a(f"v_mov_b32 v{vK1}, v{vBK1}\nv_mov_b32 v{vK2}, v{vBK2}")
            for k in range(16): a(f"v_mov_b32 v{O+k}, 0")
            for k in range(4): a(f"v_mov_b32 v{V1[1]+k}, 0")
            for k in range(4): a(f"v_mov_b32 v{P+4+k}, 0")
            a(f"v_mov_b32 v{SS[1]+14}, 0\nv_mov_b32 v{SS[1]+15}, 0")
            a(f"""
s_and_b32 s{sT+1}, s{sWAVE}, 3
s_lshl2_add_u32 s{sT}, s{sJ}, s{sT+1}          ; q
s_mul_i32 s{sT}, s{sT}, 6528
s_add_u32 s{sAR}, s{sAR}, s{sT}
s_lshl1_add_u32 s{sT}, s{sRB}, s{sT2}
s_mul_i32 s{sT}, s{sT}, 40960
s_mul_i32 s{sT+1}, s{sCB}, 5120
s_add_u32 s{sRES}, s{sRES}, s{sT}
s_add_u32 s{sRES}, s{sRES}, s{sT+1}
v_add_u32 v{vL16B}, 4096, v{vL16}
v_and_b32 v{vXC+1}, 31, v{vLANE}
v_lshlrev_b32 v{vXC+1}, 2, v{vXC+1}
s_lshr_b32 s{sT+6}, s{sJ}, 1
s_add_u32 s{sT+6}, s{sT+6}, 32
s_mul_i32 s{sT+6}, s{sT+6}, 163840
s_lshl3_add_u32 s{sT+7}, s{sG}, s{sWAVE}
s_mul_i32 s{sT+7}, s{sT+7}, 2560
s_add_u32 s{sT+6}, s{sT+6}, s{sT+7}
s_add_u32 s{sT+6}, s{sT+6}, s{sQIN}
s_and_b32 s{sT+7}, s{sJ}, 1
s_lshl_b32 s{sT+8}, s{sT+7}, 10
s_add_u32 s{sT+8}, s{sT+8}, s{sT+6}          ; Q main
s_lshl_b32 s{sT+7}, s{sT+7}, 8
s_add_u32 s{sT+7}, s{sT+7}, s{sT+6}          ; Q tail
s_mul_i32 s{sT+9}, s{sJ}, 163840
s_add_u32 s{sT+9}, s{sT+9}, s{sQIN}
s_mul_i32 s{sT+6}, s{sG}, {CH}
s_add_u32 s{sT+9}, s{sT+9}, s{sT+6}          ; first K/V chunk (own row block)
""")
        a(f"""s_mov_b32 s{sTy}, 0
s_cmp_ge_u32 s{sWAVE}, 4
s_cbranch_scc1 {l1}
v_mov_b32 v{vT}, 0
s_waitcnt vmcnt(0)
s_mov_b64 exec, 1
s_cmp_eq_u32 s{sLAST}, 0
s_cbranch_scc1 {l1}g
s_cmp_lg_u32 s{sSLOW}, 0
s_cbranch_scc1 {l1}s
buffer_store_dword v{vMK}, v{vT}, s[{sWS}:{sWS+3}], s{sRDY} offen
s_branch {l1}g
{l1}s:
buffer_store_dword v{vMK}, v{vT}, s[{sWS}:{sWS+3}], s{sRDY} offen sc0 sc1
{l1}g:
buffer_store_dword v{vMK}, v{vT}, s[{sWS}:{sWS+3}], s{sPUB} offen sc0 sc1
s_mov_b64 exec, -1
s_barrier
""")
        self.stamp("pub")
        a(f"s_cmp_lg_u32 s{sLAST}, 0\ns_cbranch_scc1 L_st_skip")
        self.strip_setup()
        a("L_st_skip:")
        rest()
        lp = a.label("qp")
        a(f"""s_branch {l2}
{l1}:""")
        rest()
        a(f"""s_cmp_lg_u32 s{sWAVE}, 4
s_cbranch_scc1 {l1}o
v_lshrrev_b32 v{vPL+1}, 3, v{vLANE}
v_mov_b32 v{vPL+2}, s{sPUB}
v_mov_b32 v{vPL+3}, s{sQFK}
v_cmp_eq_u32 vcc, 1, v{vPL+1}
v_and_b32 v{vPL}, 7, v{vLANE}
s_nop 0
v_cndmask_b32 v{vPL+2}, v{vPL+2}, v{vPL+3}, vcc
v_mov_b32 v{vPL+3}, s{sQFV}
v_cmp_eq_u32 vcc, 2, v{vPL+1}
s_lshl_b32 s{sT+4}, s{sG}, 8
s_nop 0
v_cndmask_b32 v{vPL+2}, v{vPL+2}, v{vPL+3}, vcc     ; row base
s_cmp_lg_u32 s{sLAST}, 0
s_cbranch_scc1 {l1}l
v_and_b32 v{vPL+1}, 0x8c, v{vXC}
v_add_u32 v{vPL+2}, v{vPL+2}, v{vPL+1}
s_branch {l1}p
{l1}l:
v_bfe_u32 v{vPL+2}, v{vPL+2}, 11, 4
v_lshlrev_b32 v{vPL+2}, 2, v{vPL+2}
v_lshl_add_u32 v{vPL+2}, v{vPL}, 7, v{vPL+2}
s_add_u32 s{sT+4}, s{sFLG}, 3072
{l1}p:
s_mov_b32 s{sT+5}, 0x100000
s_barrier
{lp}:
buffer_load_dword v{vPL}, v{vPL+2}, s[{sWS}:{sWS+3}], s{sT+4} offen sc1
s_sub_u32 s{sT+5}, s{sT+5}, 1
s_cbranch_scc1 {l2}
s_waitcnt vmcnt(0)
v_cmp_eq_u32 vcc, 0, v{vPL}
s_cbranch_vccnz {lp}
s_branch {l2}
{l1}o:
s_barrier
{l2}:
s_load_dwordx2 s[{sXP}:{sXP+1}], s[0:1], 0
s_barrier
""")
        self.stamp("rdy")
        a(f"s_mov_b32 s{sRDY}, 0")
        a(f"""buffer_load_dwordx4 {vr(Q1,4)}, v{vSW}, s[{sWS}:{sWS+3}], s{sT+8} offen sc1
buffer_load_dwordx4 {vr(K1,4)}, v{vBK1}, s[{sWS}:{sWS+3}], s{sT+9} offen
buffer_load_dwordx2 {vr(Q2,2)}, v30, s[{sWS}:{sWS+3}], s{sT+7} offen sc1
buffer_load_dwordx2 {vr(K2,2)}, v31, s[{sWS}:{sWS+3}], s{sT+9} offen
""")
        lw = a.label("w")
        def dma0():
            a(f"s_mov_b32 m0, s{sLDW}\ns_add_u32 s{sT}, s{sT+9}, s{sLDW}")
            self.dma5(sT)
        a(f"""v_cmp_gt_u32 vcc, 32, v{vLANE}
v_mov_b32 v22, 0x3f803f80
s_and_b32 s{sT+6}, s{sWAVE}, 6
s_cmp_lg_u32 s{sT+6}, 4
s_cbranch_scc1 {l3}""")
        dma0()
        a(f"""s_waitcnt vmcnt(5)
s_branch {lw}
{l3}:
s_waitcnt vmcnt(0)
s_cmp_lt_u32 s{sWAVE}, 6
s_cbranch_scc1 {lw}""")
        dma0()
        a(f"""{lw}:
v_cndmask_b32 v{K2}, v22, v{K2}, vcc
v_cndmask_b32 v{K2+1}, v22, v{K2+1}, vcc
v_mfma_f32_32x32x16_bf16 {vr(SS[0],16)}, {vr(K1,4)}, {vr(Q1,4)}, 0
s_nop 0
v_mfma_f32_32x32x8_bf16 {vr(SS[0],16)}, {vr(K2,2)}, {vr(Q2,2)}, {vr(SS[0],16)}
s_nop 12
""")
        self.rowmax16(SS[0], 22)
        self.crosshalf_max(22)
        self.split3(22)
        a(f"""
s_nop 1
v_mfma_f32_32x32x16_bf16 {vr(SS[0],16)}, {vr(K1,4)}, {vr(Q1,4)}, 0
v_mfma_f32_32x32x8_bf16 {vr(SS[0],16)}, {vr(K2,2)}, {vr(Q2,2)}, {vr(SS[0],16)}
""")
        self.stamp("attP")
        self.g16_patterns(vRS, vRSB)
        a(f"""v_add_u32 v{vRSB}, 4096, v{vRSB}
s_cmp_lg_u32 s{sROLE}, 0
s_cselect_b64 vcc, -1, 0
s_nop 1
v_cndmask_b32 v{vRS}, v{vRS}, v{vL16}, vcc
v_cndmask_b32 v{vRSB}, v{vRSB}, v{vL16B}, vcc""")
        self.avm = VM()
        if HALF0:
            a(f"s_and_b32 s{sT}, s{sWAVE}, 6\ns_cmp_lg_u32 s{sT}, 4\ns_cbranch_scc1 {lw}y\ns_waitcnt vmcnt(0)\n{lw}y:")
            for q in range(5): self.avm.issue(("c", 0))
        else:
            a(f"s_cmp_lt_u32 s{sWAVE}, 4\ns_cbranch_scc1 {lw}y\ns_waitcnt vmcnt(0)\n{lw}y:")
        a("s_waitcnt lgkmcnt(0)\ns_barrier")
        self.stamp(0)
        a(f"""
ds_read_b64_tr_b16 {vr(V1[0],2)}, v{vVA+2}
ds_read_b64_tr_b16 {vr(V1[0]+2,2)}, v{vVA+3}
ds_read_b128 {vr(K1,4)}, v{vK1} offset:2560
ds_read_b64 {vr(K2,2)}, v{vK2} offset:2560
ds_read_b64_tr_b16 {vr(V0,2)}, v{vVA}
ds_read_b64_tr_b16 {vr(V0+2,2)}, v{vVA+1}
s_setprio 3
s_nop 3
""")
        self.kv_flags_load(); self.avm.issue("kf"); self.avm.issue("kf")
        self.stamp("attL")
        for t in range(64): self.att_tile(t)
        a("s_nop 0")
        self.stamp("attX")
        a(f"""v_cvt_pk_bf16_f32 v{P+7}, v{SS[1]+14}, v{SS[1]+15}
s_setprio 0
s_nop 0
v_mfma_f32_32x32x16_bf16 {vr(O,16)}, {vr(V1[1],4)}, {vr(P+4,4)}, {vr(O,16)}
""")
        self.tt_off(sT+4, sOF, OSTR)
        a(f"""
s_lshl_b32 s{sT+5}, s{sJ}, 10
s_add_u32 s{sT+5}, s{sT+5}, s{sT+4}
s_lshr_b32 s{sT+6}, s{sJ}, 1
s_lshl_b32 s{sT+6}, s{sT+6}, 9               ; (head/4)*1024 + ((head%4)/2)*512
s_add_u32 s{sT+4}, s{sT+4}, s{sT+6}
s_and_b32 s{sT+6}, s{sJ}, 1
s_lshl_b32 s{sT+6}, s{sT+6}, 3
s_add_u32 s{sT+4}, s{sT+4}, s{sT+6}
s_add_u32 s{sT+4}, s{sT+4}, 32768
v_lshlrev_b32 v23, 30, v{vH}
v_add_u32 v23, v23, v{vL16}
s_mov_b32 s{sT+6}, {f2u(2.0**64):#x}
s_nop 5
v_cmp_lt_f32 vcc, v{O+12}, s{sT+6}
s_cmp_eq_u64 vcc, -1
{'s_nop 0' if 'nofb' in XP else 's_cbranch_scc0 L_att_fallback'}
L_att_fin:
v_rcp_f32 v22, v{O+12}
s_nop 0
""")
        for k in range(6):
            a(f"v_pk_mul_f32 {vr(O+2*k,2)}, {vr(O+2*k,2)}, v[22:23] op_sel_hi:[1,0]")
        for k in range(6):
            a(f"v_cvt_pk_bf16_f32 v{O+k}, v{O+2*k}, v{O+2*k+1}")
        lx, lxd = a.label("xpoll"), a.label("xdone")
        a(f"""
buffer_store_dwordx4 {vr(O,4)}, v{vL16}, s[{sWS}:{sWS+3}], s{sT+5} offen
buffer_store_dwordx2 {vr(O+4,2)}, v23, s[{sWS}:{sWS+3}], s{sT+4} offen
s_waitcnt vmcnt(2)
v_readfirstlane_b32 s{sT}, v{vXC+1}
s_nop 1
v_cmp_ne_u32 vcc, s{sT}, v{vXC+1}
s_cmp_lg_u64 vcc, 0
s_cselect_b32 s{sSLOW}, 1, 0
s_waitcnt lgkmcnt(0)
""")
        self.publish(0, sJ)
        self.stamp(1)

    def att_fallback(self):
        a = self.a
        X = SS[0]
        a(f"""
L_att_fallback:
s_waitcnt vmcnt(0) lgkmcnt(0)
s_mul_i32 s{sT+7}, s{sJ}, 163840
s_add_u32 s{sT+7}, s{sT+7}, s{sQIN}
v_cmp_gt_u32 vcc, 32, v{vLANE}
v_mov_b32 v{vT}, 0
s_nop 0
v_cndmask_b32 v{Q2}, v{vT}, v{Q2}, vcc
v_cndmask_b32 v{Q2+1}, v{vT}, v{Q2+1}, vcc
v_lshlrev_b32 v{vK2}, 30, v{vH}
v_add_u32 v{vK2}, v{vK2}, v{vBK2}              ; lower: tail offset in tile, upper: out of range
v_mov_b32 v22, 0xff800000
s_mov_b32 s{sT+8}, s{sT+7}
s_mov_b32 s{sT+9}, 64
L_fb_max:
buffer_load_dwordx4 {vr(K1,4)}, v{vBK1}, s[{sWS}:{sWS+3}], s{sT+8} offen
buffer_load_dwordx2 {vr(K2,2)}, v{vK2}, s[{sWS}:{sWS+3}], s{sT+8} offen
s_waitcnt vmcnt(0)
v_mfma_f32_32x32x16_bf16 {vr(X,16)}, {vr(K1,4)}, {vr(Q1,4)}, 0
v_mfma_f32_32x32x8_bf16 {vr(X,16)}, {vr(K2,2)}, {vr(Q2,2)}, {vr(X,16)}
s_nop 15
""")
        self.rowmax16(X, 22, init=True)
        a(f"""
s_add_u32 s{sT+8}, s{sT+8}, 2560
s_sub_u32 s{sT+9}, s{sT+9}, 1
s_cmp_lg_u32 s{sT+9}, 0
s_cbranch_scc1 L_fb_max
""")
        self.crosshalf_max(22)
        self.split3(22)
        a(f"""
s_mul_i32 s{sT+8}, s{sWAVE}, 2560
s_add_u32 s{sT+8}, s{sT+8}, {MISC + 512 - 1024}
v_mad_u32_u24 v{vVA}, s{sT+8}, v{vMV}, v{vBV}
v_mad_u32_u24 v{vVA+1}, s{sT+8}, v{vMV}, v{vBV+1}
v_mad_u32_u24 v{vVA+2}, s{sT+8}, v{vMV}, v{vBV+2}
v_mad_u32_u24 v{vVA+3}, s{sT+8}, v{vMV}, v{vBV+3}
v_add_u32 v{vK1}, s{sT+8}, v{vL16}
v_lshlrev_b32 v{SS[1]}, 3, v{vLANE}
v_add_u32 v{SS[1]+1}, s{sT+8}, v{SS[1]}
s_mov_b32 s{sT+8}, s{sT+7}
s_mov_b32 s{sT+9}, 64
""")
        for k in range(16): a(f"v_mov_b32 v{O+k}, 0")
        a(f"""
L_fb_pv:
buffer_load_dwordx4 {vr(K1,4)}, v{vBK1}, s[{sWS}:{sWS+3}], s{sT+8} offen
buffer_load_dwordx2 {vr(K2,2)}, v{vK2}, s[{sWS}:{sWS+3}], s{sT+8} offen
buffer_load_dwordx4 {vr(V0,4)}, v{vL16}, s[{sWS}:{sWS+3}], s{sT+8} offen offset:1024
buffer_load_dwordx2 {vr(V1[0],2)}, v{SS[1]}, s[{sWS}:{sWS+3}], s{sT+8} offen offset:2048
v_cmp_gt_u32 vcc, 32, v{vLANE}
v_mov_b32 v{vT}, 0x3f803f80
s_waitcnt vmcnt(0)
v_cndmask_b32 v{K2}, v{vT}, v{K2}, vcc
v_cndmask_b32 v{K2+1}, v{vT}, v{K2+1}, vcc
ds_write_b128 v{vK1}, {vr(V0,4)} offset:1024
ds_write_b64 v{SS[1]+1}, {vr(V1[0],2)} offset:2048
v_mfma_f32_32x32x16_bf16 {vr(X,16)}, {vr(K1,4)}, {vr(Q1,4)}, 0
v_mfma_f32_32x32x8_bf16 {vr(X,16)}, {vr(K2,2)}, {vr(Q2,2)}, {vr(X,16)}
s_waitcnt lgkmcnt(0)
ds_read_b64_tr_b16 {vr(V0,2)}, v{vVA}
ds_read_b64_tr_b16 {vr(V0+2,2)}, v{vVA+1}
ds_read_b64_tr_b16 {vr(V1[0],2)}, v{vVA+2}
ds_read_b64_tr_b16 {vr(V1[0]+2,2)}, v{vVA+3}
s_nop 12
""")
        for k in range(16): a(f"v_exp_f32 v{X+k}, v{X+k}")
        a("s_nop 0")
        for k in range(8): a(f"v_cvt_pk_bf16_f32 v{P+k}, v{X+2*k}, v{X+2*k+1}")
        a(f"""
s_waitcnt lgkmcnt(0)
s_nop 1
v_mfma_f32_32x32x16_bf16 {vr(O,16)}, {vr(V0,4)}, {vr(P,4)}, {vr(O,16)}
v_mfma_f32_32x32x16_bf16 {vr(O,16)}, {vr(V1[0],4)}, {vr(P+4,4)}, {vr(O,16)}
s_add_u32 s{sT+8}, s{sT+8}, 2560
s_sub_u32 s{sT+9}, s{sT+9}, 1
s_cmp_lg_u32 s{sT+9}, 0
s_cbranch_scc1 L_fb_pv
s_nop 15
s_branch L_att_fin
""")

    def prof_store(self, final=True):
        a = self.a
        if not self.prof: return
        a(f"""
s_waitcnt lgkmcnt(0)
{'s_memrealtime' if self.prof == 2 else 's_memtime'} s[{sPROF+22}:{sPROF+23}]
s_lshl_b32 s{sT}, s{sKID}, 8
s_add_u32 s{sT}, s{sT}, s2
s_lshl_b32 s{sT}, s{sT}, 3
s_add_u32 s{sT}, s{sT}, s{sWAVE}
s_lshl_b32 s{sT}, s{sT}, 6
s_add_u32 s{sT}, s{sT}, {PROF}
v_mov_b32 v{vT}, 0
s_waitcnt lgkmcnt(0)
s_mov_b64 exec, 1""")
        for i in range(12):
            a(f"v_mov_b32 v{vT+1}, s{sPROF+2*i}\nbuffer_store_dword v{vT+1}, v{vT}, s[{sWS}:{sWS+3}], s{sT} offen offset:{4*i}")
        a(f"v_mov_b32 v{vT+1}, s99\nbuffer_store_dword v{vT+1}, v{vT}, s[{sWS}:{sWS+3}], s{sT} offen offset:48")
        a(f"v_mov_b32 v{vT+1}, s{sSLOW}\nbuffer_store_dword v{vT+1}, v{vT}, s[{sWS}:{sWS+3}], s{sT} offen offset:52")
        if final: a("s_waitcnt vmcnt(0)")
        a(f"s_memrealtime s[100:101]\ns_waitcnt lgkmcnt(0)")
        a(f"v_mov_b32 v{vT+1}, s3\nbuffer_store_dword v{vT+1}, v{vT}, s[{sWS}:{sWS+3}], s{sT} offen offset:56")
        a(f"v_mov_b32 v{vT+1}, s100\nbuffer_store_dword v{vT+1}, v{vT}, s[{sWS}:{sWS+3}], s{sT} offen offset:60")
        if not final:
            a("s_mov_b64 exec, -1\ns_mov_b32 s3, s100")
            a(f"s_mov_b32 s99, s{sPROF+22}\ns_add_u32 s{sKID}, s{sKID}, 1")
            for i in range(12): a(f"s_mov_b64 s[{sPROF+2*i}:{sPROF+2*i+1}], 0")


def gen_main(a, prof=False):
    g = Gen(a, prof)
    a("L_layer:")
    g.prof_store(False)
    def params(k, qin, qout, res, stq, actq, of, x1f, hf, st1):
        for r, v in ((sQIN, qin), (sQOUT, qout), (sRES, res), (sFLG, A_FL + k*4096), (sSTQ, stq), (sACTQ, actq), (sOF, of), (sX1F, x1f), (sHF, hf), (sST1, st1)):
            a(f"s_mov_b32 s{r}, {v:#x}")
    a(f"s_cmp_lg_u32 s{sLAST}, 0\ns_cbranch_scc1 L_par2")
    params(0, QKV[0], QKV[1], X1F[0], STAT[2], X2F, OF[0], X1F[0], HF[0], STAT[1])
    a(f"s_branch L_par3\nL_par2:\ns_load_dwordx2 s[{sT}:{sT+1}], s[0:1], 64")
    params(1, QKV[1], 0, X2F, 0, 0, OF[1], X1F[1], HF[1], STAT[3])
    a("s_waitcnt lgkmcnt(0)")
    srd(a, sOUT, sT, S*D*2)
    a(f"""L_par3:
s_and_b32 s{sCB}, s{sJ}, 7
s_lshr_b32 s{sRB}, s{sJ}, 3
s_and_b32 s{sCB2}, s{sJ}, 15
s_lshr_b32 s{sRB2}, s{sJ}, 4
s_and_b32 s{sT2}, s{sWAVE}, 1
s_bfe_u32 s{sKH}, s{sWAVE}, 0x10001
s_mul_i32 s{sAR}, s{sG}, {AST}
s_add_u32 s{sAR}, s{sAR}, {ARENA}
s_add_u32 s{sFLG}, s{sFLG}, s{sAR}
s_add_u32 s{sRES}, s{sRES}, s{sAR}
s_add_u32 s{sSTQ}, s{sSTQ}, s{sAR}
s_add_u32 s{sACTQ}, s{sACTQ}, s{sAR}
s_add_u32 s{sOF}, s{sOF}, s{sAR}
s_add_u32 s{sX1F}, s{sX1F}, s{sAR}
s_add_u32 s{sHF}, s{sHF}, s{sAR}
s_add_u32 s{sST1}, s{sST1}, s{sAR}
s_mul_i32 s{sT+6}, s{sG}, {8*2560}
s_add_u32 s{sQOUT}, s{sQOUT}, s{sT+6}
s_and_b32 s{sLDW}, s{sWAVE}, 3
s_mul_i32 s{sLDW}, s{sLDW}, 5120
s_lshr_b32 s{sROLE}, s{sWAVE}, 2
s_mul_i32 s{sLDR}, s{sWAVE}, 5120
s_mul_i32 s{sWO}, s{sCB}, 102400
s_add_u32 s{sWO}, s{sWO}, {WO_F}
s_add_u32 s{sWO}, s{sWO}, s{sLDW}
s_mul_i32 s{sW1}, s{sCB2}, 122880
s_add_u32 s{sW1}, s{sW1}, {W1_F}
s_add_u32 s{sW1}, s{sW1}, s{sLDW}
s_mul_i32 s{sW2}, s{sCB}, 245760
s_add_u32 s{sW2}, s{sW2}, {W2_F}
s_add_u32 s{sW2}, s{sW2}, s{sLDW}
s_mul_i32 s{sWQ}, s{sCB2}, 163840
s_add_u32 s{sWQ}, s{sWQ}, {WQKV_F}
s_add_u32 s{sWQ}, s{sWQ}, s{sLDW}
s_mul_i32 s{sSRC}, s{sJ}, 163840
s_add_u32 s{sSRC}, s{sSRC}, s{sQIN}
s_add_u32 s{sSRC}, s{sSRC}, s{sLDW}
s_lshl_b32 s{sT}, s{sLAST}, 15
s_add_u32 s{sT}, s{sT}, {QF}
s_mul_i32 s{sT+1}, s{sJ}, 0x2aab
s_lshr_b32 s{sT+1}, s{sT+1}, 16
s_lshl_b32 s{sT+1}, s{sT+1}, 11
s_add_u32 s{sT+1}, s{sT+1}, s{sT}
s_cmp_lg_u32 s{sROLE}, 0
s_cselect_b32 s{sPUB}, s{sT+1}, s{sPUB}   ; flag row of Q (loader waves)
s_add_u32 s{sQFK}, s{sJ}, 32
s_mul_i32 s{sQFK}, s{sQFK}, 0x2aab
s_lshr_b32 s{sQFK}, s{sQFK}, 16
s_lshl_b32 s{sQFK}, s{sQFK}, 11
s_add_u32 s{sQFK}, s{sQFK}, s{sT}
s_add_u32 s{sQFV}, s{sJ}, 64
s_mul_i32 s{sQFV}, s{sQFV}, 0x2aab
s_lshr_b32 s{sQFV}, s{sQFV}, 16
s_lshl_b32 s{sQFV}, s{sQFV}, 11
s_add_u32 s{sQFV}, s{sQFV}, s{sT}
""")
    g.attention()
    g.left = {6: 0, 7: 0}
    g.acq = 7
    a(f"s_cmp_ge_u32 s{sWAVE}, 4\ns_cbranch_scc1 L_loader_main")
    if CPRIO: a(f's_setprio {CPRIO}')
    g.b2load(); g.aux_load(True)
    R = g.fifo_reg(E_RES)
    a(f"s_cmp_eq_u32 s{sLAST}, 0\ns_cbranch_scc1 L_res_x")
    a(f"""s_mov_b32 s{sT}, 0xffff0000
s_mov_b32 s{sT+1}, 0xffff0000
v_cndmask_b32 v{R+16}, v{R+16}, v{R+18}, s[{sT}:{sT+1}]
v_cndmask_b32 v{R+17}, v{R+17}, v{R+19}, s[{sT}:{sT+1}]""")
    g.unpack(OWN, R, 4)
    g.unpack(OWN+8, R+8, 4)
    g.unpack(OWN+16, R+16, 2)
    a("s_branch L_res_done\nL_res_x:")
    g.unpack(OWN, RX, 10)
    a("L_res_done:")
    if 'addsleep' in XP:
        a("s_sleep 79")
    if 'addmfma' in XP:
        for k in range(156): a(f"v_mfma_f32_32x32x16_bf16 {vr(ACC+16*(k%2),16)}, {vr(C13+4*(k%10),4)}, {vr(C13+4*((k*3+1)%10),4)}, {vr(ACC+16*(k%2),16)}")
    g.barrier(need=12, tag="E0")
    if PRE13:
        a(f"s_mul_i32 s{sT}, s{sWAVE}, 5120\nv_add_u32 v{vT}, s{sT}, v{vL16}")
        for c in (13, 14):
            a(f"v_add_u32 v{vT+1}, {(c % NSLOT)*CH}, v{vT}")
            for q in range(5):
                a(f"ds_write_b128 v{vT+1}, {vr(C13+20*(c-13)+4*q,4)} offset:{1024*q}")
        a("s_waitcnt lgkmcnt(0)")
    g.phase_n80(0, 8, 5)
    g.phase_w1(13)
    g.phase_n80(1, 19, 12)
    nb_last = len(g.bar)
    a("L_qkv_phase:")
    g.vm.drain()
    g.phase_qkv(31)
    a(f"s_lshl3_add_u32 s{sT+1}, s{sG}, s{sTL}")
    g.pub_addr(sT+1, 1)
    a(f"""s_lshl_b32 s{sRDY}, s{sTL}, 7
s_lshl2_add_u32 s{sRDY}, s{sCB2}, s{sRDY}
s_add_u32 s{sRDY}, s{sRDY}, s{sFLG}
s_add_u32 s{sRDY}, s{sRDY}, {4096 + 3072}
L_next:
s_mov_b32 s{sLAST}, 1
s_branch L_layer""")
    a("L_done:")
    if DIAG:
        g.stamp("END")
        sh = "" if DIAGI == "s_memrealtime" else "s_lshr_b32 s62, s62, 4"
        a(f"""s_cmp_lg_u32 s2, 100
s_cbranch_scc1 L_end
s_cmp_lg_u32 s{sWAVE}, 0
s_cbranch_scc1 L_end
s_waitcnt lgkmcnt(0)
s_sub_u32 s62, s62, s66
{sh}
s_add_u32 s62, s62, 15000
L_diag:
s_memrealtime s[64:65]
s_waitcnt lgkmcnt(0)
s_sub_u32 s64, s64, s60
s_cmp_lt_u32 s64, s62
s_cbranch_scc1 L_diag""")
    g.prof_store()
    a("L_end:\ns_endpgm")
    g.final_out()
    a("s_branch L_done")
    g.att_fallback()
    a.L.extend(g.oolbuf)
    a(f"L_loader_main:\ns_cmp_lg_u32 s{sLAST}, 0\ns_cbranch_scc1 L_loader_last")
    g.loader3(g.bar, 38, PLAN, FL[0])
    a("s_branch L_next\nL_loader_last:")
    g.loader3(g.bar[:nb_last], 30, PLAN, FL[1])
    a("s_branch L_done")
    return g
```

```python
import math, struct, os
from dsl import *
from layout import *

OOB = 0x40000000
def f2u(x): return struct.unpack("<I", struct.pack("<f", x))[0]
QSCALE = DH ** -0.5 * math.log2(math.e)
EPS = 1e-5

sWS, sOUT, sB2 = 4, 8, 12
sWAVE, sG, sJ, sSLOW = 16, 17, 18, 19
sQIN, sQOUT, sRES, sFLG, sXCA, sLAST = 20, 21, 22, 23, 24, 25
sSTQ, sACTQ, sNOPOLL, sXCC = 26, 27, 28, 29
sOF, sX1F, sHF, sST1 = 30, 31, 32, 33
sCB, sRB, sCB2, sRB2 = 34, 35, 36, 37
sKH, sT2, sTL = 38, 39, 40
sSRC, sC, sSLOT, sLDW = 41, 42, 43, 44
sWO, sW1, sW2, sWQ = 45, 46, 47, 48
sT = 50
sPROF = 60
sQA = 84
sKID = 98
sWRM = 49
sAR1 = 96
sWRM2, sWRM3, sDST, sN, sAR = 93, 94, 95, 97, 92
vLANE, vL16, vSW, vTL, vH = 1, 2, 3, 4, 5
vK1, vK2, vVA = 6, 7, 8
vB0, vB1, vB2 = 6, 7, 8
vP0, vP1, vP2 = 9, 10, 11
vT = 12
Q1, Q2, K1, K2, V0, V1, P, SS, O = 16, 20, 24, 28, 32, [36, 40], 44, [52, 68], 84
vBK1, vBK2, vBV, vMK, vMV, vXC = 100, 101, 102, 106, 107, 108
vWRM, vDUM = 110, 111
SR, vSO, vSD, vBI, vSC, ONE, CSA = 208, 168, 169, 170, 171, 172, 176
sA, sBp, sSo, sDs, sSt, sAx, sQd, sTy, sSS, sBS = 84, 85, 86, 87, 88, 89, 42, 28, 8, 12
sDP, sFP, sLDR, sROLE = 93, 94, 96, 49
sZP = 24
sA0, sSt0 = 24, 94
sPUB, sRDY, sQFK, sQFV = 24, 29, 95, 97
vPL = 252
sXP, RX = 90, 112
vL16B = 110
E_RES, E_C13, E_C14, E_T0, E_T1 = 1, 2, 3, 5, 6
AUXB, AUXA, WF, ACC, ACT, STT = 38, 40, 48, 64, 128, 192
RA0, RA2, RA1 = 208, 224, 240
AUXB16, AUXA16 = 32, 36
OWN, OTH = 208, 228
WF16 = [48, 52, 56, 60, 176, 180, 184, 188, 192, 196]
T16, NPRE16, R16 = 2, int(os.environ.get('NPRE16', 8)), int(os.environ.get('R16', 2))
vRS, vRSB = 22, 23
NACT = 12
WFR = [48, 52, 56, 60, 176, 180, 184, 188]
NB3, NB4 = int(os.environ.get('NB3', 6)), int(os.environ.get('NB4', 8))
NPRE, ADEPTH, STAT_AT = int(os.environ.get('NPRE', 7)), int(os.environ.get('ADEPTH', 11)), 8
RAMP = int(os.environ.get('RAMP', 2))
GDEF = int(os.environ.get('GDEF', 3))
PRE13 = int(os.environ.get('PRE13', 1))
C13 = 152
N80_TAIL = 8
QTAIL = int(os.environ.get('QTAIL', 8))
QRATE = int(os.environ.get('QRATE', 3))
WR_LAG = 1
F0 = 13
NF = 7
FL = [eval(os.environ.get('FL0', '[26, 27, 28, 29, 30, 34, 35]')), [24, 25, 26, 27, 28, 29, 30]]
RS = eval(os.environ.get('RS', """[("S",1,3,1), ("S",2,10,1), ("D",3,26,2), ("D",5,45,2), ("F",0,68,1), ("F",4,73,1), ("D",7,78,1), ("D",9,83,1), ("F",2,88,1), ("F",3,93,1),
      ("F",5,98,2), ("D",11,108,1), ("F",6,113,1), ("F",1,118,1)]"""))
ROUNDS = {}
_span = {"F": [], "D": [], "T": []}
for _k, _n, _s0, _st in RS:
    _c = {'S': 3, 'T': 6}.get(_k, 5)
    _l = _span["D" if _k == "S" else _k]
    assert all(_s0 > b or _s0 + (_c-1)*_st < a_ for a_, b in _l), "rounds of one kind must not interleave"
    _l.append((_s0, _s0 + (_c-1)*_st))
    for _q in range(_c):
        assert _s0 + _q*_st not in ROUNDS
        ROUNDS[_s0 + _q*_st] = (_k, _n, _q)
RESX_AT = int(os.environ.get('RESX_AT', 39))
WQ_POLL = int(os.environ.get('WQ_POLL', -10))
HALF0 = int(os.environ.get('HALF0', 1))
S_LD, S_WR, S_FLAG, S_POLL = eval(os.environ.get('SS', '(7, 14, 22, 31)'))
XC_AT = 50
PRIO = {}
_P = eval(os.environ.get('PP', '{0: 3, 6: 2, 11: 1, 14: 0}'))
for _b in (22, 38):
    for _u, _v in _P.items(): PRIO[_b+_u] = _v
PRIO.update(eval(os.environ.get('PE', '{0: 2, 1: 1, 2: 3, 4: 1, 5: 0, 6: 3, 9: 2, 11: 1, 13: 0, 14: 3, 17: 2, 19: 1, 21: 0, 54: 3, 59: 2, 61: 1, 63: 0}')))
FIFO_ATT = eval(os.environ.get('FIFO_ATT', '{4: [0, 1], 5: [2, 3], 6: [4, 5], 7: [6]}'))
SYNC = eval(os.environ.get('SYNC', '{13: 16, 17: 18, 19: 23, 22: 0, 24: 25, 26: 27, 28: 30, 31: 34, 35: 35, 36: 38}'))
XFIFO = eval(os.environ.get('XFIFO', '{"E0": [(24, 9), (25, 10), (17, 7)], "Zo": [(18, 8)], "Zw": []}'))
PLAN = eval(os.environ.get('PLAN', '{"def": 0, "wdef": 10, "Zo": 10, "Zf": 25, "Zw": 15, "Hq9": 15, "wX0": 5, "wX1": 5, "wZw": 0}'))
HOL = eval(os.environ.get('HOL', '{"q": [(9, 8)]}'))
WPACE = int(os.environ.get('WPACE', 0))
DRIP = int(os.environ.get('DRIP', 2))
PKR = 112
import os
STD = ["att0", "attE", "woP", "woM", "w1P", "w1M", "w2P", "w2M", "qP", "qM", "qE"]
STAMPS = os.environ.get("STAMPS", ",".join(STD)).split(",")
SIDE = eval(os.environ.get('SIDE', "{3: ['w2a'], 4: ['w2b'], 5: ['ar0'], 6: ['ar1', 'res']}"))
XP = os.environ.get('XP', '')
ALF = os.environ.get('ALF', ' sc1')
CPRIO = int(os.environ.get('CPRIO', 1))
DIAG = os.environ.get('DIAG', '')
DIAGI = os.environ.get('DIAGI', 's_memrealtime')
OST = os.environ.get('OST', '')
WBAT = os.environ.get('WBAT', '')
QST = os.environ.get('QST', ' sc0 sc1')
CHAIN_TOUCH = 0
KV_NT = int(os.environ.get("KV_NT", 0))

class VM:
    def __init__(self): self.q = []
    def issue(self, tag): self.q.append(tag)
    def need(self, tag):
        if tag not in self.q: return None
        i = len(self.q) - 1 - self.q[::-1].index(tag)
        n = len(self.q) - 1 - i
        self.q = self.q[i+1:]
        return n
    def drain(self): self.q = []

class Gen:
    def __init__(self, a, prof):
        self.a = a; self.prof = prof
        self.bar = []
        self.acq = 8
        self.left = {}
        self.dsq = []
        self.freed = set()
        self.vm = VM()
        self.basechunk = {}
        self.seen = set()
        self.drip = []
        self.oolbuf = []
        self.rate = DRIP

    def stamp(self, name):
        if isinstance(name, int): name = STD[name]
        if DIAG and name == DIAG.split(":")[1]:
            ly = int(DIAG.split(":")[0]); l = self.a.label("dg")
            if ly >= 0: self.a(f"s_cmp_lg_u32 s{sLAST}, {ly}\ns_cbranch_scc1 {l}")
            self.a(f"{DIAGI} s[62:63]\n{l}:")
        name = {"F0": "att0", "g0": "attE", "g32": "woP", "g64": "woM", "g96": "w1P", "g128": "w1M", "FM": "qM", "FE": "qE"}.get(name, name) if name not in STAMPS else name
        if self.prof and name in STAMPS:
            i = STAMPS.index(name)
            self.a(f"{'s_memrealtime' if self.prof == 2 else 's_memtime'} s[{sPROF+2*i}:{sPROF+2*i+1}]")

    def barrier(self, need=None, tag=None):
        busy = {c for c, _ in self.dsq}
        fr = [c for c, n in sorted(self.left.items()) if n == 0 and c not in busy and c not in self.freed]
        self.freed |= set(fr)
        self.bar.append(dict(need=need, free=fr, tag=tag if tag else f"B{need}"))
        self.a("s_barrier")
        if need is not None: self.acq = need
    def lgkm(self, n):
        self.a(f"s_waitcnt lgkmcnt({n})")
        if len(self.dsq) > n: self.dsq = self.dsq[len(self.dsq)-n:] if n else []
    def dsneed(self, tag):
        tags = [t for _, t in self.dsq]
        if tag in tags:
            self.lgkm(len(tags) - 1 - tags.index(tag))
    def wread(self, dst, chunk, kind, off, tag=None):
        a = self.a
        if chunk not in self.seen:
            self.seen.add(chunk)
            if chunk in SYNC:
                self.barrier(max(SYNC[chunk], self.acq), tag=f"B{chunk}")
            assert chunk <= self.acq, (chunk, self.acq)
        if self.basechunk.get(kind) != chunk:
            a(f"v_add_u32 v{vB0+kind}, {(chunk % NSLOT)*CH}, v{vP0+kind}")
            self.basechunk[kind] = chunk
        a(f"ds_read_b128 {vr(dst,4)}, v{vB0+kind} offset:{off}")
        self.left[chunk] -= 1
        self.dsq.append((chunk, tag))

    def poll(self, phase, nslots):
        a = self.a
        lp, ld = a.label("poll"), a.label("polld")
        mask = (1 << nslots) - 1
        a(f"""
s_lshl_b32 s{sT}, s{sTL}, 7
s_add_u32 s{sT}, s{sT}, s{sFLG}
s_add_u32 s{sT}, s{sT}, {phase*1024}
v_and_b32 v{vT}, 31, v{vLANE}
v_lshlrev_b32 v{vT}, 2, v{vT}
s_mov_b32 s{sT+1}, 0x100000
{lp}:
buffer_load_dword v{vT+1}, v{vT}, s[{sWS}:{sWS+3}], s{sT} offen sc1
s_sub_u32 s{sT+1}, s{sT+1}, 1
s_cbranch_scc1 {ld}
s_waitcnt vmcnt(0)
v_cmp_eq_u32 vcc, 0, v{vT+1}
s_and_b32 s{sT+2}, vcc_lo, {mask:#x}
s_cbranch_scc1 {lp}
{ld}:
s_waitcnt vmcnt(0)
""")
        ls = a.label("noinv")
        a(f"""
s_cmp_eq_u32 s{sSLOW}, 0
s_cbranch_scc1 {ls}
buffer_inv sc1
s_waitcnt vmcnt(0)
{ls}:
""")
        self.vm.drain()

    def publish(self, phase, slot_sreg, vmn=0):
        a = self.a
        l1, l2 = a.label("pubslow"), a.label("pubdone")
        a(f"""
s_lshl_b32 s{sT}, s{sTL}, 7
s_add_u32 s{sT}, s{sT}, s{sFLG}
s_add_u32 s{sT}, s{sT}, {phase*1024}
s_lshl_b32 s{sT+1}, s{slot_sreg}, 2
s_add_u32 s{sT}, s{sT}, s{sT+1}
v_mov_b32 v{vT}, 0
v_mov_b32 v{vT+1}, 1
s_cmp_lg_u32 s{sSLOW}, 0
s_cbranch_scc1 {l1}
s_waitcnt vmcnt({vmn})
s_mov_b64 exec, 1
buffer_store_dword v{vT+1}, v{vT}, s[{sWS}:{sWS+3}], s{sT} offen
s_branch {l2}
{l1}:
s_waitcnt vmcnt(0)
buffer_wbl2 sc1
s_waitcnt vmcnt(0)
s_mov_b64 exec, 1
buffer_store_dword v{vT+1}, v{vT}, s[{sWS}:{sWS+3}], s{sT} offen sc1
{l2}:
s_mov_b64 exec, -1
""")
        self.vm.drain(); self.vm.issue("flag")

    def make_ops(self, nsteps, nt, tail=0, tail_order=None):
        ops = [(s, j) for s in range(nsteps - tail) for j in range(nt)]
        for j in (tail_order or range(nt)):
            ops += [(s, j) for s in range(nsteps - tail, nsteps)]
        return ops

    def first_w(self, ops, nb, frag):
        for k in range(nb):
            self.wread(WFR[k], *frag(*ops[k]), tag=k)

    def gemm(self, ops, nb, accs, frag, act_ks, sact, cinit, hooks, pre_stats=None, nm="", pre=()):
        a = self.a
        nsteps = max(s for s, _ in ops) + 1
        lastuse = {}
        for k, (s, j) in enumerate(ops): lastuse[s] = k
        cur = [None]; nxt = [0]
        tailn = N80_TAIL if nm in 'ow' else 0
        def aload():
            s = nxt[0]; nxt[0] += 1
            ks = act_ks(s)
            if cur[0] != ks // 4:
                cur[0] = ks // 4
                a(f"s_add_u32 s{sT+3}, s{sact}, {(ks//4)*4096}")
            if 'noA' in XP and s >= 2: return
            a(f"buffer_load_dwordx4 {vr(ACT+4*(s%NACT),4)}, v{vL16}, s[{sWS}:{sWS+3}], s{sT+3} offen offset:{(ks%4)*1024}{ALF}")
            self.vm.issue(("act", s))
        for _ in range(min(NPRE, nsteps)): aload()
        for h in pre: h()
        started = set()
        for k, (s, j) in enumerate(ops):
            n = self.vm.need(("act", s))
            if n is not None: a(f"s_waitcnt vmcnt({n})")
            self.dsneed(k)
            c = vr(accs[j], 16) if (j in started or cinit[j]) else "0"
            started.add(j)
            a(f"v_mfma_f32_32x32x16_bf16 {vr(accs[j],16)}, {vr(WFR[k%nb],4)}, {vr(ACT+4*(s%NACT),4)}, {c}")
            self.stamp(f"{nm}{k}")
            if k + nb < len(ops):
                self.wread(WFR[k%nb], *frag(*ops[k+nb]), tag=k+nb)
            hol = [h for h in HOL.get(nm, []) if h[0] <= s < h[0] + h[1]]
            if hol and s == hol[0][0] and j == 0: self.barrier(tag=f'H{nm}{s}')
            post = any(s >= h[0] + h[1] for h in HOL.get(nm, []))
            if not hol and (j == 0 or (j == 1 and (post or s % RAMP == RAMP-1)) or (s >= nsteps - tailn and j == 1)) and nxt[0] < nsteps and (nxt[0] < NACT or lastuse[nxt[0]-NACT] <= k) and nxt[0] <= s + ADEPTH:
                aload()
                if nxt[0] == nsteps and ("Z" + nm) in PLAN: self.barrier(tag="Z" + nm)
            if pre_stats and j == 2 and s % 2 == 0 and s // 2 < 2: pre_stats(s // 2)
            for h in hooks.get((s, j), []) + hooks.get(k - len(ops), []):
                h()
            for _ in range(self.rate):
                if self.drip:
                    d = self.drip.pop(0)
                    if callable(d): d()
                    else: a(d)
        assert nxt[0] == nsteps

    def stats_load(self, sbase):
        a = self.a
        def f(q):
            if q == 0: a(f"s_lshl_b32 s{sT+4}, s{sTL}, 12\ns_add_u32 s{sT+4}, s{sT+4}, s{sbase}")
            a(f"buffer_load_dwordx4 {vr(STT+4*q,4)}, v{vL16}, s[{sWS}:{sWS+3}], s{sT+4} offen offset:{1024*q} sc1")
            self.vm.issue(("st", q))
        return f

    def stats_math(self, double, summed=False):
        a = self.a
        L = []
        if not summed:
            def w():
                n = self.vm.need(("st", 1))
                if n is not None: a(f"s_waitcnt vmcnt({n})")
            L = [w]
            for q in range(4): L.append(f"v_add_f32 v{STT+q}, v{STT+q}, v{STT+4+q}")
            L += f"""v_add_f32 v{STT}, v{STT}, v{STT+2}
v_add_f32 v{STT+1}, v{STT+1}, v{STT+3}
v_add_f32 v{STT}, v{STT}, v{STT+1}""".split("\n")
        L += f"""v_mul_f32 v{STT}, {f2u(1.0/D):#x}, v{STT}
v_mov_b32 v{STT+1}, v{STT}
s_nop 1
v_permlane32_swap_b32 v{STT}, v{STT+1}
v_cmp_gt_u32 vcc, 32, v{vLANE}
v_fma_f32 v{STT+1}, -v{STT}, v{STT}, v{STT+1}
v_max_f32 v{STT+1}, 0, v{STT+1}
v_add_f32 v{STT+2}, {f2u(EPS):#x}, v{STT+1}
v_rsq_f32 v16, v{STT+2}
v_sub_f32 v{STT+4}, 0, v{STT}
v_mov_b32 v18, 0xffff0000
v_and_b32 v{STT+5}, 0xffff0000, v{STT+4}
v_sub_f32 v{STT+6}, v{STT+4}, v{STT+5}
v_lshrrev_b32 v{STT+5}, 16, v{STT+5}""".split("\n")
        if not double:
            L += f"""v_and_or_b32 v{AUXB}, v{STT+6}, v18, v{STT+5}
v_mov_b32 v{AUXB+1}, v{STT+5}""".split("\n")
            return L
        L += f"""v_mul_f32 v{STT+3}, v16, v16
v_mul_f32 v{STT+3}, v{STT+3}, v{STT+1}
v_add_f32 v{STT+3}, {f2u(EPS):#x}, v{STT+3}
v_rsq_f32 v{STT+3}, v{STT+3}
v_and_or_b32 v{AUXB16}, v{STT+6}, v18, v{STT+5}
v_mul_f32 v16, v16, v{STT+3}
v_rcp_f32 v17, v16
v_mov_b32 v{AUXB16+2}, v{AUXB16}
v_cndmask_b32 v{STT+7}, v17, 0, vcc
v_and_b32 v{STT+8}, 0xffff0000, v{STT+7}
v_sub_f32 v{STT+9}, v{STT+7}, v{STT+8}
v_or_b32 v{AUXB16+1}, v{STT+8}, v{STT+5}
v_and_or_b32 v{AUXB16+3}, v{STT+9}, v18, v{STT+5}""".split("\n")
        return L

    def aux_load(self, w1):
        a = self.a
        if w1:
            a(f"s_lshl_b32 s{sT}, s{sCB2}, 12\ns_add_u32 s{sT}, s{sT}, {AUX1}")
            for j in range(3):
                a(f"buffer_load_dwordx4 {vr(AUXA16+4*j,4)}, v{vL16}, s[{sWS}:{sWS+3}], s{sT} offen offset:{1024*j}")
                self.vm.issue(("aux", j))
        else:
            a(f"s_lshl_b32 s{sT}, s{sCB2}, 11\ns_add_u32 s{sT}, s{sT}, {AUXQ}\nv_lshlrev_b32 v{vT}, 3, v{vLANE}")
            for j in range(4):
                a(f"buffer_load_dwordx2 {vr(AUXA+2*j,2)}, v{vT}, s[{sWS}:{sWS+3}], s{sT} offen offset:{512*j}")
                self.vm.issue(("aux", j))

    def aux_mfma(self, acc, j, double):
        if double:
            self.a(f"v_mfma_f32_32x32x16_bf16 {vr(acc,16)}, {vr(AUXA16+4*j,4)}, {vr(AUXB16,4)}, {vr(acc,16)}")
        else:
            self.a(f"v_mfma_f32_32x32x8_bf16 {vr(acc,16)}, {vr(AUXA+2*j,2)}, {vr(AUXB,2)}, {vr(acc,16)}")

    def aux_hooks(self, hooks, nt, accs, double, s0, extra=()):
        L = self.stats_math(double) + list(extra)
        hooks.setdefault((s0, 0), []).append(lambda: self.drip.extend(L))
        sa = s0 + (len(L) + DRIP*nt - 1) // (DRIP*nt) + 1
        for j in range(nt):
            def mk(j):
                def f():
                    assert not self.drip
                    self.aux_mfma(accs[j], j, double)
                return f
            hooks.setdefault((sa, j), []).append(mk(j))

    def set_tl_128(self):
        a = self.a
        a(f"""s_lshl_b32 s{sTL}, s{sRB2}, 2
s_add_u32 s{sTL}, s{sTL}, s{sWAVE}""")
    def set_tl_64(self):
        a = self.a
        a(f"""s_lshl_b32 s{sTL}, s{sRB}, 1
s_add_u32 s{sTL}, s{sTL}, s{sT2}""")
    def tt_off(self, dst, base_sreg, tile_bytes):
        a = self.a
        a(f"""s_mul_i32 s{dst}, s{sTL}, {tile_bytes}
s_add_u32 s{dst}, s{dst}, s{base_sreg}""")

    def phase_qkv(self, c0):
        a = self.a
        a.c("================ QKV phase")
        for c in range(8): self.left[c0+c] = 20
        self.basechunk = {}
        def frag(s, j):
            c, u = divmod(s, 5)
            return (c0+c, 0, (u*3+j)*1024) if j < 3 else (c0+c, 1, 15360 + u*768)
        self.set_tl_128()
        a(f"""v_mov_b32 v{vP0}, v{vL16}
v_and_b32 v{vT}, 31, v{vLANE}
v_subrev_u32 v{vT+1}, 24, v{vT}
v_min_u32 v{vT}, v{vT}, v{vT+1}
v_lshlrev_b32 v{vT}, 4, v{vT}
v_mul_u32_u24 v{vP1}, 384, v{vH}
v_add_u32 v{vP1}, v{vP1}, v{vT}""")
        ops = self.make_ops(40, 4, QTAIL)
        self.stamp("x1e")
        self.first_w(ops, NB4, frag)
        self.stamp("x1f")
        self.poll(3, 16)
        self.stamp(8)
        self.tt_off(sT+6, sACTQ, 40960)
        accs = [ACC+16*j for j in range(4)]
        hooks = {}
        self.aux_hooks(hooks, 4, accs, False, 14, [f"v_mul_f32 v{20+2*jj}, v{20+2*jj}, v16" for jj in range(3)])
        if QTAIL:
            def mk(jj):
                def f():
                    self.rate = QRATE
                    b = sQA + 1 + 4*jj
                    for hf in range(2):
                        r = ACC + 16*jj + 8*hf
                        for k in range(4):
                            self.drip.append(f"v_mul_f32 v{r+2*k}, v{r+2*k}, v{20+2*jj}")
                            self.drip.append(f"v_mul_f32 v{r+2*k+1}, v{r+2*k+1}, v{20+2*jj}")
                            self.drip.append(f"v_cvt_pk_bf16_f32 v{r+k}, v{r+2*k}, v{r+2*k+1}")
                        self.drip.append(f"buffer_store_dwordx4 {vr(r,4)}, v{vSW}, s[{sWS}:{sWS+3}], s{b+hf} offen{QST}")
                return f
            for jj in range(3):
                hooks.setdefault(-(3-jj)*QTAIL + 3, []).append(mk(jj))
        self.gemm(ops, NB4, accs, frag, lambda s: s, sT+6, [False]*4, hooks, pre_stats=self.stats_load(sSTQ), nm='q', pre=[self.qkv_addr])
        self.rate = DRIP
        self.stamp(9)
        n = len(self.drip)
        for d in self.drip: a(d)
        self.drip = []
        if n < 12: a(f"s_nop {11 - n}")
        self.qkv_epilogue(range(0 if QTAIL else 3))
        self.stamp(10)

    def qkv_addr(self):
        a = self.a
        self.tt_off(sQA, sQOUT, 2560)
        for jj in range(3):
            b = sQA + 1 + 4*jj
            a(f"""s_mul_i32 s{sT+7}, s{sCB2}, 6
s_add_u32 s{sT+7}, s{sT+7}, {2*jj}
s_lshr_b32 s{sT+8}, s{sT+7}, 1
s_add_u32 s{sT+8}, s{sT+8}, 32
s_and_b32 s{sT+9}, s{sT+7}, 31
s_cmp_lt_u32 s{sT+7}, 32
s_cselect_b32 s{sT+8}, s{sT+8}, s{sT+9}
s_mov_b32 s{b+1}, 163840
s_cselect_b32 s{b+3}, 256, s{b+1}
s_cselect_b32 s{b+1}, 1024, s{b+1}
s_cselect_b32 s{sT+9}, {f2u(QSCALE):#x}, 1.0
v_mov_b32 v{20+2*jj}, s{sT+9}
s_mul_i32 s{sT+8}, s{sT+8}, 163840
s_add_u32 s{sT+8}, s{sT+8}, s{sQA}
s_cmp_ge_u32 s{sT+7}, 64
s_cselect_b32 s{b}, 1024, 0
s_cselect_b32 s{b+2}, 256, 0
s_add_u32 s{b}, s{b}, s{sT+8}
s_add_u32 s{b+2}, s{b+2}, s{sT+8}
s_add_u32 s{b+1}, s{b+1}, s{b}
v_mul_lo_u32 v{26+jj}, s{b+3}, v{vH}
v_add_u32 v{26+jj}, v{26+jj}, v{vTL}""")

    def qkv_epilogue(self, mains=range(3)):
        a = self.a
        for jj in mains:
            b = sQA + 1 + 4*jj
            for hf in range(2):
                r = ACC + 16*jj + 8*hf
                for k in range(4):
                    a(f"v_pk_mul_f32 {vr(r+2*k,2)}, {vr(r+2*k,2)}, {vr(20+2*jj,2)} op_sel_hi:[1,0]")
                for k in range(4):
                    a(f"v_cvt_pk_bf16_f32 v{r+k}, v{r+2*k}, v{r+2*k+1}")
                a(f"buffer_store_dwordx4 {vr(r,4)}, v{vSW}, s[{sWS}:{sWS+3}], s{b+hf} offen{QST}")
        for jj in range(3):
            b = sQA + 1 + 4*jj
            r = ACC + 48 + 4*jj
            for k in range(2):
                a(f"v_pk_mul_f32 {vr(r+2*k,2)}, {vr(r+2*k,2)}, {vr(20+2*jj,2)} op_sel_hi:[1,0]")
            for k in range(2):
                a(f"v_cvt_pk_bf16_f32 v{r+k}, v{r+2*k}, v{r+2*k+1}")
            a(f"buffer_store_dwordx2 {vr(r,2)}, v{26+jj}, s[{sWS}:{sWS+3}], s{b+2} offen{QST}")

    def unpack(self, dst, src, n):
        a = self.a
        for k in range(n):
            a(f"v_lshlrev_b32 v{dst+2*k}, 16, v{src+k}")
            a(f"v_and_b32 v{dst+2*k+1}, 0xffff0000, v{src+k}")

    def g16_patterns(self, dA, d5):
        self.a(f"""v_and_b32 v{vT}, 15, v{vLANE}
s_lshl_b32 s{sT}, s{sKH}, 4
v_lshrrev_b32 v{vT+1}, 4, v{vLANE}
v_add_u32 v{vT}, s{sT}, v{vT}
v_lshlrev_b32 v{d5}, 4, v{vT}
v_lshl_add_u32 v{dA}, v{vT+1}, 9, v{d5}
v_lshl_add_u32 v{d5}, v{vH}, 9, v{d5}""")

    def b2load(self):
        self.a(f"""s_mul_i32 s{sT}, s{sCB}, 160
v_lshrrev_b32 v{vT}, 4, v{vLANE}
v_lshlrev_b32 v{vT+1}, 3, v{vT}
v_lshlrev_b32 v{vT}, 4, v{vT}
buffer_load_dwordx4 v[24:27], v{vT}, s[{sB2}:{sB2+3}], s{sT} offen
buffer_load_dwordx4 v[28:31], v{vT}, s[{sB2}:{sB2+3}], s{sT} offen offset:64
buffer_load_dwordx2 v[32:33], v{vT+1}, s[{sB2}:{sB2+3}], s{sT} offen offset:128""")

    def gemm16(self, nsig, frag, sact, hooks, pre, nm):
        a = self.a
        nb = len(WF16)
        ops = [(sg, t, th) for sg in range(nsig - T16) for t in range(5) for th in (0, 1)]
        ops += [(sg, t, th) for th in (1, 0) for sg in range(nsig - T16, nsig) for t in range(5)]
        lastw, lasta = {}, {}
        for k, (sg, t, th) in enumerate(ops): lastw[5*sg+t] = k; lasta[2*sg+th] = k
        nact = 2*nsig; nxt = [0]; cur = [None]
        def aload():
            f = nxt[0]; nxt[0] += 1
            sg, th = divmod(f, 2)
            if cur[0] != sg // 2:
                cur[0] = sg // 2
                a(f"s_add_u32 s{sT+3}, s{sact}, {(sg//2)*8192}")
            a(f"buffer_load_dwordx4 {vr(ACT+4*(f%NACT),4)}, v{vP1+th}, s[{sWS}:{sWS+3}], s{sT+3} offen offset:{(sg%2)*2048} sc1")
            self.vm.issue(("act", f))
        for _ in range(NPRE16): aload()
        for h in pre: h()
        started = set()
        for k, (sg, t, th) in enumerate(ops):
            w = []
            n = self.vm.need(("act", 2*sg+th))
            if n is not None: w.append(f"vmcnt({n})")
            tags = [x for _, x in self.dsq]
            if 5*sg+t in tags:
                n = len(tags) - 1 - tags.index(5*sg+t)
                w.append(f"lgkmcnt({n})"); self.dsq = self.dsq[len(self.dsq)-n:] if n else []
            if w: a("s_waitcnt " + " ".join(w))
            d = (OWN, OTH)[th] + 4*t
            c = vr(d, 4) if (th == 0 or t in started) else "0"
            if th == 1: started.add(t)
            a(f"v_mfma_f32_16x16x32_bf16 {vr(d,4)}, {vr(WF16[(5*sg+t) % nb],4)}, {vr(ACT+4*((2*sg+th)%NACT),4)}, {c}")
            self.stamp(f"{nm}{k}")
            f = 5*sg + t
            if lastw[f] == k and f + nb < 5*nsig:
                self.wread(WF16[f % nb], *frag(f + nb), tag=f + nb)
            elif th == 0 and (t in (1, 3) or (t == 2 and sg % R16 == R16-1)) and nxt[0] < nact and (nxt[0] < NACT or lasta[nxt[0]-NACT] <= k):
                aload()
                if nxt[0] == nact and ("Z" + nm) in PLAN: self.barrier(tag="Z" + nm)
            for h in hooks.get(k - len(ops), []): h()
        assert nxt[0] == nact

    def phase_n80(self, which, c0, nchunks):
        a = self.a
        a.c(f"================ {'WO' if which == 0 else 'W2'} phase")
        for c in range(nchunks): self.left[c0+c] = 10
        self.basechunk = {}
        def frag(f):
            c, u = divmod(f, 10)
            return (c0+c, 0, u*1024)
        self.set_tl_64()
        self.g16_patterns(vP1, 22)
        a(f"""s_mul_i32 s{sT}, s{sKH}, 10240
v_add_u32 v{vP0}, s{sT}, v{vL16}
v_xor_b32 v{vP2}, 256, v{vP1}""")
        for f in range(len(WF16)): self.wread(WF16[f], *frag(f), tag=f)
        self.tt_off(sT+6, sOF if which == 0 else sHF, OSTR if which == 0 else 98304)
        a(f"s_lshl_b32 s{sT}, s{sKH}, 12\ns_add_u32 s{sT+6}, s{sT+6}, s{sT}")
        self.poll(0 if which == 0 else 2, 32 if which == 0 else 16)
        self.stamp(2 if which == 0 else 6)
        def addr():
            a(f"""s_mul_i32 s{sT}, s{sWAVE}, 5120
s_add_u32 s{sT}, s{sT}, {MISC}
v_add_u32 v20, s{sT}, v{vL16}
s_xor_b32 s{sT}, s{sWAVE}, 2
s_mul_i32 s{sT}, s{sT}, 5120
s_add_u32 s{sT}, s{sT}, {MISC}
v_add_u32 v21, s{sT}, v{vL16}
v_bfe_u32 v{vT}, v{vLANE}, 4, 1
v_lshlrev_b32 v{vT+1}, 30, v{vT}
v_add_u32 v35, v{vT+1}, v22
v_lshl_add_u32 v22, v{vT}, 3, v22""")
            self.tt_off(sQA, sX1F if which == 0 else sACTQ, 40960)
            self.tt_off(sQA+2, sST1 if which == 0 else sSTQ, 4096)
            a(f"""s_mul_i32 s{sT}, s{sCB}, 5120
s_add_u32 s{sQA}, s{sQA}, s{sT}
s_add_u32 s{sQA+1}, s{sQA}, 4096
s_lshl1_add_u32 s{sQA+3}, s{sCB}, s{sKH}
s_lshr_b32 s{sT}, s{sCB}, 2
s_lshl_b32 s{sT}, s{sT}, 10
s_add_u32 s{sQA+2}, s{sQA+2}, s{sT}
s_and_b32 s{sT}, s{sCB}, 3
s_lshl2_add_u32 s{sQA+2}, s{sT}, s{sQA+2}""")
            if which == 1:
                a(f"""v_and_b32 v{vT}, 15, v{vLANE}
s_lshl_b32 s{sT}, s{sKH}, 4
v_add_u32 v{vT}, s{sT}, v{vT}
v_mul_u32_u24 v{vT}, 1280, v{vT}
v_lshrrev_b32 v{vT+1}, 4, v{vLANE}
v_lshl_add_u32 v23, v{vT+1}, 4, v{vT}
v_lshl_add_u32 v34, v{vT+1}, 3, v{vT}
s_lshl3_add_u32 s{sQA+4}, s{sG}, s{sTL}
s_mul_i32 s{sQA+4}, s{sQA+4}, 40960
s_mul_i32 s{sT}, s{sCB}, 160
s_add_u32 s{sQA+4}, s{sQA+4}, s{sT}""")
        hooks = {}
        def wr(q):
            def f():
                a(f"ds_write_b128 v20, {vr(OTH+4*q,4)} offset:{1024*q}")
                self.dsq.append((None, ("xw", q)))
            return f
        for q in range(5):
            hooks.setdefault(-5*T16 + 3 + q, []).append(wr(q))
        self.gemm16(nchunks*2, frag, sT+6, hooks, [addr], 'ow'[which])
        self.stamp(3 if which == 0 else 7)
        self.lgkm(0)
        self.stamp(f"x{which}a")
        self.barrier(tag=f"X{which}")
        self.stamp(f"x{which}b")
        for q in range(5):
            a(f"ds_read_b128 {vr(OTH+4*q,4)}, v21 offset:{1024*q}")
        a("v_mov_b32 v16, 0\nv_mov_b32 v17, 0\nv_mov_b32 v18, 0\nv_mov_b32 v19, 0")
        lfin = a.label("fin")
        PK = PKR
        def block(p):
            n = 4 if p < 2 else 2
            a(f"s_waitcnt lgkmcnt({(3, 1, 0)[p]})")
            for k in range(n):
                a(f"v_pk_add_f32 {vr(OWN+8*p+2*k,2)}, {vr(OWN+8*p+2*k,2)}, {vr(OTH+8*p+2*k,2)}")
            for k in range(n):
                a(f"v_cvt_pk_bf16_f32 v{PK+4*p+k}, v{OWN+8*p+2*k}, v{OWN+8*p+2*k+1}")
        block(0)
        if which == 1:
            a(f"s_cmp_lg_u32 s{sLAST}, 0\ns_cbranch_scc1 {lfin}")
        a(f"buffer_store_dwordx4 {vr(PK,4)}, v{vP1}, s[{sWS}:{sWS+3}], s{sQA} offen")
        block(1)
        a(f"buffer_store_dwordx4 {vr(PK+4,4)}, v{vP1}, s[{sWS}:{sWS+3}], s{sQA} offen offset:2048")
        block(2)
        a(f"buffer_store_dwordx2 {vr(PK+8,2)}, v22, s[{sWS}:{sWS+3}], s{sQA+1} offen")
        for k in range(10):
            a(f"v_pk_add_f32 v[16:17], v[16:17], {vr(OWN+2*k,2)}")
            a(f"v_pk_fma_f32 v[18:19], {vr(OWN+2*k,2)}, {vr(OWN+2*k,2)}, v[18:19]")
        a(f"""v_add_f32 v16, v16, v17
v_add_f32 v18, v18, v19
s_nop 1
v_permlane32_swap_b32 v16, v18
s_nop 1
v_add_f32 v16, v16, v18
v_mov_b32 v17, v16
s_nop 1
v_permlane16_swap_b32 v16, v17
s_nop 1
v_add_f32 v16, v16, v17
buffer_store_dword v16, v35, s[{sWS}:{sWS+3}], s{sQA+2} offen""")
        self.stamp(f"x{which}c")
        self.publish(1 if which == 0 else 3, sQA+3)
        self.stamp(f"x{which}d")
        if which == 0:
            def rinit():
                for k in range(10):
                    self.unpack(OWN+2*k, PK+k, 1)
                    self.unpack(OTH, 24+k, 1)
                    a(f"v_pk_add_f32 {vr(OWN+2*k,2)}, {vr(OWN+2*k,2)}, {vr(OTH,2)}")
            self.deferred = [rinit]
        else:
            self.final_label = lfin
            self.final_block = block

    def final_out(self):
        a = self.a
        PK = PKR
        a(f"{self.final_label}:")
        a(f"buffer_store_dwordx4 {vr(PK,4)}, v23, s[{sOUT}:{sOUT+3}], s{sQA+4} offen{OST}")
        self.final_block(1)
        a(f"buffer_store_dwordx4 {vr(PK+4,4)}, v23, s[{sOUT}:{sOUT+3}], s{sQA+4} offen offset:64{OST}")
        self.final_block(2)
        a(f"buffer_store_dwordx2 {vr(PK+8,2)}, v34, s[{sOUT}:{sOUT+3}], s{sQA+4} offen offset:128{OST}")
        self.stamp(8)

    def phase_w1(self, c0):
        a = self.a
        a.c("================ W1 phase")
        for c in range(6): self.left[c0+c] = 20
        self.basechunk = {}
        def frag(s, j):
            c, u = divmod(3*s+j, 20)
            return (c0+c, 0, u*1024)
        self.set_tl_128()
        a(f"v_mov_b32 v{vP0}, v{vL16}")
        ops = self.make_ops(40, 3)
        self.stamp("x0e")
        self.first_w(ops, NB3, frag)
        self.stamp("x0f")
        self.poll(1, 16)
        self.stamp(4)
        self.tt_off(sT+6, sX1F, 40960)
        accs = [ACC+16*j for j in range(3)]
        hooks = {}
        k1 = -2.0*math.sqrt(2.0/math.pi)*math.log2(math.e)
        k3 = k1*0.044715
        consts = f"""v_mul_f32 v20, {f2u(k1):#x}, v16
v_mul_f32 v22, v16, v16
v_mul_f32 v22, v22, v16
v_mul_f32 v22, {f2u(k3):#x}, v22
v_mov_b32 v24, v17""".split("\n")
        self.aux_hooks(hooks, 3, accs, True, 14, consts)
        hooks.setdefault((26, 2), []).append(lambda: self.aux_load(False))
        def oaddr():
            self.tt_off(sQA, sHF, 98304)
            a(f"""s_mul_i32 s{sT}, s{sCB2}, 6144
s_add_u32 s{sQA}, s{sQA}, s{sT}
s_add_u32 s{sQA+1}, s{sQA}, 4096""")
        self.gemm(ops, NB3, accs, frag, lambda s: s, sT+6, [False]*3, hooks, pre_stats=self.stats_load(sST1), nm='f', pre=[oaddr] + self.deferred)
        self.stamp(5)
        if "E1" in PLAN: self.barrier(tag="E1")
        a("s_nop 9")
        T = ACT
        for blk in range(6):
            r = ACC + 8*blk
            t = T + 8*(blk % 2)
            for k in range(4):
                a(f"v_pk_mul_f32 {vr(t+2*k,2)}, {vr(r+2*k,2)}, {vr(r+2*k,2)}")
            for k in range(4):
                a(f"v_pk_fma_f32 {vr(t+2*k,2)}, {vr(t+2*k,2)}, v[22:23], v[20:21] op_sel_hi:[1,0,0]")
            for k in range(4):
                a(f"v_pk_mul_f32 {vr(t+2*k,2)}, {vr(t+2*k,2)}, {vr(r+2*k,2)}")
            for k in range(8):
                a(f"v_exp_f32 v{t+k}, v{t+k}")
            for k in range(4):
                a(f"v_pk_fma_f32 {vr(t+2*k,2)}, {vr(t+2*k,2)}, v[24:25], v[24:25] op_sel_hi:[1,0,0]")
            for k in range(8):
                a(f"v_rcp_f32 v{t+k}, v{t+k}")
            for k in range(4):
                a(f"v_pk_mul_f32 {vr(t+2*k,2)}, {vr(t+2*k,2)}, {vr(r+2*k,2)}")
            for k in range(4):
                a(f"v_cvt_pk_bf16_f32 v{r+k}, v{t+2*k}, v{t+2*k+1}")
            if blk >= GDEF:
                for b2 in (range(blk+1) if blk == GDEF else [blk]):
                    a(f"buffer_store_dwordx4 {vr(ACC+8*b2,4)}, v{vL16}, s[{sWS}:{sWS+3}], s{sQA + b2//4} offen offset:{(b2%4)*1024}")
        self.stamp("y1c")
        self.publish(2, sCB2)
        self.stamp("y1d")

    def dma_chunk_static(self, n):
        a = self.a
        if n < 8: base, k = sSRC, n
        elif n < 13: base, k = sWO, n-8
        elif n < 19: base, k = sW1, n-13
        elif n < 31: base, k = sW2, n-19
        else: base, k = sWQ, n-31
        a(f"s_add_u32 m0, s{sLDW}, {(n % NSLOT)*CH}\ns_add_u32 s{sT}, s{base}, {k*CH}")
        self.dma5(sT, " nt" if (n < 8 and KV_NT) else "")
    def dma5(self, so, fl=""):
        a = self.a
        for q in range(4):
            a(f"buffer_load_dwordx4 v{vL16}, s[{sWS}:{sWS+3}], s{so} offen offset:{1024*q} lds{fl}" if False else
              f"buffer_load_dwordx4 v{vL16}, s[{sWS}:{sWS+3}], s{so} offen offset:{1024*q}{fl} lds")
        a(f"s_add_u32 m0, m0, 4096\ns_add_u32 s{sT+1}, s{so}, 4096")
        a(f"buffer_load_dwordx4 v{vL16}, s[{sWS}:{sWS+3}], s{sT+1} offen{fl} lds")

    def loader(self, bars, issued, last, touches=None):
        a = self.a
        issued = list(issued)
        touches = touches or {}
        for bi, b in enumerate(bars):
            if b["need"] is not None:
                assert b["need"] in issued, (b, issued)
                n = 5*(len(issued) - 1 - issued.index(b["need"]))
                a(f"s_waitcnt vmcnt({n})")
            a("s_barrier")
            for f in b["free"]:
                nx = f + NSLOT
                if nx <= last and nx not in issued:
                    self.dma_chunk_static(nx); issued.append(nx)
            if bi in touches:
                w, base, off = touches[bi]
                l = a.label("tch")
                a(f"""s_cmp_lg_u32 s{sWAVE}, {w}
s_cbranch_scc1 {l}
s_add_u32 s{sT}, s{base}, {off}
buffer_load_dword v{vDUM}, v{vWRM}, s[{sWS}:{sWS+3}], s{sT} offen
{l}:""")

    def chunk_src(self, n):
        if n < 13: return sWO, n-8
        if n < 19: return sW1, n-13
        if n < 31: return sW2, n-19
        return sWQ, n-31
    def fifo_reg(self, e):
        return 112 + 20*e if e < 7 else 16 + 20*(e-7)
    def fifo_load(self, n, e):
        a = self.a
        r = self.fifo_reg(e)
        (b0, k0), (b1, k1) = self.chunk_src(FL[0][e]), self.chunk_src(FL[1][e])
        a(f"s_add_u32 s{sT}, s{b0}, {k0*CH}")
        if (b0, k0) != (b1, k1):
            a(f"s_add_u32 s{sT+1}, s{b1}, {k1*CH}\ns_cmp_lg_u32 s{sLAST}, 0\ns_cselect_b32 s{sT}, s{sT+1}, s{sT}")
        a(f"s_add_u32 s{sT+1}, s{sT}, 4096")
        for q in range(4):
            a(f"buffer_load_dwordx4 {vr(r+4*q,4)}, v{vL16}, s[{sWS}:{sWS+3}], s{sT} offen offset:{1024*q}")
        a(f"buffer_load_dwordx4 {vr(r+16,4)}, v{vL16}, s[{sWS}:{sWS+3}], s{sT+1} offen")

    def loader2(self, bars, last, plan, npre):
        a = self.a
        vm = VM()
        a(f"v_add_u32 v{vT}, s{sLDW}, v{vL16}")
        NE = 11
        ent = {F0+e: e for e in range(npre)}
        loadbar = {F0+e: -10 for e in range(npre)}
        free_e = list(range(npre, NE))
        nload = F0 + npre; nwrite = F0
        slotfree = set(); inlds = set(range(F0))
        wq = []
        log = []
        def wdone(c):
            nonlocal wq, free_e
            if c in wq:
                i = wq.index(c)
                n = 5*(len(wq) - 1 - i)
                a(f"s_waitcnt lgkmcnt({min(n, 15) if n <= 15 else 15})" if n <= 15 else "s_waitcnt lgkmcnt(15)")
                if n > 15:
                    i = len(wq) - 4
                for x in wq[:i+1]: free_e.append(ent[x])
                wq = wq[i+1:]
        for bi, b in enumerate(bars):
            if b["need"] is not None:
                nd = min(b["need"], last)
                assert all(c in inlds for c in range(nd+1)), (b, sorted(inlds), log)
                wdone(nd)
            a("s_barrier")
            acts = []
            for f in b["free"]: slotfree.add(f + NSLOT)
            k = plan.get(b["tag"], 0)
            def loads(k):
                nonlocal nload
                while k > 0 and nload <= last:
                    if not free_e:
                        if not wq: break
                        wdone(wq[0])
                    e = free_e.pop(0)
                    self.fifo_load(nload, e)
                    for q in range(5): vm.issue(("c", nload))
                    ent[nload] = e; loadbar[nload] = bi
                    acts.append(f"L{nload}"); nload += 1; k -= 1
                return k
            k0 = min(k, len(free_e))
            k -= k0; loads(k0)
            nw = 0
            while nwrite <= last and nwrite in slotfree and nwrite in ent and bi - loadbar[nwrite] >= WR_LAG and nw < plan.get("w" + b["tag"], 2):
                n = vm.need(("c", nwrite))
                if n is not None: a(f"s_waitcnt vmcnt({n})")
                r = self.fifo_reg(ent[nwrite])
                a(f"v_add_u32 v{vT+1}, {(nwrite % NSLOT)*CH}, v{vT}")
                for q in range(5):
                    a(f"ds_write_b128 v{vT+1}, {vr(r+4*q,4)} offset:{1024*q}")
                wq.append(nwrite); inlds.add(nwrite)
                acts.append(f"w{nwrite}"); nwrite += 1; nw += 1
            loads(k)
            log.append(f"{b['tag']}:{','.join(acts)}")
        assert nwrite == last + 1, (nwrite, last, log)
        if os.environ.get("VERBOSE"): print(" ".join(log))

    def loader3(self, bars, last, plan, f0):
        a = self.a
        vm = VM()
        a(f"v_add_u32 v{vT}, s{sLDW}, v{vL16}")
        ent = {c: e for e, c in enumerate(f0)}
        xl = {}
        for tag, cs in XFIFO.items():
            for c, e in cs:
                if c not in f0: ent[c] = e
        loaded = set(f0)
        slotfree = set(); prog = {c: 5 for c in range(15 if PRE13 else 13)}; wq = []; log = []
        for bi, b in enumerate(bars):
            if b["need"] is not None:
                nd = min(b["need"], last)
                assert all(prog.get(c, 0) == 5 for c in range(nd+1)), (b, prog, log)
                for c in range(nd, 12, -1):
                    n = vm.need(("c", c))
                    if n is not None: a(f"s_waitcnt vmcnt({n})")
                if any(c <= nd for c in wq):
                    i = max(i for i, c in enumerate(wq) if c <= nd)
                    a(f"s_waitcnt lgkmcnt({min(15, len(wq)-1-i)})")
                    wq = wq[i+1:]
            a("s_barrier")
            if last == 30 and b["tag"] == WBAT:
                l = a.label("wb")
                a(f"s_cmp_lg_u32 s{sJ}, 0\ns_cbranch_scc1 {l}\ns_cmp_lg_u32 s{sWAVE}, 7\ns_cbranch_scc1 {l}\nbuffer_wbl2 sc1\n{l}:")
            acts = []
            for f in b["free"]: slotfree.add(f + NSLOT)
            k = plan.get(b["tag"], plan["def"]); nw = plan.get("w" + b["tag"], plan["wdef"])
            thr = plan.get("t" + b["tag"], plan.get("tdef"))
            items = []
            for c in sorted(slotfree):
                if c > last or c in ent: continue
                while k > 0 and prog.get(c, 0) < 5:
                    q = prog.get(c, 0); items.append(("D", c, q)); prog[c] = q + 1; k -= 1
            witems = []
            for c in sorted(slotfree):
                if c > last or c not in loaded: continue
                while nw > 0 and prog.get(c, 0) < 5:
                    q = prog.get(c, 0); witems.append(("w", c, q)); prog[c] = q + 1; nw -= 1
            cur = None; curw = None
            def emit(it):
                nonlocal cur, curw
                kind, c, q = it
                if kind == "D":
                    base, kk = self.chunk_src(c)
                    if cur != (c, q // 4):
                        cur = (c, q // 4)
                        a(f"s_add_u32 m0, s{sLDW}, {(c % NSLOT)*CH + (q//4)*4096}\ns_add_u32 s{sT}, s{base}, {kk*CH + (q//4)*4096}")
                    if thr is not None and len(vm.q) > thr:
                        a(f"s_waitcnt vmcnt({thr})"); vm.q = vm.q[len(vm.q)-thr:] if thr else []
                    a(f"buffer_load_dwordx4 v{vL16}, s[{sWS}:{sWS+3}], s{sT} offen offset:{1024*(q%4)} lds")
                    vm.issue(("c", c))
                else:
                    if curw != c:
                        curw = c
                        n = vm.need(("x", c))
                        if n is not None: a(f"s_waitcnt vmcnt({n})")
                        a(f"v_add_u32 v{vT+1}, {(c % NSLOT)*CH}, v{vT}")
                    a(f"ds_write_b128 v{vT+1}, {vr(self.fifo_reg(ent[c])+4*q,4)} offset:{1024*q}")
                    wq.append(c)
                acts.append(f"{kind}{c}")
            for it in ([] if 'noD' in XP else items) + ([] if 'noW' in XP else witems): emit(it)
            for c, e in XFIFO.get(b["tag"], []):
                if c > last or c in f0: continue
                prev = [x for x in ent if ent[x] == e and x < c]
                assert all(prog.get(x, 0) == 5 for x in prev), (c, e)
                if any(x in wq for x in prev): a("s_waitcnt lgkmcnt(0)"); wq.clear()
                if 'noD' in XP: loaded.add(c); continue
                base, kk = self.chunk_src(c); r = self.fifo_reg(ent[c])
                a(f"s_add_u32 s{sT}, s{base}, {kk*CH}\ns_add_u32 s{sT+1}, s{base}, {kk*CH+4096}")
                for q in range(5):
                    a(f"buffer_load_dwordx4 {vr(r+4*q,4)}, v{vL16}, s[{sWS}:{sWS+3}], s{sT + q//4} offen offset:{1024*(q%4)}")
                    vm.issue(("x", c))
                loaded.add(c); acts.append(f"L{c}")
            import itertools
            log.append(f"{b['tag']}:" + ",".join(f"{k_}x{len(list(g_))}" for k_, g_ in itertools.groupby(acts)))
        assert all(prog.get(c, 0) == 5 for c in range(last+1)), log
        if os.environ.get("VERBOSE"): print(" ".join(log))

    def att_tile(self, t):
        a = self.a
        u = t % 8; cc = t // 8
        X, Y = SS[u % 2], SS[(u+1) % 2]
        e = lambda k: a(f"v_exp_f32 v{X+k}, v{X+k}")
        c = lambda k: a(f"v_cvt_pk_bf16_f32 v{P+k}, v{X+2*k}, v{X+2*k+1}")
        kt, vt = (u+2) % 8, (u+1) % 8
        vb = V1[(u+1) % 2]
        last = t == 63
        self.stamp(f"t{t}")
        upd = lambda q: a(f"v_mad_u32_u24 v{vVA+q}, s{sSLOT}, v{vMV}, v{vBV+q}")
        if u == 7 and not last: upd(2)
        e(0)
        a(f"v_cvt_pk_bf16_f32 v{P+7}, v{Y+14}, v{Y+15}")
        if u == 7 and not last: upd(3)
        e(1); e(2)
        a(f"v_mfma_f32_32x32x16_bf16 {vr(O,16)}, {vr(vb,4)}, {vr(P+4,4)}, {vr(O,16)}")
        if not last:
            a(f"ds_read_b64_tr_b16 {vr(vb,2)}, v{vVA+2} offset:{vt*2560}")
            a(f"ds_read_b64_tr_b16 {vr(vb+2,2)}, v{vVA+3} offset:{vt*2560}")
        if u == 7 and not last: upd(0); upd(1)
        c(0); e(3); e(4); c(1); e(5); e(6)
        a(f"s_waitcnt lgkmcnt({0 if last else 2})")
        if not last:
            a(f"v_mfma_f32_32x32x16_bf16 {vr(Y,16)}, {vr(K1,4)}, {vr(Q1,4)}, 0")
        if u == 6 and cc < 7:
            a(f"""s_mov_b32 s{sSLOT}, {((cc+1) % NSLOT)*CH}
v_add_u32 v{vK1}, s{sSLOT}, v{vBK1}
v_mad_u32_u24 v{vK2}, s{sSLOT}, v{vMK}, v{vBK2}""")
            if cc % 2 == 0 or cc == 1:
                n = self.avm.need(("c", cc+1))
                if t == S_FLAG: n = 0; self.avm.drain()
                if n is not None: a(f"s_waitcnt vmcnt({n})")
                a("s_barrier")
        if t == 2:
            n = self.avm.need(("c", 0))
            if n is not None: a(f"s_waitcnt vmcnt({n})")
            a("s_barrier")
        if t < 62:
            a(f"ds_read_b128 {vr(K1,4)}, v{vK1} offset:{kt*2560}")
        if t in PRIO: a(f"s_setprio {PRIO[t]}")
        self.att_round(2*t)
        c(2); e(7); e(8); c(3); e(9); e(10)
        if not last:
            a(f"v_mfma_f32_32x32x8_bf16 {vr(Y,16)}, {vr(K2,2)}, {vr(Q2,2)}, {vr(Y,16)}")
        if t < 62:
            a(f"ds_read_b64 {vr(K2,2)}, v{vK2} offset:{kt*2560}")
        self.att_side(t)
        self.att_round(2*t+1)
        c(4); e(11); e(12); c(5); e(13); e(14)
        a(f"v_mfma_f32_32x32x16_bf16 {vr(O,16)}, {vr(V0,4)}, {vr(P,4)}, {vr(O,16)}")
        if not last:
            a(f"ds_read_b64_tr_b16 {vr(V0,2)}, v{vVA} offset:{vt*2560}")
            a(f"ds_read_b64_tr_b16 {vr(V0+2,2)}, v{vVA+1} offset:{vt*2560}")
        c(6); e(15)

    def ool(self, cond, body):
        a = self.a
        lo, lb = a.label("ool"), a.label("back")
        a(f"{cond} {lo}\n{lb}:")
        sav = a.L; a.L = self.oolbuf
        a(f"{lo}:"); body(); a(f"s_branch {lb}")
        a.L = sav

    def att_round(self, slot):
        a = self.a
        if 'noside' in XP or slot not in ROUNDS: return
        kind, n, q = ROUNDS[slot]; t = slot // 2
        if kind == "S":
            if q == 0:
                a(f"""s_xor_b32 s{sT+4}, s{sG}, {n}
s_mul_i32 s{sDP}, s{sT+4}, {CH}
s_add_u32 s{sDP}, s{sDP}, s{sSRC}
s_sub_u32 s{sDP}, s{sDP}, s{sLDW}
s_mul_i32 s{sT+6}, s{sWAVE}, 2560
s_min_u32 s{sT+6}, s{sT+6}, {CH - 3072}
s_add_u32 s{sDP}, s{sDP}, s{sT+6}""")
                self.ool(f"s_cmp_eq_u32 s{sRDY}, 0\ns_cbranch_scc1", self.kv_check)
                a(f"s_add_u32 m0, s{sT+6}, {n*CH}\ns_nop 0")
            a(f"buffer_load_dwordx4 v{vL16}, s[{sWS}:{sWS+3}], s{sDP} offen offset:{1024*q} lds")
            self.avm.issue(("c", n))
        elif kind == "T":
            if q == 0:
                a(f"""s_lshl3_add_u32 s{sT}, s{sJ}, s{sWAVE}
s_mul_i32 s{sT}, s{sT}, 6144
s_mul_i32 s{sZP}, s{sG}, {AST}
s_add_u32 s{sZP}, s{sZP}, s{sT}
s_add_u32 s{sZP}, s{sZP}, {ARENA}
s_cmp_lg_u32 s{sLAST}, 0
s_cselect_b32 s{sZP}, {OOB}, s{sZP}""")
            r = self.fifo_reg(1)
            a(f"buffer_load_dwordx4 {vr(r,4)}, v{vL16 if q < 4 else vL16B}, s[{sWS}:{sWS+3}], s{sZP} offen offset:{1024*(q%4)}")
            self.avm.issue(("t", n))
        elif kind == "D":
            if q == 0:
                if n >= NSLOT: assert slot >= 2*(8*(n + 1 - NSLOT + 1) + 6), (slot, n)
                if n >= 7: assert t > S_POLL + 2
                if n < 8:
                    a(f"""s_add_u32 s{sT+4}, s{sROLE}, {n}
s_xor_b32 s{sT+4}, s{sT+4}, s{sG}
s_and_b32 s{sT+4}, s{sT+4}, 7
s_mul_i32 s{sDP}, s{sT+4}, {CH}
s_add_u32 s{sDP}, s{sDP}, s{sSRC}""")
                    self.ool(f"s_cmp_eq_u32 s{sRDY}, 0\ns_cbranch_scc1", self.kv_check)
                    if n == 7: a(f"s_cmp_lg_u32 s{sROLE}, 0\ns_cselect_b32 s{sDP}, s{sWO}, s{sDP}")
                else:
                    a(f"s_mul_i32 s{sDP}, s{sROLE}, {CH}\ns_add_u32 s{sDP}, s{sDP}, s{sWO}\ns_add_u32 s{sDP}, s{sDP}, {(n-8)*CH}")
                a(f"s_add_u32 m0, s{sLDR}, {(n % NSLOT)*CH}\ns_nop 0")
            if q < 4:
                a(f"buffer_load_dwordx4 v{vL16}, s[{sWS}:{sWS+3}], s{sDP} offen offset:{1024*q} lds")
            else:
                a(f"s_add_u32 m0, m0, 4096\ns_nop 0\nbuffer_load_dwordx4 v{vL16B}, s[{sWS}:{sWS+3}], s{sDP} offen lds")
            self.avm.issue(("c", n))
        else:
            assert t > (WQ_POLL if (WQ_POLL > 0 and FL[0][n] >= 31 and n in (E_T0, E_T1)) else S_POLL) + 2
            if q == 0:
                (b0, k0), (b1, k1) = self.chunk_src(FL[0][n]), self.chunk_src(FL[1][n])
                a(f"s_add_u32 s{sFP}, s{b0}, {k0*CH}")
                if (b0, k0) != (b1, k1):
                    a(f"s_add_u32 s{sT}, s{b1}, {k1*CH}\ns_cmp_lg_u32 s{sLAST}, 0\ns_cselect_b32 s{sFP}, s{sT}, s{sFP}")
                if n == E_RES: src = f"s{sRES}"
                elif n in (E_C13, E_C14): a(f"s_add_u32 s{sT}, s{sW1}, {(n-E_C13)*CH}"); src = f"s{sT}"
                elif n in (E_T0, E_T1): a(f"s_add_u32 s{sT}, s{sAR}, {(n-E_T0)*2048}"); src = f"s{sT}"
                else: src = f"{OOB:#x}"
                a(f"s_cmp_eq_u32 s{sROLE}, 0\ns_cselect_b32 s{sFP}, {src}, s{sFP}")
            r = self.fifo_reg(n) + 4*q
            fl = " sc1" if n == E_RES else ""
            v0_, v1_ = (vRS, vRSB) if n == E_RES else (vL16, vL16B)
            if q < 4: a(f"buffer_load_dwordx4 {vr(r,4)}, v{v0_}, s[{sWS}:{sWS+3}], s{sFP} offen offset:{1024*q}{fl}")
            else: a(f"buffer_load_dwordx4 {vr(r,4)}, v{v1_}, s[{sWS}:{sWS+3}], s{sFP} offen{fl}")
            self.avm.issue(("f", n))

    def att_side(self, t):
        a = self.a
        if 'noside' in XP: return
        if t == XC_AT:
            a(f"""s_lshl_b32 s{sT}, s{sG}, 7
s_add_u32 s{sT}, s{sT}, {XCC}
buffer_load_dword v{vXC+1}, v{vXC+1}, s[{sWS}:{sWS+3}], s{sT} offen sc1""")
            self.avm.issue("xc")
        if any(k in "SD" and 1 < n < 8 and q == 0 and sl // 2 == t + 2 for sl, (k, n, q) in ROUNDS.items()):
            assert not (S_POLL - 2 <= t <= S_POLL + 2)
            self.ool(f"s_cmp_eq_u32 s{sRDY}, 0\ns_cbranch_scc1", self.kv_flags_load)
        self.strip_side(t)
        if t == RESX_AT:
            def resx():
                self.set_tl_64()
                srd(a, sSS, sXP, S*D*2)
                a(f"""s_lshl3_add_u32 s{sT}, s{sG}, s{sTL}
s_mul_i32 s{sT}, s{sT}, 40960
s_mul_i32 s{sT+1}, s{sCB}, 160
s_add_u32 s{sT}, s{sT}, s{sT+1}
s_lshl_b32 s{sT+1}, s{sKH}, 4
v_and_b32 v{vDUM}, 15, v{vLANE}
v_add_u32 v{vDUM}, s{sT+1}, v{vDUM}
v_mul_u32_u24 v{vDUM}, 1280, v{vDUM}
v_lshrrev_b32 v30, 4, v{vLANE}
v_lshl_add_u32 v31, v30, 3, v{vDUM}
v_lshl_add_u32 v{vDUM}, v30, 4, v{vDUM}
buffer_load_dwordx4 {vr(RX,4)}, v{vDUM}, s[{sSS}:{sSS+3}], s{sT} offen
buffer_load_dwordx4 {vr(RX+4,4)}, v{vDUM}, s[{sSS}:{sSS+3}], s{sT} offen offset:64
buffer_load_dwordx2 {vr(RX+8,2)}, v31, s[{sSS}:{sSS+3}], s{sT} offen offset:128
s_mov_b32 s{sTL}, s{sWAVE}""")
            assert all(sl < 2*t for sl, (k, n, q) in ROUNDS.items() if k == "F" and n == 0)
            self.ool(f"s_or_b32 s{sT}, s{sROLE}, s{sLAST}\ns_cbranch_scc0", resx)

    def pub_addr(self, stt, layer):
        self.a(f"""s_lshr_b32 s{sPUB}, s{stt}, 2
s_lshl_b32 s{sPUB}, s{sPUB}, 7
s_and_b32 s{sT}, s{stt}, 3
s_lshl2_add_u32 s{sPUB}, s{sT}, s{sPUB}
s_lshl_b32 s{sT}, s{sCB2}, 11
s_add_u32 s{sPUB}, s{sPUB}, s{sT}
s_add_u32 s{sPUB}, s{sPUB}, {QF + 32768*layer}""")

    def kv_flags_load(self):
        self.a(f"""buffer_load_dword v{vPL}, v{vXC}, s[{sWS}:{sWS+3}], s{sQFK} offen sc1
buffer_load_dword v{vPL+1}, v{vXC}, s[{sWS}:{sWS+3}], s{sQFV} offen sc1""")
    def kv_check(self):
        a = self.a
        l, lp = a.label("kc"), a.label("kp")
        a(f"""s_lshl_b32 s{sT+4}, s{sT+4}, 3
s_mov_b32 s{sT+5}, 0x100000
{lp}:
s_waitcnt vmcnt(0)
v_and_b32 v{vPL}, v{vPL}, v{vPL+1}
v_cmp_ne_u32 s[{sT+2}:{sT+3}], 0, v{vPL}
s_cmp_eq_u64 s[{sT+2}:{sT+3}], -1
s_cselect_b32 s{sRDY}, 1, 0
s_lshr_b64 s[{sT+2}:{sT+3}], s[{sT+2}:{sT+3}], s{sT+4}
s_and_b32 s{sT+2}, s{sT+2}, 0xff
s_cmp_eq_u32 s{sT+2}, 0xff
s_cbranch_scc1 {l}
s_sub_u32 s{sT+5}, s{sT+5}, 1
s_cbranch_scc1 {l}""")
        self.kv_flags_load()
        a(f"s_branch {lp}\n{l}:")

    def strip_side(self, t):
        a = self.a
        def only(ty, f):
            self.ool(f"s_cmp_ge_u32 s{sTy}, {ty}\ns_cbranch_scc1", f)
        def two(f4, f10):
            def body():
                l = a.label("st")
                f4()
                a(f"s_cmp_eq_u32 s{sTy}, 1\ns_cbranch_scc1 {l}")
                f10()
                a(f"{l}:")
            only(1, body)
        def loads(js):
            for j in js:
                a(f"""s_add_u32 s{sT+1}, s{sSo}, s{sBp}
buffer_load_dwordx2 {vr(SR+4*j,2)}, v{vSO}, s[{sSS}:{sSS+3}], s{sSo} offen
buffer_load_dwordx2 {vr(SR+4*j+2,2)}, v{vSO}, s[{sSS}:{sSS+3}], s{sT+1} offen
s_add_u32 s{sSo}, s{sSo}, s{sA}""")
        assert S_WR >= 14
        wr = lambda ks: [a(f"ds_write_b64 v{vSC}, {vr(SR+2*k,2)} offset:{512*(k % 14)}") for k in ks]
        rd = lambda ks: [a(f"ds_read_b64_tr_b16 {vr(SR+2*k,2)}, v{vSC} offset:{512*(k % 14)}") for k in ks]
        def st(js):
            for j in js:
                a(f"buffer_store_dwordx4 {vr(SR+4*j,4)}, v{vSD}, s[{sWS}:{sWS+3}], s{sDs} offen sc0 sc1\ns_add_u32 s{sDs}, s{sDs}, s{sSt if j % 2 else sSt0}")
        def aux():
            a(f"""s_cmp_ge_u32 s{sQd}, 2
s_cselect_b32 s{sT}, -1, 0
v_and_b32 v{CSA+1}, 0xffff0000, v{CSA}
v_sub_f32 v{CSA+3}, v{CSA}, v{CSA+1}
v_lshrrev_b32 v{CSA+2}, 16, v{CSA+1}
v_or_b32 v{CSA+2}, v{CSA+2}, v{CSA+1}
v_lshrrev_b32 v{CSA+3}, 16, v{CSA+3}
v_and_b32 v{vBI}, s{sT}, v{vBI}
v_lshl_or_b32 v{CSA+3}, v{vBI}, 16, v{CSA+3}
v_lshlrev_b32 v{CSA}, 30, v{vH}
v_add_u32 v{CSA}, v{CSA}, v{vL16}
buffer_store_dwordx2 {vr(CSA+2,2)}, v{CSA}, s[{sWS}:{sWS+3}], s{sAx} offen sc0 sc1""")
        mf = lambda js: [a(f"v_mfma_f32_32x32x16_bf16 {vr(CSA,16)}, {vr(ONE,4)}, {vr(SR+4*j,4)}, {'0' if j == 0 else vr(CSA,16)}") for j in js]
        def either(f1, f2):
            def body():
                l, le = a.label("e2"), a.label("ee")
                a(f"s_cmp_eq_u32 s{sTy}, 2\ns_cbranch_scc1 {l}")
                f1()
                a(f"s_branch {le}\n{l}:")
                f2()
                a(f"{le}:")
            only(1, body)
        def loads16(sg):
            a(f"""s_add_u32 s{sT+1}, s{sSo}, s{sBp}
buffer_load_dwordx4 {vr(SR+8*sg,4)}, v{vSO}, s[{sSS}:{sSS+3}], s{sSo} offen
buffer_load_dwordx4 {vr(SR+8*sg+4,4)}, v{vSO}, s[{sSS}:{sSS+3}], s{sT+1} offen
s_add_u32 s{sSo}, s{sSo}, s{sA}""")
        def wr16():
            for sg in range(2):
                for ab in range(2):
                    for p in range(2):
                        a(f"ds_write_b64 v{vSC}, {vr(SR+8*sg+4*p+2*ab,2)} offset:{512*(4*sg+2*ab+p)}")
        k = t - S_LD
        if k in (0, 1): either(lambda: loads16(k), lambda: loads([2*k, 2*k+1]))
        if k in (2, 3, 4): only(2, lambda: loads([2*k, 2*k+1]))
        k = t - S_WR
        if k == 0: either(lambda: (a("s_waitcnt vmcnt(0)"), wr16()), lambda: (a("s_waitcnt vmcnt(0)"), wr(range(8))))
        if k == 1: two(lambda: rd(range(8)), lambda: wr(range(8, 14)))
        if k == 2: two(lambda: st(range(4)), lambda: (wr(range(14, 20)), rd(range(8, 14))))
        if k == 3: only(2, lambda: (rd(range(14, 20)), st(range(4, 7)), mf(range(0, 3))))
        if k == 4: only(2, lambda: (st(range(7, 10)), mf(range(3, 6))))
        if k == 5: only(2, lambda: mf(range(6, 10)))
        if k == 6: only(2, aux)
        if t == S_FLAG:
            self.ool(f"s_or_b32 s{sT}, s{sWAVE}, s{sLAST}\ns_cbranch_scc0", lambda: a(f"""s_lshl_b32 s{sT}, s2, 2
s_add_u32 s{sT}, s{sT}, {WFL}
s_mov_b64 exec, 1
buffer_store_dword v{vMK}, v{vL16}, s[{sWS}:{sWS+3}], s{sT} offen sc0 sc1
s_mov_b64 exec, -1"""))
        assert WFL == 0
        chk = f"""v_and_b32 v{vPL}, v{vPL}, v{vPL+1}
v_and_b32 v{vPL+2}, v{vPL+2}, v{vPL+3}
v_and_b32 v{vPL}, v{vPL}, v{vPL+2}
v_cmp_eq_u32 vcc, 0, v{vPL}"""
        ld = f"buffer_load_dwordx4 {vr(vPL,4)}, v{vL16}, s[{sWS}:{sWS+3}], 0 offen sc1"
        ldq = f"buffer_load_dword v{vPL+2}, v{vXC}, s[{sWS}:{sWS+3}], s{sT} offen sc1"
        adq = f"s_lshl_b32 s{sT}, s{sCB2}, 11\ns_add_u32 s{sT}, s{sT}, {QF}"
        if t == WQ_POLL:
            a(adq + "\n" + ldq); self.avm.issue("wq")
        if t == WQ_POLL + 2:
            n = self.avm.need("wq")
            def retryq():
                l, lp = a.label("qd"), a.label("qq")
                a(f"""{adq}
s_mov_b32 s{sT+1}, 0x100000
{lp}:
{ldq}
s_sub_u32 s{sT+1}, s{sT+1}, 1
s_cbranch_scc1 {l}
s_waitcnt vmcnt(0)
v_cmp_eq_u32 vcc, 0, v{vPL+2}
s_cbranch_vccnz {lp}
{l}:""")
            self.ool((f"s_waitcnt vmcnt({n})\n" if n is not None else "") + f"v_cmp_eq_u32 vcc, 0, v{vPL+2}\ns_cbranch_vccnz", retryq)
        if t == S_POLL:
            a(ld); self.avm.issue("pl")
        if t == S_POLL + 2:
            n = self.avm.need("pl")
            def retry():
                l, lp = a.label("pd"), a.label("pp")
                a(f"""s_mov_b32 s{sT+1}, 0x100000
{lp}:
{ld}
s_sub_u32 s{sT+1}, s{sT+1}, 1
s_cbranch_scc1 {l}
s_waitcnt vmcnt(0)
{chk}
s_cbranch_vccnz {lp}
{l}:""")
            self.ool(f"s_waitcnt vmcnt({n})\n{chk}\ns_cbranch_vccnz", retry)

    def strip_setup(self):
        a = self.a
        b4, r, sw, i, t0, t1 = 192, 193, 194, 195, 196, 197
        U = [90, 91, 93, 94]
        a(f"""s_load_dwordx2 s[52:53], s[0:1], 16
s_load_dwordx2 s[54:55], s[0:1], 48
s_load_dwordx4 s[56:59], s[0:1], 32
s_mov_b32 s{sTy}, 0
v_bfe_u32 v{b4}, v{vLANE}, 4, 1
v_bfe_u32 v{r}, v{vLANE}, 2, 2
v_and_b32 v{sw}, 1, v{vLANE}
v_lshlrev_b32 v{sw}, 1, v{sw}
v_bfe_u32 v{i}, v{vLANE}, 1, 1
v_or_b32 v{sw}, v{sw}, v{i}
v_and_b32 v{i}, 31, v{vLANE}
s_lshl_b32 s{sT}, s{sWAVE}, 12
s_add_u32 s{sT}, s{sT}, {7168 - 4096}
s_cmp_eq_u32 s{sWAVE}, 0
s_cselect_b32 s{sT}, 0, s{sT}
v_lshlrev_b32 v{vSC}, 3, v{vLANE}
v_add_u32 v{vSC}, s{sT}, v{vSC}
v_mov_b32 v{ONE}, 0x3f803f80
v_mov_b32 v{ONE+1}, 0x3f803f80
v_mov_b32 v{ONE+2}, 0x3f803f80
v_mov_b32 v{ONE+3}, 0x3f803f80
s_waitcnt lgkmcnt(0)
s_mov_b32 s{sSS}, s56
s_and_b32 s{sSS+1}, s57, 0xffff
s_mov_b32 s{sSS+2}, 0
s_mov_b32 s{sSS+3}, 0x20000
s_mov_b32 s{sBS}, s58
s_and_b32 s{sBS+1}, s59, 0xffff
s_mov_b32 s{sBS+2}, {F*2}
s_mov_b32 s{sBS+3}, 0x20000
s_cmp_lg_u32 s{sWAVE}, 0
s_cbranch_scc1 L_st_n80a
s_cmp_ge_u32 s2, 240
s_cbranch_scc1 L_st_done
s_cmp_ge_u32 s2, 192
s_cbranch_scc1 L_st_n80b
s_mov_b32 s{sTy}, 2
s_mov_b32 s{sSS}, s56
s_and_b32 s{sSS+1}, s57, 0xffff
s_mov_b32 s{sSS+2}, {D*F*2}
s_bfe_u32 s{U[0]}, s2, 0x10002
s_mul_i32 s{U[0]}, s{U[0]}, 24
s_add_u32 s{U[0]}, s{U[0]}, s{sJ}              ; strip
s_and_b32 s{sQd}, s2, 3
s_mul_i32 s{U[1]}, s{U[0]}, 0x5556
s_lshr_b32 s{U[1]}, s{U[1]}, 16            ; cb
s_mul_i32 s{U[2]}, s{U[1]}, 3
s_sub_u32 s{U[2]}, s{U[0]}, s{U[2]}           ; tile
s_lshl_b32 s{U[0]}, s{U[0]}, 5                 ; col0
v_lshlrev_b32 v{t0}, 4, v{b4}
v_lshl_add_u32 v{t0}, v{sw}, 2, v{t0}
v_add_u32 v{t0}, s{U[0]}, v{t0}
v_lshl_add_u32 v{t1}, v{vH}, 3, v{r}
v_mul_u32_u24 v{vSO}, 3072, v{t1}
v_lshl_add_u32 v{vSO}, v{t0}, 1, v{vSO}
s_mov_b32 s{sA}, {16*3072}
s_mov_b32 s{sBp}, {4*3072}
s_mul_i32 s{sSo}, s{sQd}, {160*3072}
v_and_b32 v{t0}, 19, v{i}
v_bfe_u32 v{t1}, v{i}, 2, 1
v_lshl_or_b32 v{t0}, v{t1}, 3, v{t0}
v_bfe_u32 v{t1}, v{i}, 3, 1
v_lshl_or_b32 v{t0}, v{t1}, 2, v{t0}
v_add_u32 v{t0}, s{U[0]}, v{t0}
v_lshlrev_b32 v{vBI}, 1, v{t0}
buffer_load_ushort v{vBI}, v{vBI}, s[{sBS}:{sBS+3}], 0 offen
v_mov_b32 v{vSD}, v{vL16}
s_mul_i32 s{sDs}, s{U[1]}, 122880
s_mul_i32 s{sT}, s{sQd}, 30720
s_add_u32 s{sDs}, s{sDs}, s{sT}
s_lshl_b32 s{sT}, s{U[2]}, 10
s_add_u32 s{sDs}, s{sDs}, s{sT}
s_add_u32 s{sDs}, s{sDs}, {W1_F}
s_mov_b32 s{sSt}, 3072
s_lshl_b32 s{sAx}, s{U[1]}, 12
s_add_u32 s{sAx}, s{sAx}, s{sT}
s_lshr_b32 s{sT}, s{sQd}, 1
s_lshl_b32 s{sT}, s{sT}, 9
s_add_u32 s{sAx}, s{sAx}, s{sT}
s_and_b32 s{sT}, s{sQd}, 1
s_lshl_b32 s{sT}, s{sT}, 3
s_add_u32 s{sAx}, s{sAx}, s{sT}
s_add_u32 s{sAx}, s{sAx}, {AUX1}
s_mov_b32 s{sSt0}, s{sSt}
s_branch L_st_done
L_st_n80b:
s_sub_u32 s{sT}, s2, 192
s_mul_i32 s{U[0]}, s{sT}, 0x5556
s_lshr_b32 s{U[0]}, s{U[0]}, 16
s_mul_i32 s{U[1]}, s{U[0]}, 3
s_sub_u32 s{U[1]}, s{sT}, s{U[1]}          ; tile
s_and_b32 s{U[2]}, s{U[0]}, 7                ; cb
s_lshr_b32 s{U[3]}, s{U[0]}, 3
s_add_u32 s{U[3]}, s{U[3]}, 32
s_branch L_st_n80
L_st_n80a:
s_and_b32 s{U[2]}, s{sJ}, 7
s_and_b32 s{U[3]}, s{sJ}, 24
s_add_u32 s{U[3]}, s{U[3]}, s{sG}
s_sub_u32 s{U[1]}, s{sWAVE}, 1
L_st_n80:
s_mov_b32 s{sTy}, 1
s_mov_b32 s{sBp}, {4*1280}
s_cmp_lt_u32 s{U[3]}, 10
s_cbranch_scc1 L_st_wo
s_sub_u32 s{U[3]}, s{U[3]}, 10
s_mov_b32 s{sSS}, s54
s_and_b32 s{sSS+1}, s55, 0xffff
s_mov_b32 s{sSS+2}, {F*D*2}
s_mov_b32 s{sA}, {32*1280}
s_mul_i32 s{sSo}, s{U[3]}, {64*1280}
s_mul_i32 s{sDs}, s{U[2]}, 245760
s_add_u32 s{sDs}, s{sDs}, {W2_F}
s_mov_b32 s{sQd}, 16
s_mov_b32 s{sAx}, 8
s_branch L_st_go
L_st_wo:
s_mov_b32 s{sSS}, s52
s_and_b32 s{sSS+1}, s53, 0xffff
s_mov_b32 s{sSS+2}, {D*D*2}
s_mul_i32 s{sDs}, s{U[2]}, 102400
s_add_u32 s{sDs}, s{sDs}, {WO_F}
s_mov_b32 s{sA}, {40*1280}
s_mul_i32 s{sSo}, s{U[3]}, {80*1280}
s_mov_b32 s{sQd}, 20
s_mov_b32 s{sAx}, 8
s_cmp_lt_u32 s{U[3]}, 8
s_cbranch_scc1 L_st_go
s_mov_b32 s{sA}, {160*1280}
s_mov_b32 s{sBp}, {20*1280}
s_sub_u32 s{sSo}, s{U[3]}, 8
s_mul_i32 s{sSo}, s{sSo}, {320*1280}
s_add_u32 s{sSo}, s{sSo}, {16*1280}
s_mov_b32 s{sQd}, 80
s_mov_b32 s{sAx}, 40
L_st_go:
v_mul_lo_u32 v{vSO}, s{sQd}, v{vH}
v_mul_lo_u32 v{t0}, s{sAx}, v{b4}
v_add3_u32 v{vSO}, v{vSO}, v{t0}, v{r}
v_mul_u32_u24 v{vSO}, 1280, v{vSO}
s_mul_i32 s{sT}, s{U[2]}, 160
s_lshl_b32 s{sT+1}, s{U[1]}, 6
s_add_u32 s{sT}, s{sT}, s{sT+1}
s_add_u32 s{sSo}, s{sSo}, s{sT}
s_mul_i32 s{U[3]}, s{U[3]}, 10240
s_add_u32 s{sDs}, s{sDs}, s{U[3]}
s_lshl_b32 s{sT}, s{U[1]}, 11
s_add_u32 s{sDs}, s{sDs}, s{sT}
s_cmp_eq_u32 s{U[1]}, 2
s_cselect_b32 s{sT+1}, 8, 16
s_mov_b32 s{sSt0}, {OOB}
s_cselect_b32 s{sSt0}, s{sSt0}, 1024
s_sub_u32 s{sSt}, 5120, s{sSt0}
v_and_b32 v{t0}, 3, v{vLANE}
v_mul_lo_u32 v{t0}, s{sT+1}, v{t0}
v_add_u32 v{vSO}, v{vSO}, v{t0}
v_mov_b32 v{vSD}, v{vL16}
L_st_done:
""")
        a("s_load_dwordx2 s[52:53], s[0:1], 56\ns_waitcnt lgkmcnt(0)")
        srd(a, sB2, 52, D*2)

    def split3(self, m):
        a = self.a
        a(f"""
v_sub_f32 v{vT}, 0, v{m}
v_and_b32 v{vT+1}, 0xffff0000, v{vT}
v_sub_f32 v{vT}, v{vT}, v{vT+1}
v_and_b32 v{vT+2}, 0xffff0000, v{vT}
v_sub_f32 v{vT}, v{vT}, v{vT+2}
v_lshrrev_b32 v{vT+1}, 16, v{vT+1}
v_cmp_gt_u32 vcc, 32, v{vLANE}
v_or_b32 v{vT+1}, v{vT+1}, v{vT+2}
v_lshrrev_b32 v{vT}, 16, v{vT}
v_cndmask_b32 v{Q2}, v{vT+1}, v{Q2}, vcc
v_cndmask_b32 v{Q2+1}, v{vT}, v{Q2+1}, vcc
""")

    def rowmax16(self, X, dst, init=None):
        a = self.a
        if init is None:
            a(f"v_max3_f32 v{dst}, v{X}, v{X+1}, v{X+2}")
            a(f"v_max_f32 v{dst}, v{dst}, v{X+3}")
            k0 = 4
        else:
            k0 = 0
        for k in range(k0, 16, 2):
            a(f"v_max3_f32 v{dst}, v{dst}, v{X+k}, v{X+k+1}")
    def crosshalf_max(self, m):
        a = self.a
        a(f"""v_mov_b32 v{vT}, v{m}
s_nop 1
v_permlane32_swap_b32 v{m}, v{vT}
s_nop 1
v_max_f32 v{m}, v{m}, v{vT}""")

    def tpos(self, dst, tok, tmp):
        self.a(f"""v_and_b32 v{dst}, 3, v{tok}
v_bfe_u32 v{tmp}, v{tok}, 3, 1
v_lshl_or_b32 v{dst}, v{tmp}, 2, v{dst}
v_bfe_u32 v{tmp}, v{tok}, 2, 1
v_lshl_or_b32 v{dst}, v{tmp}, 3, v{dst}
v_and_b32 v{tmp}, 16, v{tok}
v_or_b32 v{dst}, v{dst}, v{tmp}
v_xor_b32 v{dst}, {8 + 256}, v{dst}
v_lshlrev_b32 v{dst}, 3, v{dst}""")

    def attention(self):
        a = self.a
        a.c("================ attention")
        l1, l2, l3 = a.label("p1"), a.label("p2"), a.label("p3")
        a(f"""
v_and_b32 v{vT}, 19, v{vLANE}
v_bfe_u32 v{vT+1}, v{vLANE}, 2, 1
v_lshl_or_b32 v{vT}, v{vT+1}, 3, v{vT}
v_bfe_u32 v{vT+1}, v{vLANE}, 3, 1
v_lshl_or_b32 v{vT}, v{vT+1}, 2, v{vT}        ; pi
v_lshlrev_b32 v{vT+1}, 3, v{vH}
v_xor_b32 v{vT+1}, v{vT+1}, v{vT}
v_lshlrev_b32 v{vT+1}, 4, v{vT+1}
v_lshl_add_u32 v{vBK1}, v{vH}, 9, v{vT+1}      ; K1 base
""")
        self.tpos(vBK2, vT, vT+1)
        a(f"""v_lshlrev_b32 v{vT}, 30, v{vH}
v_add_u32 v31, v{vT}, v{vBK2}
v_add_u32 v30, v{vT}, v{vTL}""")
        a(f"""
s_mov_b32 s{sTL}, s{sWAVE}
s_mul_i32 s{sT}, s{sWAVE}, 2560
s_add_u32 s{sT}, s{sT}, {MISC}
v_lshlrev_b32 v{vT}, 3, v{vLANE}
v_add_u32 v{vT}, s{sT}, v{vT}
v_and_b32 v{vT+1}, 7, v{vLANE}
v_cmp_eq_u32 vcc, 2, v{vT+1}
v_mov_b32 v22, 0x3f803f80
v_mov_b32 v23, 0x3f80
v_cndmask_b32 v{vT+3}, 0, v22, vcc
v_cmp_eq_u32 vcc, 0, v{vT+1}
v_lshrrev_b32 v{vXC}, 2, v{vLANE}
v_lshlrev_b32 v{vXC}, 5, v{vXC}
v_and_or_b32 v{vXC}, v{vLANE}, 3, v{vXC}
v_lshlrev_b32 v{vXC}, 2, v{vXC}
v_cndmask_b32 v{vT+2}, v{vT+3}, v23, vcc
ds_write_b64 v{vT}, {vr(vT+2,2)}
v_mov_b32 v{vT+1}, {MISC + 16}
v_cmp_gt_u32 vcc, 32, v{vLANE}
v_sub_u32 v{vMK}, 1, v{vH}
s_nop 0
v_cndmask_b32 v{vBK2}, v{vT+1}, v{vBK2}, vcc     ; K2 base
""")
        def rest():
            a(f"""
v_bfe_u32 v{vT}, v{vLANE}, 2, 2               ; r
v_and_b32 v{vT+1}, 1, v{vLANE}                 ; c&1
v_xor_b32 v{vT+2}, v{vT+1}, v{vH}
v_lshl_add_u32 v{vT+2}, v{vT+2}, 3, v{vT}
v_lshlrev_b32 v{vT+2}, 4, v{vT+2}
v_lshl_add_u32 v{vT+2}, v{vT+1}, 9, v{vT+2}
v_bfe_u32 v{vT+1}, v{vLANE}, 1, 1
v_lshl_add_u32 v{vT+2}, v{vT+1}, 3, v{vT+2}    ; main (m=0,p=0) - 1024
v_lshlrev_b32 v{vT}, 3, v{vT}
v_lshl_add_u32 v{vT}, v{vH}, 5, v{vT}
v_xor_b32 v{vT+1}, 1, v{vT+1}
v_lshlrev_b32 v{vT+1}, 3, v{vT+1}
v_and_b32 v{vT+3}, 16, v{vLANE}
v_cmp_eq_u32 s[{sT}:{sT+1}], 0, v{vT+3}
v_and_b32 v{vT+3}, 19, v{vLANE}
v_cmp_lt_u32 vcc, 16, v{vT+3}
v_mov_b32 v{vT+3}, 1
s_nop 0
v_cndmask_b32 v{vMV}, v{vT+3}, 0, vcc
""")
            for m in range(2):
                for p in range(2):
                    d = vBV + 2*m + p
                    a(f"""v_add_u32 v22, {1024 + 256*m + 64*p}, v{vT+2}
v_add_u32 v23, {2048 + 256 + 128*m + 64*(1-p)}, v{vT}
v_add_u32 v{vT+3}, {MISC + 64*(1-p) + 128*(1-m)}, v{vT+1}
v_cndmask_b32 v{d}, v23, v22, s[{sT}:{sT+1}]
v_cndmask_b32 v{d}, v{d}, v{vT+3}, vcc
v_mov_b32 v{vVA+2*m+p}, v{d}""")
            a(f"v_mov_b32 v{vK1}, v{vBK1}\nv_mov_b32 v{vK2}, v{vBK2}")
            for k in range(16): a(f"v_mov_b32 v{O+k}, 0")
            for k in range(4): a(f"v_mov_b32 v{V1[1]+k}, 0")
            for k in range(4): a(f"v_mov_b32 v{P+4+k}, 0")
            a(f"v_mov_b32 v{SS[1]+14}, 0\nv_mov_b32 v{SS[1]+15}, 0")
            a(f"""
s_and_b32 s{sT+1}, s{sWAVE}, 3
s_lshl2_add_u32 s{sT}, s{sJ}, s{sT+1}          ; q
s_mul_i32 s{sT}, s{sT}, 6528
s_add_u32 s{sAR}, s{sAR}, s{sT}
s_lshl1_add_u32 s{sT}, s{sRB}, s{sT2}
s_mul_i32 s{sT}, s{sT}, 40960
s_mul_i32 s{sT+1}, s{sCB}, 5120
s_add_u32 s{sRES}, s{sRES}, s{sT}
s_add_u32 s{sRES}, s{sRES}, s{sT+1}
v_add_u32 v{vL16B}, 4096, v{vL16}
v_and_b32 v{vXC+1}, 31, v{vLANE}
v_lshlrev_b32 v{vXC+1}, 2, v{vXC+1}
s_lshr_b32 s{sT+6}, s{sJ}, 1
s_add_u32 s{sT+6}, s{sT+6}, 32
s_mul_i32 s{sT+6}, s{sT+6}, 163840
s_lshl3_add_u32 s{sT+7}, s{sG}, s{sWAVE}
s_mul_i32 s{sT+7}, s{sT+7}, 2560
s_add_u32 s{sT+6}, s{sT+6}, s{sT+7}
s_add_u32 s{sT+6}, s{sT+6}, s{sQIN}
s_and_b32 s{sT+7}, s{sJ}, 1
s_lshl_b32 s{sT+8}, s{sT+7}, 10
s_add_u32 s{sT+8}, s{sT+8}, s{sT+6}          ; Q main
s_lshl_b32 s{sT+7}, s{sT+7}, 8
s_add_u32 s{sT+7}, s{sT+7}, s{sT+6}          ; Q tail
s_mul_i32 s{sT+9}, s{sJ}, 163840
s_add_u32 s{sT+9}, s{sT+9}, s{sQIN}
s_mul_i32 s{sT+6}, s{sG}, {CH}
s_add_u32 s{sT+9}, s{sT+9}, s{sT+6}          ; first K/V chunk (own row block)
""")
        a(f"""s_mov_b32 s{sTy}, 0
s_cmp_ge_u32 s{sWAVE}, 4
s_cbranch_scc1 {l1}
v_mov_b32 v{vT}, 0
s_waitcnt vmcnt(0)
s_mov_b64 exec, 1
s_cmp_eq_u32 s{sLAST}, 0
s_cbranch_scc1 {l1}g
s_cmp_lg_u32 s{sSLOW}, 0
s_cbranch_scc1 {l1}s
buffer_store_dword v{vMK}, v{vT}, s[{sWS}:{sWS+3}], s{sRDY} offen
s_branch {l1}g
{l1}s:
buffer_store_dword v{vMK}, v{vT}, s[{sWS}:{sWS+3}], s{sRDY} offen sc0 sc1
{l1}g:
buffer_store_dword v{vMK}, v{vT}, s[{sWS}:{sWS+3}], s{sPUB} offen sc0 sc1
s_mov_b64 exec, -1
s_barrier
""")
        self.stamp("pub")
        a(f"s_cmp_lg_u32 s{sLAST}, 0\ns_cbranch_scc1 L_st_skip")
        self.strip_setup()
        a("L_st_skip:")
        rest()
        lp = a.label("qp")
        a(f"""s_branch {l2}
{l1}:""")
        rest()
        a(f"""s_cmp_lg_u32 s{sWAVE}, 4
s_cbranch_scc1 {l1}o
v_lshrrev_b32 v{vPL+1}, 3, v{vLANE}
v_mov_b32 v{vPL+2}, s{sPUB}
v_mov_b32 v{vPL+3}, s{sQFK}
v_cmp_eq_u32 vcc, 1, v{vPL+1}
v_and_b32 v{vPL}, 7, v{vLANE}
s_nop 0
v_cndmask_b32 v{vPL+2}, v{vPL+2}, v{vPL+3}, vcc
v_mov_b32 v{vPL+3}, s{sQFV}
v_cmp_eq_u32 vcc, 2, v{vPL+1}
s_lshl_b32 s{sT+4}, s{sG}, 8
s_nop 0
v_cndmask_b32 v{vPL+2}, v{vPL+2}, v{vPL+3}, vcc     ; row base
s_cmp_lg_u32 s{sLAST}, 0
s_cbranch_scc1 {l1}l
v_and_b32 v{vPL+1}, 0x8c, v{vXC}
v_add_u32 v{vPL+2}, v{vPL+2}, v{vPL+1}
s_branch {l1}p
{l1}l:
v_bfe_u32 v{vPL+2}, v{vPL+2}, 11, 4
v_lshlrev_b32 v{vPL+2}, 2, v{vPL+2}
v_lshl_add_u32 v{vPL+2}, v{vPL}, 7, v{vPL+2}
s_add_u32 s{sT+4}, s{sFLG}, 3072
{l1}p:
s_mov_b32 s{sT+5}, 0x100000
s_barrier
{lp}:
buffer_load_dword v{vPL}, v{vPL+2}, s[{sWS}:{sWS+3}], s{sT+4} offen sc1
s_sub_u32 s{sT+5}, s{sT+5}, 1
s_cbranch_scc1 {l2}
s_waitcnt vmcnt(0)
v_cmp_eq_u32 vcc, 0, v{vPL}
s_cbranch_vccnz {lp}
s_branch {l2}
{l1}o:
s_barrier
{l2}:
s_load_dwordx2 s[{sXP}:{sXP+1}], s[0:1], 0
s_barrier
""")
        self.stamp("rdy")
        a(f"s_mov_b32 s{sRDY}, 0")
        a(f"""buffer_load_dwordx4 {vr(Q1,4)}, v{vSW}, s[{sWS}:{sWS+3}], s{sT+8} offen sc1
buffer_load_dwordx4 {vr(K1,4)}, v{vBK1}, s[{sWS}:{sWS+3}], s{sT+9} offen
buffer_load_dwordx2 {vr(Q2,2)}, v30, s[{sWS}:{sWS+3}], s{sT+7} offen sc1
buffer_load_dwordx2 {vr(K2,2)}, v31, s[{sWS}:{sWS+3}], s{sT+9} offen
""")
        lw = a.label("w")
        def dma0():
            a(f"s_mov_b32 m0, s{sLDW}\ns_add_u32 s{sT}, s{sT+9}, s{sLDW}")
            self.dma5(sT)
        a(f"""v_cmp_gt_u32 vcc, 32, v{vLANE}
v_mov_b32 v22, 0x3f803f80
s_and_b32 s{sT+6}, s{sWAVE}, 6
s_cmp_lg_u32 s{sT+6}, 4
s_cbranch_scc1 {l3}""")
        dma0()
        a(f"""s_waitcnt vmcnt(5)
s_branch {lw}
{l3}:
s_waitcnt vmcnt(0)
s_cmp_lt_u32 s{sWAVE}, 6
s_cbranch_scc1 {lw}""")
        dma0()
        a(f"""{lw}:
v_cndmask_b32 v{K2}, v22, v{K2}, vcc
v_cndmask_b32 v{K2+1}, v22, v{K2+1}, vcc
v_mfma_f32_32x32x16_bf16 {vr(SS[0],16)}, {vr(K1,4)}, {vr(Q1,4)}, 0
s_nop 0
v_mfma_f32_32x32x8_bf16 {vr(SS[0],16)}, {vr(K2,2)}, {vr(Q2,2)}, {vr(SS[0],16)}
s_nop 12
""")
        self.rowmax16(SS[0], 22)
        self.crosshalf_max(22)
        self.split3(22)
        a(f"""
s_nop 1
v_mfma_f32_32x32x16_bf16 {vr(SS[0],16)}, {vr(K1,4)}, {vr(Q1,4)}, 0
v_mfma_f32_32x32x8_bf16 {vr(SS[0],16)}, {vr(K2,2)}, {vr(Q2,2)}, {vr(SS[0],16)}
""")
        self.stamp("attP")
        self.g16_patterns(vRS, vRSB)
        a(f"""v_add_u32 v{vRSB}, 4096, v{vRSB}
s_cmp_lg_u32 s{sROLE}, 0
s_cselect_b64 vcc, -1, 0
s_nop 1
v_cndmask_b32 v{vRS}, v{vRS}, v{vL16}, vcc
v_cndmask_b32 v{vRSB}, v{vRSB}, v{vL16B}, vcc""")
        self.avm = VM()
        if HALF0:
            a(f"s_and_b32 s{sT}, s{sWAVE}, 6\ns_cmp_lg_u32 s{sT}, 4\ns_cbranch_scc1 {lw}y\ns_waitcnt vmcnt(0)\n{lw}y:")
            for q in range(5): self.avm.issue(("c", 0))
        else:
            a(f"s_cmp_lt_u32 s{sWAVE}, 4\ns_cbranch_scc1 {lw}y\ns_waitcnt vmcnt(0)\n{lw}y:")
        a("s_waitcnt lgkmcnt(0)\ns_barrier")
        self.stamp(0)
        a(f"""
ds_read_b64_tr_b16 {vr(V1[0],2)}, v{vVA+2}
ds_read_b64_tr_b16 {vr(V1[0]+2,2)}, v{vVA+3}
ds_read_b128 {vr(K1,4)}, v{vK1} offset:2560
ds_read_b64 {vr(K2,2)}, v{vK2} offset:2560
ds_read_b64_tr_b16 {vr(V0,2)}, v{vVA}
ds_read_b64_tr_b16 {vr(V0+2,2)}, v{vVA+1}
s_setprio 3
s_nop 3
""")
        self.kv_flags_load(); self.avm.issue("kf"); self.avm.issue("kf")
        self.stamp("attL")
        for t in range(64): self.att_tile(t)
        a("s_nop 0")
        self.stamp("attX")
        a(f"""v_cvt_pk_bf16_f32 v{P+7}, v{SS[1]+14}, v{SS[1]+15}
s_setprio 0
s_nop 0
v_mfma_f32_32x32x16_bf16 {vr(O,16)}, {vr(V1[1],4)}, {vr(P+4,4)}, {vr(O,16)}
""")
        self.tt_off(sT+4, sOF, OSTR)
        a(f"""
s_lshl_b32 s{sT+5}, s{sJ}, 10
s_add_u32 s{sT+5}, s{sT+5}, s{sT+4}
s_lshr_b32 s{sT+6}, s{sJ}, 1
s_lshl_b32 s{sT+6}, s{sT+6}, 9               ; (head/4)*1024 + ((head%4)/2)*512
s_add_u32 s{sT+4}, s{sT+4}, s{sT+6}
s_and_b32 s{sT+6}, s{sJ}, 1
s_lshl_b32 s{sT+6}, s{sT+6}, 3
s_add_u32 s{sT+4}, s{sT+4}, s{sT+6}
s_add_u32 s{sT+4}, s{sT+4}, 32768
v_lshlrev_b32 v23, 30, v{vH}
v_add_u32 v23, v23, v{vL16}
s_mov_b32 s{sT+6}, {f2u(2.0**64):#x}
s_nop 5
v_cmp_lt_f32 vcc, v{O+12}, s{sT+6}
s_cmp_eq_u64 vcc, -1
{'s_nop 0' if 'nofb' in XP else 's_cbranch_scc0 L_att_fallback'}
L_att_fin:
v_rcp_f32 v22, v{O+12}
s_nop 0
""")
        for k in range(6):
            a(f"v_pk_mul_f32 {vr(O+2*k,2)}, {vr(O+2*k,2)}, v[22:23] op_sel_hi:[1,0]")
        for k in range(6):
            a(f"v_cvt_pk_bf16_f32 v{O+k}, v{O+2*k}, v{O+2*k+1}")
        lx, lxd = a.label("xpoll"), a.label("xdone")
        a(f"""
buffer_store_dwordx4 {vr(O,4)}, v{vL16}, s[{sWS}:{sWS+3}], s{sT+5} offen
buffer_store_dwordx2 {vr(O+4,2)}, v23, s[{sWS}:{sWS+3}], s{sT+4} offen
s_waitcnt vmcnt(2)
v_readfirstlane_b32 s{sT}, v{vXC+1}
s_nop 1
v_cmp_ne_u32 vcc, s{sT}, v{vXC+1}
s_cmp_lg_u64 vcc, 0
s_cselect_b32 s{sSLOW}, 1, 0
s_waitcnt lgkmcnt(0)
""")
        self.publish(0, sJ)
        self.stamp(1)

    def att_fallback(self):
        a = self.a
        X = SS[0]
        a(f"""
L_att_fallback:
s_waitcnt vmcnt(0) lgkmcnt(0)
s_mul_i32 s{sT+7}, s{sJ}, 163840
s_add_u32 s{sT+7}, s{sT+7}, s{sQIN}
v_cmp_gt_u32 vcc, 32, v{vLANE}
v_mov_b32 v{vT}, 0
s_nop 0
v_cndmask_b32 v{Q2}, v{vT}, v{Q2}, vcc
v_cndmask_b32 v{Q2+1}, v{vT}, v{Q2+1}, vcc
v_lshlrev_b32 v{vK2}, 30, v{vH}
v_add_u32 v{vK2}, v{vK2}, v{vBK2}              ; lower: tail offset in tile, upper: out of range
v_mov_b32 v22, 0xff800000
s_mov_b32 s{sT+8}, s{sT+7}
s_mov_b32 s{sT+9}, 64
L_fb_max:
buffer_load_dwordx4 {vr(K1,4)}, v{vBK1}, s[{sWS}:{sWS+3}], s{sT+8} offen
buffer_load_dwordx2 {vr(K2,2)}, v{vK2}, s[{sWS}:{sWS+3}], s{sT+8} offen
s_waitcnt vmcnt(0)
v_mfma_f32_32x32x16_bf16 {vr(X,16)}, {vr(K1,4)}, {vr(Q1,4)}, 0
v_mfma_f32_32x32x8_bf16 {vr(X,16)}, {vr(K2,2)}, {vr(Q2,2)}, {vr(X,16)}
s_nop 15
""")
        self.rowmax16(X, 22, init=True)
        a(f"""
s_add_u32 s{sT+8}, s{sT+8}, 2560
s_sub_u32 s{sT+9}, s{sT+9}, 1
s_cmp_lg_u32 s{sT+9}, 0
s_cbranch_scc1 L_fb_max
""")
        self.crosshalf_max(22)
        self.split3(22)
        a(f"""
s_mul_i32 s{sT+8}, s{sWAVE}, 2560
s_add_u32 s{sT+8}, s{sT+8}, {MISC + 512 - 1024}
v_mad_u32_u24 v{vVA}, s{sT+8}, v{vMV}, v{vBV}
v_mad_u32_u24 v{vVA+1}, s{sT+8}, v{vMV}, v{vBV+1}
v_mad_u32_u24 v{vVA+2}, s{sT+8}, v{vMV}, v{vBV+2}
v_mad_u32_u24 v{vVA+3}, s{sT+8}, v{vMV}, v{vBV+3}
v_add_u32 v{vK1}, s{sT+8}, v{vL16}
v_lshlrev_b32 v{SS[1]}, 3, v{vLANE}
v_add_u32 v{SS[1]+1}, s{sT+8}, v{SS[1]}
s_mov_b32 s{sT+8}, s{sT+7}
s_mov_b32 s{sT+9}, 64
""")
        for k in range(16): a(f"v_mov_b32 v{O+k}, 0")
        a(f"""
L_fb_pv:
buffer_load_dwordx4 {vr(K1,4)}, v{vBK1}, s[{sWS}:{sWS+3}], s{sT+8} offen
buffer_load_dwordx2 {vr(K2,2)}, v{vK2}, s[{sWS}:{sWS+3}], s{sT+8} offen
buffer_load_dwordx4 {vr(V0,4)}, v{vL16}, s[{sWS}:{sWS+3}], s{sT+8} offen offset:1024
buffer_load_dwordx2 {vr(V1[0],2)}, v{SS[1]}, s[{sWS}:{sWS+3}], s{sT+8} offen offset:2048
v_cmp_gt_u32 vcc, 32, v{vLANE}
v_mov_b32 v{vT}, 0x3f803f80
s_waitcnt vmcnt(0)
v_cndmask_b32 v{K2}, v{vT}, v{K2}, vcc
v_cndmask_b32 v{K2+1}, v{vT}, v{K2+1}, vcc
ds_write_b128 v{vK1}, {vr(V0,4)} offset:1024
ds_write_b64 v{SS[1]+1}, {vr(V1[0],2)} offset:2048
v_mfma_f32_32x32x16_bf16 {vr(X,16)}, {vr(K1,4)}, {vr(Q1,4)}, 0
v_mfma_f32_32x32x8_bf16 {vr(X,16)}, {vr(K2,2)}, {vr(Q2,2)}, {vr(X,16)}
s_waitcnt lgkmcnt(0)
ds_read_b64_tr_b16 {vr(V0,2)}, v{vVA}
ds_read_b64_tr_b16 {vr(V0+2,2)}, v{vVA+1}
ds_read_b64_tr_b16 {vr(V1[0],2)}, v{vVA+2}
ds_read_b64_tr_b16 {vr(V1[0]+2,2)}, v{vVA+3}
s_nop 12
""")
        for k in range(16): a(f"v_exp_f32 v{X+k}, v{X+k}")
        a("s_nop 0")
        for k in range(8): a(f"v_cvt_pk_bf16_f32 v{P+k}, v{X+2*k}, v{X+2*k+1}")
        a(f"""
s_waitcnt lgkmcnt(0)
s_nop 1
v_mfma_f32_32x32x16_bf16 {vr(O,16)}, {vr(V0,4)}, {vr(P,4)}, {vr(O,16)}
v_mfma_f32_32x32x16_bf16 {vr(O,16)}, {vr(V1[0],4)}, {vr(P+4,4)}, {vr(O,16)}
s_add_u32 s{sT+8}, s{sT+8}, 2560
s_sub_u32 s{sT+9}, s{sT+9}, 1
s_cmp_lg_u32 s{sT+9}, 0
s_cbranch_scc1 L_fb_pv
s_nop 15
s_branch L_att_fin
""")

    def prof_store(self, final=True):
        a = self.a
        if not self.prof: return
        a(f"""
s_waitcnt lgkmcnt(0)
{'s_memrealtime' if self.prof == 2 else 's_memtime'} s[{sPROF+22}:{sPROF+23}]
s_lshl_b32 s{sT}, s{sKID}, 8
s_add_u32 s{sT}, s{sT}, s2
s_lshl_b32 s{sT}, s{sT}, 3
s_add_u32 s{sT}, s{sT}, s{sWAVE}
s_lshl_b32 s{sT}, s{sT}, 6
s_add_u32 s{sT}, s{sT}, {PROF}
v_mov_b32 v{vT}, 0
s_waitcnt lgkmcnt(0)
s_mov_b64 exec, 1""")
        for i in range(12):
            a(f"v_mov_b32 v{vT+1}, s{sPROF+2*i}\nbuffer_store_dword v{vT+1}, v{vT}, s[{sWS}:{sWS+3}], s{sT} offen offset:{4*i}")
        a(f"v_mov_b32 v{vT+1}, s99\nbuffer_store_dword v{vT+1}, v{vT}, s[{sWS}:{sWS+3}], s{sT} offen offset:48")
        a(f"v_mov_b32 v{vT+1}, s{sSLOW}\nbuffer_store_dword v{vT+1}, v{vT}, s[{sWS}:{sWS+3}], s{sT} offen offset:52")
        if final: a("s_waitcnt vmcnt(0)")
        a(f"s_memrealtime s[100:101]\ns_waitcnt lgkmcnt(0)")
        a(f"v_mov_b32 v{vT+1}, s3\nbuffer_store_dword v{vT+1}, v{vT}, s[{sWS}:{sWS+3}], s{sT} offen offset:56")
        a(f"v_mov_b32 v{vT+1}, s100\nbuffer_store_dword v{vT+1}, v{vT}, s[{sWS}:{sWS+3}], s{sT} offen offset:60")
        if not final:
            a("s_mov_b64 exec, -1\ns_mov_b32 s3, s100")
            a(f"s_mov_b32 s99, s{sPROF+22}\ns_add_u32 s{sKID}, s{sKID}, 1")
            for i in range(12): a(f"s_mov_b64 s[{sPROF+2*i}:{sPROF+2*i+1}], 0")


def gen_main(a, prof=False):
    g = Gen(a, prof)
    a("L_layer:")
    g.prof_store(False)
    def params(k, qin, qout, res, stq, actq, of, x1f, hf, st1):
        for r, v in ((sQIN, qin), (sQOUT, qout), (sRES, res), (sFLG, A_FL + k*4096), (sSTQ, stq), (sACTQ, actq), (sOF, of), (sX1F, x1f), (sHF, hf), (sST1, st1)):
            a(f"s_mov_b32 s{r}, {v:#x}")
    a(f"s_cmp_lg_u32 s{sLAST}, 0\ns_cbranch_scc1 L_par2")
    params(0, QKV[0], QKV[1], X1F[0], STAT[2], X2F, OF[0], X1F[0], HF[0], STAT[1])
    a(f"s_branch L_par3\nL_par2:\ns_load_dwordx2 s[{sT}:{sT+1}], s[0:1], 64")
    params(1, QKV[1], 0, X2F, 0, 0, OF[1], X1F[1], HF[1], STAT[3])
    a("s_waitcnt lgkmcnt(0)")
    srd(a, sOUT, sT, S*D*2)
    a(f"""L_par3:
s_and_b32 s{sCB}, s{sJ}, 7
s_lshr_b32 s{sRB}, s{sJ}, 3
s_and_b32 s{sCB2}, s{sJ}, 15
s_lshr_b32 s{sRB2}, s{sJ}, 4
s_and_b32 s{sT2}, s{sWAVE}, 1
s_bfe_u32 s{sKH}, s{sWAVE}, 0x10001
s_mul_i32 s{sAR}, s{sG}, {AST}
s_add_u32 s{sAR}, s{sAR}, {ARENA}
s_add_u32 s{sFLG}, s{sFLG}, s{sAR}
s_add_u32 s{sRES}, s{sRES}, s{sAR}
s_add_u32 s{sSTQ}, s{sSTQ}, s{sAR}
s_add_u32 s{sACTQ}, s{sACTQ}, s{sAR}
s_add_u32 s{sOF}, s{sOF}, s{sAR}
s_add_u32 s{sX1F}, s{sX1F}, s{sAR}
s_add_u32 s{sHF}, s{sHF}, s{sAR}
s_add_u32 s{sST1}, s{sST1}, s{sAR}
s_mul_i32 s{sT+6}, s{sG}, {8*2560}
s_add_u32 s{sQOUT}, s{sQOUT}, s{sT+6}
s_and_b32 s{sLDW}, s{sWAVE}, 3
s_mul_i32 s{sLDW}, s{sLDW}, 5120
s_lshr_b32 s{sROLE}, s{sWAVE}, 2
s_mul_i32 s{sLDR}, s{sWAVE}, 5120
s_mul_i32 s{sWO}, s{sCB}, 102400
s_add_u32 s{sWO}, s{sWO}, {WO_F}
s_add_u32 s{sWO}, s{sWO}, s{sLDW}
s_mul_i32 s{sW1}, s{sCB2}, 122880
s_add_u32 s{sW1}, s{sW1}, {W1_F}
s_add_u32 s{sW1}, s{sW1}, s{sLDW}
s_mul_i32 s{sW2}, s{sCB}, 245760
s_add_u32 s{sW2}, s{sW2}, {W2_F}
s_add_u32 s{sW2}, s{sW2}, s{sLDW}
s_mul_i32 s{sWQ}, s{sCB2}, 163840
s_add_u32 s{sWQ}, s{sWQ}, {WQKV_F}
s_add_u32 s{sWQ}, s{sWQ}, s{sLDW}
s_mul_i32 s{sSRC}, s{sJ}, 163840
s_add_u32 s{sSRC}, s{sSRC}, s{sQIN}
s_add_u32 s{sSRC}, s{sSRC}, s{sLDW}
s_lshl_b32 s{sT}, s{sLAST}, 15
s_add_u32 s{sT}, s{sT}, {QF}
s_mul_i32 s{sT+1}, s{sJ}, 0x2aab
s_lshr_b32 s{sT+1}, s{sT+1}, 16
s_lshl_b32 s{sT+1}, s{sT+1}, 11
s_add_u32 s{sT+1}, s{sT+1}, s{sT}
s_cmp_lg_u32 s{sROLE}, 0
s_cselect_b32 s{sPUB}, s{sT+1}, s{sPUB}   ; flag row of Q (loader waves)
s_add_u32 s{sQFK}, s{sJ}, 32
s_mul_i32 s{sQFK}, s{sQFK}, 0x2aab
s_lshr_b32 s{sQFK}, s{sQFK}, 16
s_lshl_b32 s{sQFK}, s{sQFK}, 11
s_add_u32 s{sQFK}, s{sQFK}, s{sT}
s_add_u32 s{sQFV}, s{sJ}, 64
s_mul_i32 s{sQFV}, s{sQFV}, 0x2aab
s_lshr_b32 s{sQFV}, s{sQFV}, 16
s_lshl_b32 s{sQFV}, s{sQFV}, 11
s_add_u32 s{sQFV}, s{sQFV}, s{sT}
""")
    g.attention()
    g.left = {6: 0, 7: 0}
    g.acq = 7
    a(f"s_cmp_ge_u32 s{sWAVE}, 4\ns_cbranch_scc1 L_loader_main")
    if CPRIO: a(f's_setprio {CPRIO}')
    g.b2load(); g.aux_load(True)
    R = g.fifo_reg(E_RES)
    a(f"s_cmp_eq_u32 s{sLAST}, 0\ns_cbranch_scc1 L_res_x")
    a(f"""s_mov_b32 s{sT}, 0xffff0000
s_mov_b32 s{sT+1}, 0xffff0000
v_cndmask_b32 v{R+16}, v{R+16}, v{R+18}, s[{sT}:{sT+1}]
v_cndmask_b32 v{R+17}, v{R+17}, v{R+19}, s[{sT}:{sT+1}]""")
    g.unpack(OWN, R, 4)
    g.unpack(OWN+8, R+8, 4)
    g.unpack(OWN+16, R+16, 2)
    a("s_branch L_res_done\nL_res_x:")
    g.unpack(OWN, RX, 10)
    a("L_res_done:")
    if 'addsleep' in XP:
        a("s_sleep 79")
    if 'addmfma' in XP:
        for k in range(156): a(f"v_mfma_f32_32x32x16_bf16 {vr(ACC+16*(k%2),16)}, {vr(C13+4*(k%10),4)}, {vr(C13+4*((k*3+1)%10),4)}, {vr(ACC+16*(k%2),16)}")
    g.barrier(need=12, tag="E0")
    if PRE13:
        a(f"s_mul_i32 s{sT}, s{sWAVE}, 5120\nv_add_u32 v{vT}, s{sT}, v{vL16}")
        for c in (13, 14):
            a(f"v_add_u32 v{vT+1}, {(c % NSLOT)*CH}, v{vT}")
            for q in range(5):
                a(f"ds_write_b128 v{vT+1}, {vr(C13+20*(c-13)+4*q,4)} offset:{1024*q}")
        a("s_waitcnt lgkmcnt(0)")
    g.phase_n80(0, 8, 5)
    g.phase_w1(13)
    g.phase_n80(1, 19, 12)
    nb_last = len(g.bar)
    a("L_qkv_phase:")
    g.vm.drain()
    g.phase_qkv(31)
    a(f"s_lshl3_add_u32 s{sT+1}, s{sG}, s{sTL}")
    g.pub_addr(sT+1, 1)
    a(f"""s_lshl_b32 s{sRDY}, s{sTL}, 7
s_lshl2_add_u32 s{sRDY}, s{sCB2}, s{sRDY}
s_add_u32 s{sRDY}, s{sRDY}, s{sFLG}
s_add_u32 s{sRDY}, s{sRDY}, {4096 + 3072}
L_next:
s_mov_b32 s{sLAST}, 1
s_branch L_layer""")
    a("L_done:")
    if DIAG:
        g.stamp("END")
        if 'wbend' in XP: a("s_waitcnt vmcnt(0)\ns_sleep 100\nbuffer_wbl2 sc1\ns_waitcnt vmcnt(0)")
        sh = "" if DIAGI == "s_memrealtime" else "s_lshr_b32 s62, s62, 4"
        a(f"""s_cmp_lg_u32 s2, 100
s_cbranch_scc1 L_end
s_cmp_lg_u32 s{sWAVE}, 0
s_cbranch_scc1 L_end
s_waitcnt lgkmcnt(0)
s_sub_u32 s62, s62, s66
{sh}
s_add_u32 s62, s62, 15000
L_diag:
s_memrealtime s[64:65]
s_waitcnt lgkmcnt(0)
s_sub_u32 s64, s64, s60
s_cmp_lt_u32 s64, s62
s_cbranch_scc1 L_diag""")
    g.prof_store()
    a("L_end:\ns_endpgm")
    g.final_out()
    a("s_branch L_done")
    g.att_fallback()
    a.L.extend(g.oolbuf)
    a(f"L_loader_main:\ns_cmp_lg_u32 s{sLAST}, 0\ns_cbranch_scc1 L_loader_last")
    g.loader3(g.bar, 38, PLAN, FL[0])
    a("s_branch L_next\nL_loader_last:")
    g.loader3(g.bar[:nb_last], 30, PLAN, FL[1])
    a("s_branch L_done")
    return g
```

```python
import math, struct, os
from dsl import *
from layout import *

OOB = 0x40000000
def f2u(x): return struct.unpack("<I", struct.pack("<f", x))[0]
QSCALE = DH ** -0.5 * math.log2(math.e)
EPS = 1e-5

sWS, sOUT, sB2 = 4, 8, 12
sWAVE, sG, sJ, sSLOW = 16, 17, 18, 19
sQIN, sQOUT, sRES, sFLG, sXCA, sLAST = 20, 21, 22, 23, 24, 25
sSTQ, sACTQ, sNOPOLL, sXCC = 26, 27, 28, 29
sOF, sX1F, sHF, sST1 = 30, 31, 32, 33
sCB, sRB, sCB2, sRB2 = 34, 35, 36, 37
sKH, sT2, sTL = 38, 39, 40
sSRC, sC, sSLOT, sLDW = 41, 42, 43, 44
sWO, sW1, sW2, sWQ = 45, 46, 47, 48
sT = 50
sPROF = 60
sQA = 84
sKID = 98
sWRM = 49
sAR1 = 96
sWRM2, sWRM3, sDST, sN, sAR = 93, 94, 95, 97, 92
vLANE, vL16, vSW, vTL, vH = 1, 2, 3, 4, 5
vK1, vK2, vVA = 6, 7, 8
vB0, vB1, vB2 = 6, 7, 8
vP0, vP1, vP2 = 9, 10, 11
vT = 12
Q1, Q2, K1, K2, V0, V1, P, SS, O = 16, 20, 24, 28, 32, [36, 40], 44, [52, 68], 84
vBK1, vBK2, vBV, vMK, vMV, vXC = 100, 101, 102, 106, 107, 108
vWRM, vDUM = 110, 111
SR, vSO, vSD, vBI, vSC, ONE, CSA = 208, 168, 169, 170, 171, 172, 176
sA, sBp, sSo, sDs, sSt, sAx, sQd, sTy, sSS, sBS = 84, 85, 86, 87, 88, 89, 42, 28, 8, 12
sDP, sFP, sLDR, sROLE = 93, 94, 96, 49
sZP = 24
sA0, sSt0 = 24, 94
sPUB, sRDY, sQFK, sQFV = 24, 29, 95, 97
vPL = 252
sXP, RX = 90, 112
vL16B = 110
E_RES, E_C13, E_C14, E_T0, E_T1 = 1, 2, 3, 5, 6
AUXB, AUXA, WF, ACC, ACT, STT = 38, 40, 48, 64, 128, 192
RA0, RA2, RA1 = 208, 224, 240
AUXB16, AUXA16 = 32, 36
OWN, OTH = 208, 228
WF16 = [48, 52, 56, 60, 112, 116, 120, 124, 192, 196]
ACT16 = 64
T16, NPRE16, R16 = 2, int(os.environ.get('NPRE16', 8)), int(os.environ.get('R16', 2))
vRS, vRSB = 22, 23
NACT = 12
WFR = [48, 52, 56, 60, 176, 180, 184, 188]
NB3, NB4 = int(os.environ.get('NB3', 6)), int(os.environ.get('NB4', 8))
NPRE, ADEPTH, STAT_AT = int(os.environ.get('NPRE', 7)), int(os.environ.get('ADEPTH', 11)), 8
RAMP = int(os.environ.get('RAMP', 2))
GDEF = int(os.environ.get('GDEF', 3))
PRE13 = int(os.environ.get('PRE13', 1))
C13 = 152
N80_TAIL = 8
QTAIL = int(os.environ.get('QTAIL', 8))
QRATE = int(os.environ.get('QRATE', 3))
WR_LAG = 1
F0 = 13
NF = 7
FL = [eval(os.environ.get('FL0', '[26, 27, 28, 29, 30, 34, 35]')), [24, 25, 26, 27, 28, 29, 30]]
RS = eval(os.environ.get('RS', """[("S",1,4,1), ("S",2,10,1), ("D",3,26,2), ("D",5,45,2), ("F",0,68,1), ("F",4,73,1), ("D",7,78,1), ("D",9,83,1), ("F",2,88,1), ("F",3,93,1),
      ("F",5,98,2), ("D",11,108,1), ("F",6,113,1), ("F",1,118,1)]"""))
ROUNDS = {}
_span = {"F": [], "D": [], "T": []}
for _k, _n, _s0, _st in RS:
    _c = {'S': 3, 'T': 6}.get(_k, 5)
    _l = _span["D" if _k == "S" else _k]
    assert all(_s0 > b or _s0 + (_c-1)*_st < a_ for a_, b in _l), "rounds of one kind must not interleave"
    _l.append((_s0, _s0 + (_c-1)*_st))
    for _q in range(_c):
        assert _s0 + _q*_st not in ROUNDS
        ROUNDS[_s0 + _q*_st] = (_k, _n, _q)
RESX_AT = int(os.environ.get('RESX_AT', 39))
WQ_POLL = int(os.environ.get('WQ_POLL', -10))
HALF0 = int(os.environ.get('HALF0', 1))
S_LD, S_WR, S_FLAG, S_POLL = eval(os.environ.get('SS', '(7, 14, 22, 31)'))
XC_AT = 50
PRIO = {}
_P = eval(os.environ.get('PP', '{0: 3, 6: 2, 11: 1, 14: 0}'))
for _b in (22, 38):
    for _u, _v in _P.items(): PRIO[_b+_u] = _v
PRIO.update(eval(os.environ.get('PE', '{0: 2, 1: 1, 2: 3, 4: 1, 5: 0, 6: 3, 9: 2, 11: 1, 13: 0, 14: 3, 17: 2, 19: 1, 21: 0, 54: 3, 59: 2, 61: 1, 63: 0}')))
FIFO_ATT = eval(os.environ.get('FIFO_ATT', '{4: [0, 1], 5: [2, 3], 6: [4, 5], 7: [6]}'))
SYNC = eval(os.environ.get('SYNC', '{13: 16, 17: 18, 19: 23, 22: 0, 24: 25, 26: 27, 28: 30, 31: 34, 35: 35, 36: 38}'))
XFIFO = eval(os.environ.get('XFIFO', '{"E0": [(24, 9), (25, 10), (17, 7)], "Zo": [(18, 8)], "Zw": []}'))
PLAN = eval(os.environ.get('PLAN', '{"def": 0, "wdef": 10, "Zo": 10, "Zf": 25, "Zw": 15, "Hq9": 15, "wX0": 5, "wX1": 5, "wZw": 0}'))
HOL = eval(os.environ.get('HOL', '{"q": [(9, 8)]}'))
WPACE = int(os.environ.get('WPACE', 0))
DRIP = int(os.environ.get('DRIP', 2))
PKR = 112
import os
STD = ["att0", "attE", "woP", "woM", "w1P", "w1M", "w2P", "w2M", "qP", "qM", "qE"]
STAMPS = os.environ.get("STAMPS", ",".join(STD)).split(",")
SIDE = eval(os.environ.get('SIDE', "{3: ['w2a'], 4: ['w2b'], 5: ['ar0'], 6: ['ar1', 'res']}"))
XP = os.environ.get('XP', '')
ALF = os.environ.get('ALF', ' sc1')
CPRIO = int(os.environ.get('CPRIO', 1))
DIAG = os.environ.get('DIAG', '')
DIAGI = os.environ.get('DIAGI', 's_memrealtime')
OST = os.environ.get('OST', '')
WBAT = os.environ.get('WBAT', 'B22')
QST = os.environ.get('QST', ' sc0 sc1')
CHAIN_TOUCH = 0
KV_NT = int(os.environ.get("KV_NT", 0))

class VM:
    def __init__(self): self.q = []
    def issue(self, tag): self.q.append(tag)
    def need(self, tag):
        if tag not in self.q: return None
        i = len(self.q) - 1 - self.q[::-1].index(tag)
        n = len(self.q) - 1 - i
        self.q = self.q[i+1:]
        return n
    def drain(self): self.q = []

class Gen:
    def __init__(self, a, prof):
        self.a = a; self.prof = prof
        self.bar = []
        self.acq = 8
        self.left = {}
        self.dsq = []
        self.freed = set()
        self.vm = VM()
        self.basechunk = {}
        self.seen = set()
        self.drip = []
        self.oolbuf = []
        self.rate = DRIP

    def stamp(self, name):
        if isinstance(name, int): name = STD[name]
        if DIAG and name == DIAG.split(":")[1]:
            ly = int(DIAG.split(":")[0]); l = self.a.label("dg")
            if ly >= 0: self.a(f"s_cmp_lg_u32 s{sLAST}, {ly}\ns_cbranch_scc1 {l}")
            self.a(f"{DIAGI} s[62:63]\n{l}:")
        name = {"F0": "att0", "g0": "attE", "g32": "woP", "g64": "woM", "g96": "w1P", "g128": "w1M", "FM": "qM", "FE": "qE"}.get(name, name) if name not in STAMPS else name
        if self.prof and name in STAMPS:
            i = STAMPS.index(name)
            self.a(f"{'s_memrealtime' if self.prof == 2 else 's_memtime'} s[{sPROF+2*i}:{sPROF+2*i+1}]")

    def barrier(self, need=None, tag=None):
        busy = {c for c, _ in self.dsq}
        fr = [c for c, n in sorted(self.left.items()) if n == 0 and c not in busy and c not in self.freed]
        self.freed |= set(fr)
        self.bar.append(dict(need=need, free=fr, tag=tag if tag else f"B{need}"))
        self.a("s_barrier")
        if need is not None: self.acq = need
    def lgkm(self, n):
        self.a(f"s_waitcnt lgkmcnt({n})")
        if len(self.dsq) > n: self.dsq = self.dsq[len(self.dsq)-n:] if n else []
    def dsneed(self, tag):
        tags = [t for _, t in self.dsq]
        if tag in tags:
            self.lgkm(len(tags) - 1 - tags.index(tag))
    def wread(self, dst, chunk, kind, off, tag=None):
        a = self.a
        if chunk not in self.seen:
            self.seen.add(chunk)
            if chunk in SYNC:
                self.barrier(max(SYNC[chunk], self.acq), tag=f"B{chunk}")
            assert chunk <= self.acq, (chunk, self.acq)
        if self.basechunk.get(kind) != chunk:
            a(f"v_add_u32 v{vB0+kind}, {(chunk % NSLOT)*CH}, v{vP0+kind}")
            self.basechunk[kind] = chunk
        a(f"ds_read_b128 {vr(dst,4)}, v{vB0+kind} offset:{off}")
        self.left[chunk] -= 1
        self.dsq.append((chunk, tag))

    def poll(self, phase, nslots):
        a = self.a
        lp, ld = a.label("poll"), a.label("polld")
        mask = (1 << nslots) - 1
        a(f"""
s_lshl_b32 s{sT}, s{sTL}, 7
s_add_u32 s{sT}, s{sT}, s{sFLG}
v_lshrrev_b32 v{vT}, 2, v{vL16}
s_mov_b32 s{sT+1}, 0x100000
s_mov_b64 exec, {mask:#x}
{lp}:
buffer_load_dword v{vT+1}, v{vT}, s[{sWS}:{sWS+3}], s{sT} offen offset:{phase*1024} sc1
s_sub_u32 s{sT+1}, s{sT+1}, 1
s_cbranch_scc1 {ld}
s_waitcnt vmcnt(0)
v_cmp_eq_u32 vcc, 0, v{vT+1}
s_cbranch_vccnz {lp}
{ld}:
s_mov_b64 exec, -1
""".replace("s_mov_b64 exec, 0xffffffff", "s_mov_b32 exec_hi, 0"))
        self.ool(f"s_cmp_lg_u32 s{sSLOW}, 0\ns_cbranch_scc1", lambda: a("buffer_inv sc1\ns_waitcnt vmcnt(0)"))
        self.vm.drain()

    def pub_pre(self, slot_sreg):
        self.a(f"""s_lshl_b32 s{sT+5}, s{sTL}, 7
s_add_u32 s{sT+5}, s{sT+5}, s{sFLG}
s_lshl2_add_u32 s{sT+5}, s{slot_sreg}, s{sT+5}
v_mov_b32 v{vT+1}, 1""")

    def publish(self, phase, slot_sreg):
        a = self.a
        self.pub_pre(slot_sreg)
        lo, lb = a.label("pubslow"), a.label("pubdone")
        a(f"""s_cmp_lg_u32 s{sSLOW}, 0
s_cbranch_scc1 {lo}
s_mov_b64 exec, 1
s_waitcnt vmcnt(0)
buffer_store_dword v{vT+1}, v{vL16}, s[{sWS}:{sWS+3}], s{sT+5} offen offset:{phase*1024}
{lb}:
s_mov_b64 exec, -1""")
        sav = a.L; a.L = self.oolbuf
        a(f"""{lo}:
s_waitcnt vmcnt(0)
buffer_wbl2 sc1
s_waitcnt vmcnt(0)
s_mov_b64 exec, 1
buffer_store_dword v{vT+1}, v{vL16}, s[{sWS}:{sWS+3}], s{sT+5} offen offset:{phase*1024} sc1
s_branch {lb}""")
        a.L = sav
        self.vm.drain(); self.vm.issue("flag")

    def make_ops(self, nsteps, nt, tail=0, tail_order=None):
        ops = [(s, j) for s in range(nsteps - tail) for j in range(nt)]
        for j in (tail_order or range(nt)):
            ops += [(s, j) for s in range(nsteps - tail, nsteps)]
        return ops

    def first_w(self, ops, nb, frag):
        for k in range(nb):
            self.wread(WFR[k], *frag(*ops[k]), tag=k)

    def gemm(self, ops, nb, accs, frag, act_ks, sact, cinit, hooks, pre_stats=None, nm="", pre=()):
        a = self.a
        nsteps = max(s for s, _ in ops) + 1
        lastuse = {}
        for k, (s, j) in enumerate(ops): lastuse[s] = k
        cur = [None]; nxt = [0]
        tailn = N80_TAIL if nm in 'ow' else 0
        def aload():
            s = nxt[0]; nxt[0] += 1
            ks = act_ks(s)
            if cur[0] != ks // 4:
                cur[0] = ks // 4
                a(f"s_add_u32 s{sT+3}, s{sact}, {(ks//4)*4096}")
            if 'noA' in XP and s >= 2: return
            a(f"buffer_load_dwordx4 {vr(ACT+4*(s%NACT),4)}, v{vL16}, s[{sWS}:{sWS+3}], s{sT+3} offen offset:{(ks%4)*1024}{ALF}")
            self.vm.issue(("act", s))
        for _ in range(min(NPRE, nsteps)): aload()
        for h in pre: h()
        started = set()
        for k, (s, j) in enumerate(ops):
            n = self.vm.need(("act", s))
            if n is not None: a(f"s_waitcnt vmcnt({n})")
            self.dsneed(k)
            c = vr(accs[j], 16) if (j in started or cinit[j]) else "0"
            started.add(j)
            a(f"v_mfma_f32_32x32x16_bf16 {vr(accs[j],16)}, {vr(WFR[k%nb],4)}, {vr(ACT+4*(s%NACT),4)}, {c}")
            self.stamp(f"{nm}{k}")
            if k + nb < len(ops):
                self.wread(WFR[k%nb], *frag(*ops[k+nb]), tag=k+nb)
            hol = [h for h in HOL.get(nm, []) if h[0] <= s < h[0] + h[1]]
            if hol and s == hol[0][0] and j == 0: self.barrier(tag=f'H{nm}{s}')
            post = any(s >= h[0] + h[1] for h in HOL.get(nm, []))
            if not hol and (j == 0 or (j == 1 and (post or s % RAMP == RAMP-1)) or (s >= nsteps - tailn and j == 1)) and nxt[0] < nsteps and (nxt[0] < NACT or lastuse[nxt[0]-NACT] <= k) and nxt[0] <= s + ADEPTH:
                aload()
                if nxt[0] == nsteps and ("Z" + nm) in PLAN: self.barrier(tag="Z" + nm)
            if pre_stats and j == 2 and s % 2 == 0 and s // 2 < 2: pre_stats(s // 2)
            for h in hooks.get((s, j), []) + hooks.get(k - len(ops), []):
                h()
            for _ in range(self.rate):
                if self.drip:
                    d = self.drip.pop(0)
                    if callable(d): d()
                    else: a(d)
        assert nxt[0] == nsteps

    def stats_load(self, sbase):
        a = self.a
        def f(q):
            if q == 0: a(f"s_lshl_b32 s{sT+4}, s{sTL}, 12\ns_add_u32 s{sT+4}, s{sT+4}, s{sbase}")
            a(f"buffer_load_dwordx4 {vr(STT+4*q,4)}, v{vL16}, s[{sWS}:{sWS+3}], s{sT+4} offen offset:{1024*q} sc1")
            self.vm.issue(("st", q))
        return f

    def stats_math(self, double, summed=False):
        a = self.a
        L = []
        if not summed:
            def w():
                n = self.vm.need(("st", 1))
                if n is not None: a(f"s_waitcnt vmcnt({n})")
            L = [w]
            for q in range(4): L.append(f"v_add_f32 v{STT+q}, v{STT+q}, v{STT+4+q}")
            L += f"""v_add_f32 v{STT}, v{STT}, v{STT+2}
v_add_f32 v{STT+1}, v{STT+1}, v{STT+3}
v_add_f32 v{STT}, v{STT}, v{STT+1}""".split("\n")
        L += f"""v_mul_f32 v{STT}, {f2u(1.0/D):#x}, v{STT}
v_mov_b32 v{STT+1}, v{STT}
s_nop 1
v_permlane32_swap_b32 v{STT}, v{STT+1}
v_cmp_gt_u32 vcc, 32, v{vLANE}
v_fma_f32 v{STT+1}, -v{STT}, v{STT}, v{STT+1}
v_max_f32 v{STT+1}, 0, v{STT+1}
v_add_f32 v{STT+2}, {f2u(EPS):#x}, v{STT+1}
v_rsq_f32 v16, v{STT+2}
v_sub_f32 v{STT+4}, 0, v{STT}
v_mov_b32 v18, 0xffff0000
v_and_b32 v{STT+5}, 0xffff0000, v{STT+4}
v_sub_f32 v{STT+6}, v{STT+4}, v{STT+5}
v_lshrrev_b32 v{STT+5}, 16, v{STT+5}""".split("\n")
        if not double:
            L += f"""v_and_or_b32 v{AUXB}, v{STT+6}, v18, v{STT+5}
v_mov_b32 v{AUXB+1}, v{STT+5}""".split("\n")
            return L
        L += f"""v_mul_f32 v{STT+3}, v16, v16
v_mul_f32 v{STT+3}, v{STT+3}, v{STT+1}
v_add_f32 v{STT+3}, {f2u(EPS):#x}, v{STT+3}
v_rsq_f32 v{STT+3}, v{STT+3}
v_and_or_b32 v{AUXB16}, v{STT+6}, v18, v{STT+5}
v_mul_f32 v16, v16, v{STT+3}
v_rcp_f32 v17, v16
v_mov_b32 v{AUXB16+2}, v{AUXB16}
v_cndmask_b32 v{STT+7}, v17, 0, vcc
v_and_b32 v{STT+8}, 0xffff0000, v{STT+7}
v_sub_f32 v{STT+9}, v{STT+7}, v{STT+8}
v_or_b32 v{AUXB16+1}, v{STT+8}, v{STT+5}
v_and_or_b32 v{AUXB16+3}, v{STT+9}, v18, v{STT+5}""".split("\n")
        return L

    def aux_load(self, w1):
        a = self.a
        if w1:
            a(f"s_lshl_b32 s{sT}, s{sCB2}, 12\ns_add_u32 s{sT}, s{sT}, {AUX1}")
            for j in range(3):
                a(f"buffer_load_dwordx4 {vr(AUXA16+4*j,4)}, v{vL16}, s[{sWS}:{sWS+3}], s{sT} offen offset:{1024*j}")
                self.vm.issue(("aux", j))
        else:
            a(f"s_lshl_b32 s{sT}, s{sCB2}, 11\ns_add_u32 s{sT}, s{sT}, {AUXQ}\nv_lshlrev_b32 v{vT}, 3, v{vLANE}")
            for j in range(4):
                a(f"buffer_load_dwordx2 {vr(AUXA+2*j,2)}, v{vT}, s[{sWS}:{sWS+3}], s{sT} offen offset:{512*j}")
                self.vm.issue(("aux", j))

    def aux_mfma(self, acc, j, double):
        if double:
            self.a(f"v_mfma_f32_32x32x16_bf16 {vr(acc,16)}, {vr(AUXA16+4*j,4)}, {vr(AUXB16,4)}, {vr(acc,16)}")
        else:
            self.a(f"v_mfma_f32_32x32x8_bf16 {vr(acc,16)}, {vr(AUXA+2*j,2)}, {vr(AUXB,2)}, {vr(acc,16)}")

    def aux_hooks(self, hooks, nt, accs, double, s0, extra=()):
        L = self.stats_math(double) + list(extra)
        hooks.setdefault((s0, 0), []).append(lambda: self.drip.extend(L))
        sa = s0 + (len(L) + DRIP*nt - 1) // (DRIP*nt) + 1
        for j in range(nt):
            def mk(j):
                def f():
                    assert not self.drip
                    self.aux_mfma(accs[j], j, double)
                return f
            hooks.setdefault((sa, j), []).append(mk(j))

    def set_tl_128(self):
        a = self.a
        a(f"""s_lshl_b32 s{sTL}, s{sRB2}, 2
s_add_u32 s{sTL}, s{sTL}, s{sWAVE}""")
    def set_tl_64(self):
        a = self.a
        a(f"""s_lshl_b32 s{sTL}, s{sRB}, 1
s_add_u32 s{sTL}, s{sTL}, s{sT2}""")
    def tt_off(self, dst, base_sreg, tile_bytes):
        a = self.a
        a(f"""s_mul_i32 s{dst}, s{sTL}, {tile_bytes}
s_add_u32 s{dst}, s{dst}, s{base_sreg}""")

    def phase_qkv(self, c0):
        a = self.a
        a.c("================ QKV phase")
        for c in range(8): self.left[c0+c] = 20
        self.basechunk = {}
        def frag(s, j):
            c, u = divmod(s, 5)
            return (c0+c, 0, (u*3+j)*1024) if j < 3 else (c0+c, 1, 15360 + u*768)
        self.set_tl_128()
        a(f"""v_mov_b32 v{vP0}, v{vL16}
v_and_b32 v{vT}, 31, v{vLANE}
v_subrev_u32 v{vT+1}, 24, v{vT}
v_min_u32 v{vT}, v{vT}, v{vT+1}
v_lshlrev_b32 v{vT}, 4, v{vT}
v_mul_u32_u24 v{vP1}, 384, v{vH}
v_add_u32 v{vP1}, v{vP1}, v{vT}""")
        ops = self.make_ops(40, 4, QTAIL)
        self.stamp("x1e")
        self.first_w(ops, NB4, frag)
        self.stamp("x1f")
        self.poll(3, 16)
        self.stamp(8)
        self.tt_off(sT+6, sACTQ, 40960)
        accs = [ACC+16*j for j in range(4)]
        hooks = {}
        self.aux_hooks(hooks, 4, accs, False, 14, [f"v_mul_f32 v{20+2*jj}, v{20+2*jj}, v16" for jj in range(3)])
        if QTAIL:
            def mk(jj):
                def f():
                    self.rate = QRATE
                    b = sQA + 1 + 4*jj
                    for hf in range(2):
                        r = ACC + 16*jj + 8*hf
                        for k in range(4):
                            self.drip.append(f"v_mul_f32 v{r+2*k}, v{r+2*k}, v{20+2*jj}")
                            self.drip.append(f"v_mul_f32 v{r+2*k+1}, v{r+2*k+1}, v{20+2*jj}")
                            self.drip.append(f"v_cvt_pk_bf16_f32 v{r+k}, v{r+2*k}, v{r+2*k+1}")
                        self.drip.append(f"buffer_store_dwordx4 {vr(r,4)}, v{vSW}, s[{sWS}:{sWS+3}], s{b+hf} offen{QST}")
                return f
            for jj in range(3):
                hooks.setdefault(-(3-jj)*QTAIL + 3, []).append(mk(jj))
        self.gemm(ops, NB4, accs, frag, lambda s: s, sT+6, [False]*4, hooks, pre_stats=self.stats_load(sSTQ), nm='q', pre=[self.qkv_addr])
        self.rate = DRIP
        self.stamp(9)
        n = len(self.drip)
        for d in self.drip: a(d)
        self.drip = []
        if n < 12: a(f"s_nop {11 - n}")
        self.qkv_epilogue(range(0 if QTAIL else 3))
        self.stamp(10)

    def qkv_addr(self):
        a = self.a
        self.tt_off(sQA, sQOUT, 2560)
        for jj in range(3):
            b = sQA + 1 + 4*jj
            a(f"""s_mul_i32 s{sT+7}, s{sCB2}, 6
s_add_u32 s{sT+7}, s{sT+7}, {2*jj}
s_lshr_b32 s{sT+8}, s{sT+7}, 1
s_add_u32 s{sT+8}, s{sT+8}, 32
s_and_b32 s{sT+9}, s{sT+7}, 31
s_cmp_lt_u32 s{sT+7}, 32
s_cselect_b32 s{sT+8}, s{sT+8}, s{sT+9}
s_mov_b32 s{b+1}, 163840
s_cselect_b32 s{b+3}, 256, s{b+1}
s_cselect_b32 s{b+1}, 1024, s{b+1}
s_cselect_b32 s{sT+9}, {f2u(QSCALE):#x}, 1.0
v_mov_b32 v{20+2*jj}, s{sT+9}
s_mul_i32 s{sT+8}, s{sT+8}, 163840
s_add_u32 s{sT+8}, s{sT+8}, s{sQA}
s_cmp_ge_u32 s{sT+7}, 64
s_cselect_b32 s{b}, 1024, 0
s_cselect_b32 s{b+2}, 256, 0
s_add_u32 s{b}, s{b}, s{sT+8}
s_add_u32 s{b+2}, s{b+2}, s{sT+8}
s_add_u32 s{b+1}, s{b+1}, s{b}
v_mul_lo_u32 v{26+jj}, s{b+3}, v{vH}
v_add_u32 v{26+jj}, v{26+jj}, v{vTL}""")

    def qkv_epilogue(self, mains=range(3)):
        a = self.a
        for jj in mains:
            b = sQA + 1 + 4*jj
            for hf in range(2):
                r = ACC + 16*jj + 8*hf
                for k in range(4):
                    a(f"v_pk_mul_f32 {vr(r+2*k,2)}, {vr(r+2*k,2)}, {vr(20+2*jj,2)} op_sel_hi:[1,0]")
                for k in range(4):
                    a(f"v_cvt_pk_bf16_f32 v{r+k}, v{r+2*k}, v{r+2*k+1}")
                a(f"buffer_store_dwordx4 {vr(r,4)}, v{vSW}, s[{sWS}:{sWS+3}], s{b+hf} offen{QST}")
        for jj in range(3):
            b = sQA + 1 + 4*jj
            r = ACC + 48 + 4*jj
            for k in range(2):
                a(f"v_pk_mul_f32 {vr(r+2*k,2)}, {vr(r+2*k,2)}, {vr(20+2*jj,2)} op_sel_hi:[1,0]")
            for k in range(2):
                a(f"v_cvt_pk_bf16_f32 v{r+k}, v{r+2*k}, v{r+2*k+1}")
            a(f"buffer_store_dwordx2 {vr(r,2)}, v{26+jj}, s[{sWS}:{sWS+3}], s{b+2} offen{QST}")

    def unpack(self, dst, src, n):
        a = self.a
        for k in range(n):
            a(f"v_lshlrev_b32 v{dst+2*k}, 16, v{src+k}")
            a(f"v_and_b32 v{dst+2*k+1}, 0xffff0000, v{src+k}")

    def g16_patterns(self, dA, d5):
        self.a(f"""v_and_b32 v{vT}, 15, v{vLANE}
s_lshl_b32 s{sT}, s{sKH}, 4
v_lshrrev_b32 v{vT+1}, 4, v{vLANE}
v_add_u32 v{vT}, s{sT}, v{vT}
v_lshlrev_b32 v{d5}, 4, v{vT}
v_lshl_add_u32 v{dA}, v{vT+1}, 9, v{d5}
v_lshl_add_u32 v{d5}, v{vH}, 9, v{d5}""")

    def b2load(self):
        self.a(f"""s_mul_i32 s{sT}, s{sCB}, 160
v_lshrrev_b32 v{vT}, 4, v{vLANE}
v_lshlrev_b32 v{vT+1}, 3, v{vT}
v_lshlrev_b32 v{vT}, 4, v{vT}
buffer_load_dwordx4 v[24:27], v{vT}, s[{sB2}:{sB2+3}], s{sT} offen
buffer_load_dwordx4 v[28:31], v{vT}, s[{sB2}:{sB2+3}], s{sT} offen offset:64
buffer_load_dwordx2 v[32:33], v{vT+1}, s[{sB2}:{sB2+3}], s{sT} offen offset:128""")

    def gemm16(self, nsig, frag, sact, hooks, pre, nm):
        a = self.a
        nb = len(WF16)
        ops = [(sg, t, th) for sg in range(nsig - T16) for t in range(5) for th in (0, 1)]
        ops += [(sg, t, th) for th in (1, 0) for sg in range(nsig - T16, nsig) for t in range(5)]
        lastw, lasta = {}, {}
        for k, (sg, t, th) in enumerate(ops): lastw[5*sg+t] = k; lasta[2*sg+th] = k
        nact = 2*nsig; nxt = [0]; cur = [None]
        def aload():
            f = nxt[0]; nxt[0] += 1
            sg, th = divmod(f, 2)
            if cur[0] != sg // 2:
                cur[0] = sg // 2
                a(f"s_add_u32 s{sT+3}, s{sact}, {(sg//2)*8192}")
            a(f"buffer_load_dwordx4 {vr(ACT16+4*(f%NACT),4)}, v{vP1+th}, s[{sWS}:{sWS+3}], s{sT+3} offen offset:{(sg%2)*2048} sc1")
            self.vm.issue(("act", f))
        for _ in range(NPRE16): aload()
        for h in pre: h()
        started = set()
        for k, (sg, t, th) in enumerate(ops):
            w = []
            n = self.vm.need(("act", 2*sg+th))
            if n is not None: w.append(f"vmcnt({n})")
            tags = [x for _, x in self.dsq]
            if 5*sg+t in tags:
                n = min(15, len(tags) - 1 - tags.index(5*sg+t))
                w.append(f"lgkmcnt({n})"); self.dsq = self.dsq[len(self.dsq)-n:] if n else []
            if w: a("s_waitcnt " + " ".join(w))
            d = (OWN, OTH)[th] + 4*t
            c = vr(d, 4) if (th == 0 or t in started) else "0"
            if th == 1: started.add(t)
            a(f"v_mfma_f32_16x16x32_bf16 {vr(d,4)}, {vr(WF16[(5*sg+t) % nb],4)}, {vr(ACT16+4*((2*sg+th)%NACT),4)}, {c}")
            self.stamp(f"{nm}{k}")
            f = 5*sg + t
            if lastw[f] == k and f + nb < 5*nsig:
                self.wread(WF16[f % nb], *frag(f + nb), tag=f + nb)
            elif th == 0 and (t in (1, 3) or (t == 2 and sg % R16 == R16-1)) and nxt[0] < nact and (nxt[0] < NACT or lasta[nxt[0]-NACT] <= k):
                aload()
                if nxt[0] == nact and ("Z" + nm) in PLAN: self.barrier(tag="Z" + nm)
            for h in hooks.get(k - len(ops), []): h()
        assert nxt[0] == nact

    def phase_n80(self, which, c0, nchunks):
        a = self.a
        a.c(f"================ {'WO' if which == 0 else 'W2'} phase")
        for c in range(nchunks): self.left[c0+c] = 10
        self.basechunk = {}
        def frag(f):
            c, u = divmod(f, 10)
            return (c0+c, 0, u*1024)
        self.set_tl_64()
        self.g16_patterns(vP1, 22)
        a(f"""s_mul_i32 s{sT}, s{sKH}, 10240
v_add_u32 v{vP0}, s{sT}, v{vL16}
v_xor_b32 v{vP2}, 256, v{vP1}""")
        def c13():
            a(f"v_add_u32 v{vT}, s{sLDW}, v{vL16}")
            for c in (13, 14):
                a(f"v_add_u32 v{vT+1+c-13}, {(c % NSLOT)*CH}, v{vT}")
            for c in (13, 14):
                for q in range(5):
                    a(f"ds_write_b128 v{vT+1+c-13}, {vr(C13+20*(c-13)+4*q,4)} offset:{1024*q}")
                    self.dsq.append((None, ("cw", c, q)))
        if which == 0: c13()
        for f in range(len(WF16)): self.wread(WF16[f], *frag(f), tag=f)
        self.tt_off(sT+6, sOF if which == 0 else sHF, OSTR if which == 0 else 98304)
        a(f"s_lshl_b32 s{sT}, s{sKH}, 12\ns_add_u32 s{sT+6}, s{sT+6}, s{sT}")
        self.poll(0 if which == 0 else 2, 32 if which == 0 else 16)
        self.stamp(2 if which == 0 else 6)
        def addr():
            a(f"""s_mul_i32 s{sT}, s{sWAVE}, 5120
s_add_u32 s{sT}, s{sT}, {MISC}
v_add_u32 v20, s{sT}, v{vL16}
s_xor_b32 s{sT}, s{sWAVE}, 2
s_mul_i32 s{sT}, s{sT}, 5120
s_add_u32 s{sT}, s{sT}, {MISC}
v_add_u32 v21, s{sT}, v{vL16}
v_bfe_u32 v{vT}, v{vLANE}, 4, 1
v_lshlrev_b32 v{vT+1}, 30, v{vT}
v_add_u32 v35, v{vT+1}, v22
v_lshl_add_u32 v22, v{vT}, 3, v22""")
            self.tt_off(sQA, sX1F if which == 0 else sACTQ, 40960)
            self.tt_off(sQA+2, sST1 if which == 0 else sSTQ, 4096)
            a(f"""s_mul_i32 s{sT}, s{sCB}, 5120
s_add_u32 s{sQA}, s{sQA}, s{sT}
s_add_u32 s{sQA+1}, s{sQA}, 4096
s_lshl1_add_u32 s{sQA+3}, s{sCB}, s{sKH}
s_lshr_b32 s{sT}, s{sCB}, 2
s_lshl_b32 s{sT}, s{sT}, 10
s_add_u32 s{sQA+2}, s{sQA+2}, s{sT}
s_and_b32 s{sT}, s{sCB}, 3
s_lshl2_add_u32 s{sQA+2}, s{sT}, s{sQA+2}""")
            if which == 1:
                a(f"""v_and_b32 v{vT}, 15, v{vLANE}
s_lshl_b32 s{sT}, s{sKH}, 4
v_add_u32 v{vT}, s{sT}, v{vT}
v_mul_u32_u24 v{vT}, 1280, v{vT}
v_lshrrev_b32 v{vT+1}, 4, v{vLANE}
v_lshl_add_u32 v23, v{vT+1}, 4, v{vT}
v_lshl_add_u32 v34, v{vT+1}, 3, v{vT}
s_lshl3_add_u32 s{sQA+4}, s{sG}, s{sTL}
s_mul_i32 s{sQA+4}, s{sQA+4}, 40960
s_mul_i32 s{sT}, s{sCB}, 160
s_add_u32 s{sQA+4}, s{sQA+4}, s{sT}""")
        hooks = {}
        def wr(q):
            def f():
                a(f"ds_write_b128 v20, {vr(OTH+4*q,4)} offset:{1024*q}")
                self.dsq.append((None, ("xw", q)))
            return f
        for q in range(5):
            hooks.setdefault(-5*T16 + 3 + q, []).append(wr(q))
        self.gemm16(nchunks*2, frag, sT+6, hooks, [addr], 'ow'[which])
        self.stamp(3 if which == 0 else 7)
        self.lgkm(0)
        self.stamp(f"x{which}a")
        self.barrier(tag=f"X{which}")
        self.stamp(f"x{which}b")
        for q in range(5):
            a(f"ds_read_b128 {vr(OTH+4*q,4)}, v21 offset:{1024*q}")
        a("v_mov_b32 v16, 0\nv_mov_b32 v17, 0\nv_mov_b32 v18, 0\nv_mov_b32 v19, 0")
        lfin = a.label("fin")
        PK = PKR
        def block(p):
            n = 4 if p < 2 else 2
            a(f"s_waitcnt lgkmcnt({(3, 1, 0)[p]})")
            for k in range(n):
                a(f"v_pk_add_f32 {vr(OWN+8*p+2*k,2)}, {vr(OWN+8*p+2*k,2)}, {vr(OTH+8*p+2*k,2)}")
            for k in range(n):
                a(f"v_cvt_pk_bf16_f32 v{PK+4*p+k}, v{OWN+8*p+2*k}, v{OWN+8*p+2*k+1}")
        block(0)
        if which == 1:
            a(f"s_cmp_lg_u32 s{sLAST}, 0\ns_cbranch_scc1 {lfin}")
        a(f"buffer_store_dwordx4 {vr(PK,4)}, v{vP1}, s[{sWS}:{sWS+3}], s{sQA} offen")
        block(1)
        a(f"buffer_store_dwordx4 {vr(PK+4,4)}, v{vP1}, s[{sWS}:{sWS+3}], s{sQA} offen offset:2048")
        block(2)
        a(f"buffer_store_dwordx2 {vr(PK+8,2)}, v22, s[{sWS}:{sWS+3}], s{sQA+1} offen")
        for k in range(10):
            a(f"v_pk_add_f32 v[16:17], v[16:17], {vr(OWN+2*k,2)}")
            a(f"v_pk_fma_f32 v[18:19], {vr(OWN+2*k,2)}, {vr(OWN+2*k,2)}, v[18:19]")
        a(f"""v_add_f32 v16, v16, v17
v_add_f32 v18, v18, v19
s_nop 1
v_permlane32_swap_b32 v16, v18
s_nop 1
v_add_f32 v16, v16, v18
v_mov_b32 v17, v16
s_nop 1
v_permlane16_swap_b32 v16, v17
s_nop 1
v_add_f32 v16, v16, v17
buffer_store_dword v16, v35, s[{sWS}:{sWS+3}], s{sQA+2} offen""")
        self.stamp(f"x{which}c")
        self.publish(1 if which == 0 else 3, sQA+3)
        self.stamp(f"x{which}d")
        if which == 0:
            def rinit():
                for k in range(10):
                    self.unpack(OWN+2*k, PK+k, 1)
                    self.unpack(OTH, 24+k, 1)
                    a(f"v_pk_add_f32 {vr(OWN+2*k,2)}, {vr(OWN+2*k,2)}, {vr(OTH,2)}")
            self.deferred = [rinit]
        else:
            self.final_label = lfin
            self.final_block = block

    def final_out(self):
        a = self.a
        PK = PKR
        a(f"{self.final_label}:")
        a(f"buffer_store_dwordx4 {vr(PK,4)}, v23, s[{sOUT}:{sOUT+3}], s{sQA+4} offen{OST}")
        self.final_block(1)
        a(f"buffer_store_dwordx4 {vr(PK+4,4)}, v23, s[{sOUT}:{sOUT+3}], s{sQA+4} offen offset:64{OST}")
        self.final_block(2)
        a(f"buffer_store_dwordx2 {vr(PK+8,2)}, v34, s[{sOUT}:{sOUT+3}], s{sQA+4} offen offset:128{OST}")
        self.stamp(8)

    def phase_w1(self, c0):
        a = self.a
        a.c("================ W1 phase")
        for c in range(6): self.left[c0+c] = 20
        self.basechunk = {}
        def frag(s, j):
            c, u = divmod(3*s+j, 20)
            return (c0+c, 0, u*1024)
        self.set_tl_128()
        a(f"v_mov_b32 v{vP0}, v{vL16}")
        ops = self.make_ops(40, 3)
        self.stamp("x0e")
        self.first_w(ops, NB3, frag)
        self.stamp("x0f")
        self.poll(1, 16)
        self.stamp(4)
        self.tt_off(sT+6, sX1F, 40960)
        accs = [ACC+16*j for j in range(3)]
        hooks = {}
        k1 = -2.0*math.sqrt(2.0/math.pi)*math.log2(math.e)
        k3 = k1*0.044715
        consts = f"""v_mul_f32 v20, {f2u(k1):#x}, v16
v_mul_f32 v22, v16, v16
v_mul_f32 v22, v22, v16
v_mul_f32 v22, {f2u(k3):#x}, v22
v_mov_b32 v24, v17""".split("\n")
        self.aux_hooks(hooks, 3, accs, True, 14, consts)
        hooks.setdefault((26, 2), []).append(lambda: self.aux_load(False))
        def oaddr():
            self.tt_off(sQA, sHF, 98304)
            a(f"""s_mul_i32 s{sT}, s{sCB2}, 6144
s_add_u32 s{sQA}, s{sQA}, s{sT}
s_add_u32 s{sQA+1}, s{sQA}, 4096""")
        self.gemm(ops, NB3, accs, frag, lambda s: s, sT+6, [False]*3, hooks, pre_stats=self.stats_load(sST1), nm='f', pre=[oaddr] + self.deferred)
        self.stamp(5)
        if "E1" in PLAN: self.barrier(tag="E1")
        a("s_nop 9")
        T = ACT
        for blk in range(6):
            r = ACC + 8*blk
            t = T + 8*(blk % 2)
            for k in range(4):
                a(f"v_pk_mul_f32 {vr(t+2*k,2)}, {vr(r+2*k,2)}, {vr(r+2*k,2)}")
            for k in range(4):
                a(f"v_pk_fma_f32 {vr(t+2*k,2)}, {vr(t+2*k,2)}, v[22:23], v[20:21] op_sel_hi:[1,0,0]")
            for k in range(4):
                a(f"v_pk_mul_f32 {vr(t+2*k,2)}, {vr(t+2*k,2)}, {vr(r+2*k,2)}")
            for k in range(8):
                a(f"v_exp_f32 v{t+k}, v{t+k}")
            for k in range(4):
                a(f"v_pk_fma_f32 {vr(t+2*k,2)}, {vr(t+2*k,2)}, v[24:25], v[24:25] op_sel_hi:[1,0,0]")
            for k in range(8):
                a(f"v_rcp_f32 v{t+k}, v{t+k}")
            for k in range(4):
                a(f"v_pk_mul_f32 {vr(t+2*k,2)}, {vr(t+2*k,2)}, {vr(r+2*k,2)}")
            for k in range(4):
                a(f"v_cvt_pk_bf16_f32 v{r+k}, v{t+2*k}, v{t+2*k+1}")
            if blk >= GDEF:
                for b2 in (range(blk+1) if blk == GDEF else [blk]):
                    a(f"buffer_store_dwordx4 {vr(ACC+8*b2,4)}, v{vL16}, s[{sWS}:{sWS+3}], s{sQA + b2//4} offen offset:{(b2%4)*1024}")
        self.stamp("y1c")
        self.publish(2, sCB2)
        self.stamp("y1d")

    def dma_chunk_static(self, n):
        a = self.a
        if n < 8: base, k = sSRC, n
        elif n < 13: base, k = sWO, n-8
        elif n < 19: base, k = sW1, n-13
        elif n < 31: base, k = sW2, n-19
        else: base, k = sWQ, n-31
        a(f"s_add_u32 m0, s{sLDW}, {(n % NSLOT)*CH}\ns_add_u32 s{sT}, s{base}, {k*CH}")
        self.dma5(sT, " nt" if (n < 8 and KV_NT) else "")
    def dma5(self, so, fl=""):
        a = self.a
        for q in range(4):
            a(f"buffer_load_dwordx4 v{vL16}, s[{sWS}:{sWS+3}], s{so} offen offset:{1024*q} lds{fl}" if False else
              f"buffer_load_dwordx4 v{vL16}, s[{sWS}:{sWS+3}], s{so} offen offset:{1024*q}{fl} lds")
        a(f"s_add_u32 m0, m0, 4096\ns_add_u32 s{sT+1}, s{so}, 4096")
        a(f"buffer_load_dwordx4 v{vL16}, s[{sWS}:{sWS+3}], s{sT+1} offen{fl} lds")

    def loader(self, bars, issued, last, touches=None):
        a = self.a
        issued = list(issued)
        touches = touches or {}
        for bi, b in enumerate(bars):
            if b["need"] is not None:
                assert b["need"] in issued, (b, issued)
                n = 5*(len(issued) - 1 - issued.index(b["need"]))
                a(f"s_waitcnt vmcnt({n})")
            a("s_barrier")
            for f in b["free"]:
                nx = f + NSLOT
                if nx <= last and nx not in issued:
                    self.dma_chunk_static(nx); issued.append(nx)
            if bi in touches:
                w, base, off = touches[bi]
                l = a.label("tch")
                a(f"""s_cmp_lg_u32 s{sWAVE}, {w}
s_cbranch_scc1 {l}
s_add_u32 s{sT}, s{base}, {off}
buffer_load_dword v{vDUM}, v{vWRM}, s[{sWS}:{sWS+3}], s{sT} offen
{l}:""")

    def chunk_src(self, n):
        if n < 13: return sWO, n-8
        if n < 19: return sW1, n-13
        if n < 31: return sW2, n-19
        return sWQ, n-31
    def fifo_reg(self, e):
        return 112 + 20*e if e < 7 else 16 + 20*(e-7)
    def fifo_load(self, n, e):
        a = self.a
        r = self.fifo_reg(e)
        (b0, k0), (b1, k1) = self.chunk_src(FL[0][e]), self.chunk_src(FL[1][e])
        a(f"s_add_u32 s{sT}, s{b0}, {k0*CH}")
        if (b0, k0) != (b1, k1):
            a(f"s_add_u32 s{sT+1}, s{b1}, {k1*CH}\ns_cmp_lg_u32 s{sLAST}, 0\ns_cselect_b32 s{sT}, s{sT+1}, s{sT}")
        a(f"s_add_u32 s{sT+1}, s{sT}, 4096")
        for q in range(4):
            a(f"buffer_load_dwordx4 {vr(r+4*q,4)}, v{vL16}, s[{sWS}:{sWS+3}], s{sT} offen offset:{1024*q}")
        a(f"buffer_load_dwordx4 {vr(r+16,4)}, v{vL16}, s[{sWS}:{sWS+3}], s{sT+1} offen")

    def loader2(self, bars, last, plan, npre):
        a = self.a
        vm = VM()
        a(f"v_add_u32 v{vT}, s{sLDW}, v{vL16}")
        NE = 11
        ent = {F0+e: e for e in range(npre)}
        loadbar = {F0+e: -10 for e in range(npre)}
        free_e = list(range(npre, NE))
        nload = F0 + npre; nwrite = F0
        slotfree = set(); inlds = set(range(F0))
        wq = []
        log = []
        def wdone(c):
            nonlocal wq, free_e
            if c in wq:
                i = wq.index(c)
                n = 5*(len(wq) - 1 - i)
                a(f"s_waitcnt lgkmcnt({min(n, 15) if n <= 15 else 15})" if n <= 15 else "s_waitcnt lgkmcnt(15)")
                if n > 15:
                    i = len(wq) - 4
                for x in wq[:i+1]: free_e.append(ent[x])
                wq = wq[i+1:]
        for bi, b in enumerate(bars):
            if b["need"] is not None:
                nd = min(b["need"], last)
                assert all(c in inlds for c in range(nd+1)), (b, sorted(inlds), log)
                wdone(nd)
            a("s_barrier")
            acts = []
            for f in b["free"]: slotfree.add(f + NSLOT)
            k = plan.get(b["tag"], 0)
            def loads(k):
                nonlocal nload
                while k > 0 and nload <= last:
                    if not free_e:
                        if not wq: break
                        wdone(wq[0])
                    e = free_e.pop(0)
                    self.fifo_load(nload, e)
                    for q in range(5): vm.issue(("c", nload))
                    ent[nload] = e; loadbar[nload] = bi
                    acts.append(f"L{nload}"); nload += 1; k -= 1
                return k
            k0 = min(k, len(free_e))
            k -= k0; loads(k0)
            nw = 0
            while nwrite <= last and nwrite in slotfree and nwrite in ent and bi - loadbar[nwrite] >= WR_LAG and nw < plan.get("w" + b["tag"], 2):
                n = vm.need(("c", nwrite))
                if n is not None: a(f"s_waitcnt vmcnt({n})")
                r = self.fifo_reg(ent[nwrite])
                a(f"v_add_u32 v{vT+1}, {(nwrite % NSLOT)*CH}, v{vT}")
                for q in range(5):
                    a(f"ds_write_b128 v{vT+1}, {vr(r+4*q,4)} offset:{1024*q}")
                wq.append(nwrite); inlds.add(nwrite)
                acts.append(f"w{nwrite}"); nwrite += 1; nw += 1
            loads(k)
            log.append(f"{b['tag']}:{','.join(acts)}")
        assert nwrite == last + 1, (nwrite, last, log)
        if os.environ.get("VERBOSE"): print(" ".join(log))

    def loader3(self, bars, last, plan, f0):
        a = self.a
        vm = VM()
        a(f"v_add_u32 v{vT}, s{sLDW}, v{vL16}")
        ent = {c: e for e, c in enumerate(f0)}
        xl = {}
        for tag, cs in XFIFO.items():
            for c, e in cs:
                if c not in f0: ent[c] = e
        loaded = set(f0)
        slotfree = set(); prog = {c: 5 for c in range(15 if PRE13 else 13)}; wq = []; log = []
        for bi, b in enumerate(bars):
            if b["need"] is not None:
                nd = min(b["need"], last)
                assert all(prog.get(c, 0) == 5 for c in range(nd+1)), (b, prog, log)
                for c in range(nd, 12, -1):
                    n = vm.need(("c", c))
                    if n is not None: a(f"s_waitcnt vmcnt({n})")
                if any(c <= nd for c in wq):
                    i = max(i for i, c in enumerate(wq) if c <= nd)
                    a(f"s_waitcnt lgkmcnt({min(15, len(wq)-1-i)})")
                    wq = wq[i+1:]
            a("s_barrier")
            if last == 30 and b["tag"] == WBAT:
                l = a.label("wb")
                a(f"s_cmp_lg_u32 s{sJ}, 0\ns_cbranch_scc1 {l}\ns_cmp_lg_u32 s{sWAVE}, 7\ns_cbranch_scc1 {l}\nbuffer_wbl2 sc1\n{l}:")
            acts = []
            for f in b["free"]: slotfree.add(f + NSLOT)
            k = plan.get(b["tag"], plan["def"]); nw = plan.get("w" + b["tag"], plan["wdef"])
            thr = plan.get("t" + b["tag"], plan.get("tdef"))
            items = []
            for c in sorted(slotfree):
                if c > last or c in ent: continue
                while k > 0 and prog.get(c, 0) < 5:
                    q = prog.get(c, 0); items.append(("D", c, q)); prog[c] = q + 1; k -= 1
            witems = []
            for c in sorted(slotfree):
                if c > last or c not in loaded: continue
                while nw > 0 and prog.get(c, 0) < 5:
                    q = prog.get(c, 0); witems.append(("w", c, q)); prog[c] = q + 1; nw -= 1
            cur = None; curw = None
            def emit(it):
                nonlocal cur, curw
                kind, c, q = it
                if kind == "D":
                    base, kk = self.chunk_src(c)
                    if cur != (c, q // 4):
                        cur = (c, q // 4)
                        a(f"s_add_u32 m0, s{sLDW}, {(c % NSLOT)*CH + (q//4)*4096}\ns_add_u32 s{sT}, s{base}, {kk*CH + (q//4)*4096}")
                    if thr is not None and len(vm.q) > thr:
                        a(f"s_waitcnt vmcnt({thr})"); vm.q = vm.q[len(vm.q)-thr:] if thr else []
                    a(f"buffer_load_dwordx4 v{vL16}, s[{sWS}:{sWS+3}], s{sT} offen offset:{1024*(q%4)} lds")
                    vm.issue(("c", c))
                else:
                    if curw != c:
                        curw = c
                        n = vm.need(("x", c))
                        if n is not None: a(f"s_waitcnt vmcnt({n})")
                        a(f"v_add_u32 v{vT+1}, {(c % NSLOT)*CH}, v{vT}")
                    a(f"ds_write_b128 v{vT+1}, {vr(self.fifo_reg(ent[c])+4*q,4)} offset:{1024*q}")
                    wq.append(c)
                acts.append(f"{kind}{c}")
            for it in ([] if 'noD' in XP else items) + ([] if 'noW' in XP else witems): emit(it)
            for c, e in XFIFO.get(b["tag"], []):
                if c > last or c in f0: continue
                prev = [x for x in ent if ent[x] == e and x < c]
                assert all(prog.get(x, 0) == 5 for x in prev), (c, e)
                if any(x in wq for x in prev): a("s_waitcnt lgkmcnt(0)"); wq.clear()
                if 'noD' in XP: loaded.add(c); continue
                base, kk = self.chunk_src(c); r = self.fifo_reg(ent[c])
                a(f"s_add_u32 s{sT}, s{base}, {kk*CH}\ns_add_u32 s{sT+1}, s{base}, {kk*CH+4096}")
                for q in range(5):
                    a(f"buffer_load_dwordx4 {vr(r+4*q,4)}, v{vL16}, s[{sWS}:{sWS+3}], s{sT + q//4} offen offset:{1024*(q%4)}")
                    vm.issue(("x", c))
                loaded.add(c); acts.append(f"L{c}")
            import itertools
            log.append(f"{b['tag']}:" + ",".join(f"{k_}x{len(list(g_))}" for k_, g_ in itertools.groupby(acts)))
        assert all(prog.get(c, 0) == 5 for c in range(last+1)), log
        if os.environ.get("VERBOSE"): print(" ".join(log))

    def att_tile(self, t):
        a = self.a
        u = t % 8; cc = t // 8
        X, Y = SS[u % 2], SS[(u+1) % 2]
        e = lambda k: a(f"v_exp_f32 v{X+k}, v{X+k}")
        c = lambda k: a(f"v_cvt_pk_bf16_f32 v{P+k}, v{X+2*k}, v{X+2*k+1}")
        kt, vt = (u+2) % 8, (u+1) % 8
        vb = V1[(u+1) % 2]
        last = t == 63
        self.stamp(f"t{t}")
        upd = lambda q: a(f"v_mad_u32_u24 v{vVA+q}, s{sSLOT}, v{vMV}, v{vBV+q}")
        if u == 7 and not last: upd(2)
        e(0)
        a(f"v_cvt_pk_bf16_f32 v{P+7}, v{Y+14}, v{Y+15}")
        if u == 7 and not last: upd(3)
        e(1); e(2)
        a(f"v_mfma_f32_32x32x16_bf16 {vr(O,16)}, {vr(vb,4)}, {vr(P+4,4)}, {vr(O,16)}")
        if not last:
            a(f"ds_read_b64_tr_b16 {vr(vb,2)}, v{vVA+2} offset:{vt*2560}")
            a(f"ds_read_b64_tr_b16 {vr(vb+2,2)}, v{vVA+3} offset:{vt*2560}")
        if u == 7 and not last: upd(0); upd(1)
        c(0); e(3); e(4); c(1); e(5); e(6)
        a(f"s_waitcnt lgkmcnt({0 if last else 2})")
        if not last:
            a(f"v_mfma_f32_32x32x16_bf16 {vr(Y,16)}, {vr(K1,4)}, {vr(Q1,4)}, 0")
        if u == 6 and cc < 7:
            a(f"""s_mov_b32 s{sSLOT}, {((cc+1) % NSLOT)*CH}
v_add_u32 v{vK1}, s{sSLOT}, v{vBK1}
v_mad_u32_u24 v{vK2}, s{sSLOT}, v{vMK}, v{vBK2}""")
            if cc % 2 == 0 or cc == 1:
                n = self.avm.need(("c", cc+1))
                if t == S_FLAG: n = 0; self.avm.drain()
                if n is not None: a(f"s_waitcnt vmcnt({n})")
                a("s_barrier")
        if t == 2:
            n = self.avm.need(("c", 0))
            if n is not None: a(f"s_waitcnt vmcnt({n})")
            a("s_barrier")
        if t < 62:
            a(f"ds_read_b128 {vr(K1,4)}, v{vK1} offset:{kt*2560}")
        if t in PRIO: a(f"s_setprio {PRIO[t]}")
        self.att_round(2*t)
        c(2); e(7); e(8); c(3); e(9); e(10)
        if not last:
            a(f"v_mfma_f32_32x32x8_bf16 {vr(Y,16)}, {vr(K2,2)}, {vr(Q2,2)}, {vr(Y,16)}")
        if t < 62:
            a(f"ds_read_b64 {vr(K2,2)}, v{vK2} offset:{kt*2560}")
        self.att_side(t)
        self.att_round(2*t+1)
        c(4); e(11); e(12); c(5); e(13); e(14)
        a(f"v_mfma_f32_32x32x16_bf16 {vr(O,16)}, {vr(V0,4)}, {vr(P,4)}, {vr(O,16)}")
        if not last:
            a(f"ds_read_b64_tr_b16 {vr(V0,2)}, v{vVA} offset:{vt*2560}")
            a(f"ds_read_b64_tr_b16 {vr(V0+2,2)}, v{vVA+1} offset:{vt*2560}")
        c(6); e(15)

    def ool(self, cond, body):
        a = self.a
        lo, lb = a.label("ool"), a.label("back")
        a(f"{cond} {lo}\n{lb}:")
        sav = a.L; a.L = self.oolbuf
        a(f"{lo}:"); body(); a(f"s_branch {lb}")
        a.L = sav

    def att_round(self, slot):
        a = self.a
        if 'noside' in XP or slot not in ROUNDS: return
        kind, n, q = ROUNDS[slot]; t = slot // 2
        if kind == "S":
            if q == 0:
                a(f"""s_xor_b32 s{sT+4}, s{sG}, {n}
s_mul_i32 s{sDP}, s{sT+4}, {CH}
s_add_u32 s{sDP}, s{sDP}, s{sSRC}
s_sub_u32 s{sDP}, s{sDP}, s{sLDW}
s_mul_i32 s{sT+6}, s{sWAVE}, 2560
s_min_u32 s{sT+6}, s{sT+6}, {CH - 3072}
s_add_u32 s{sDP}, s{sDP}, s{sT+6}""")
                self.ool(f"s_cmp_eq_u32 s{sRDY}, 0\ns_cbranch_scc1", self.kv_check)
                a(f"s_add_u32 m0, s{sT+6}, {n*CH}\ns_nop 0")
            a(f"buffer_load_dwordx4 v{vL16}, s[{sWS}:{sWS+3}], s{sDP} offen offset:{1024*q} lds")
            self.avm.issue(("c", n))
        elif kind == "T":
            if q == 0:
                a(f"""s_lshl3_add_u32 s{sT}, s{sJ}, s{sWAVE}
s_mul_i32 s{sT}, s{sT}, 6144
s_mul_i32 s{sZP}, s{sG}, {AST}
s_add_u32 s{sZP}, s{sZP}, s{sT}
s_add_u32 s{sZP}, s{sZP}, {ARENA}
s_cmp_lg_u32 s{sLAST}, 0
s_cselect_b32 s{sZP}, {OOB}, s{sZP}""")
            r = self.fifo_reg(1)
            a(f"buffer_load_dwordx4 {vr(r,4)}, v{vL16 if q < 4 else vL16B}, s[{sWS}:{sWS+3}], s{sZP} offen offset:{1024*(q%4)}")
            self.avm.issue(("t", n))
        elif kind == "D":
            if q == 0:
                if n >= NSLOT: assert slot >= 2*(8*(n + 1 - NSLOT + 1) + 6), (slot, n)
                if n >= 7: assert t > S_POLL + 2
                if n < 8:
                    a(f"""s_add_u32 s{sT+4}, s{sROLE}, {n}
s_xor_b32 s{sT+4}, s{sT+4}, s{sG}
s_and_b32 s{sT+4}, s{sT+4}, 7
s_mul_i32 s{sDP}, s{sT+4}, {CH}
s_add_u32 s{sDP}, s{sDP}, s{sSRC}""")
                    self.ool(f"s_cmp_eq_u32 s{sRDY}, 0\ns_cbranch_scc1", self.kv_check)
                    if n == 7: a(f"s_cmp_lg_u32 s{sROLE}, 0\ns_cselect_b32 s{sDP}, s{sWO}, s{sDP}")
                else:
                    a(f"s_mul_i32 s{sDP}, s{sROLE}, {CH}\ns_add_u32 s{sDP}, s{sDP}, s{sWO}\ns_add_u32 s{sDP}, s{sDP}, {(n-8)*CH}")
                a(f"s_add_u32 m0, s{sLDR}, {(n % NSLOT)*CH}\ns_nop 0")
            if q < 4:
                a(f"buffer_load_dwordx4 v{vL16}, s[{sWS}:{sWS+3}], s{sDP} offen offset:{1024*q} lds")
            else:
                a(f"s_add_u32 m0, m0, 4096\ns_nop 0\nbuffer_load_dwordx4 v{vL16B}, s[{sWS}:{sWS+3}], s{sDP} offen lds")
            self.avm.issue(("c", n))
        else:
            assert t > (WQ_POLL if (WQ_POLL > 0 and FL[0][n] >= 31 and n in (E_T0, E_T1)) else S_POLL) + 2
            if q == 0:
                (b0, k0), (b1, k1) = self.chunk_src(FL[0][n]), self.chunk_src(FL[1][n])
                a(f"s_add_u32 s{sFP}, s{b0}, {k0*CH}")
                if (b0, k0) != (b1, k1):
                    a(f"s_add_u32 s{sT}, s{b1}, {k1*CH}\ns_cmp_lg_u32 s{sLAST}, 0\ns_cselect_b32 s{sFP}, s{sT}, s{sFP}")
                if n == E_RES: src = f"s{sRES}"
                elif n in (E_C13, E_C14): a(f"s_add_u32 s{sT}, s{sW1}, {(n-E_C13)*CH}"); src = f"s{sT}"
                elif n in (E_T0, E_T1): a(f"s_add_u32 s{sT}, s{sAR}, {(n-E_T0)*2048}"); src = f"s{sT}"
                else: src = f"{OOB:#x}"
                a(f"s_cmp_eq_u32 s{sROLE}, 0\ns_cselect_b32 s{sFP}, {src}, s{sFP}")
            r = self.fifo_reg(n) + 4*q
            fl = " sc1" if n == E_RES else ""
            v0_, v1_ = (vRS, vRSB) if n == E_RES else (vL16, vL16B)
            if q < 4: a(f"buffer_load_dwordx4 {vr(r,4)}, v{v0_}, s[{sWS}:{sWS+3}], s{sFP} offen offset:{1024*q}{fl}")
            else: a(f"buffer_load_dwordx4 {vr(r,4)}, v{v1_}, s[{sWS}:{sWS+3}], s{sFP} offen{fl}")
            self.avm.issue(("f", n))

    def att_side(self, t):
        a = self.a
        if 'noside' in XP: return
        if t == XC_AT:
            a(f"""s_lshl_b32 s{sT}, s{sG}, 7
s_add_u32 s{sT}, s{sT}, {XCC}
buffer_load_dword v{vXC+1}, v{vXC+1}, s[{sWS}:{sWS+3}], s{sT} offen sc1""")
            self.avm.issue("xc")
        if any(k in "SD" and 1 < n < 8 and q == 0 and sl // 2 == t + 2 for sl, (k, n, q) in ROUNDS.items()):
            assert not (S_POLL - 2 <= t <= S_POLL + 2)
            self.ool(f"s_cmp_eq_u32 s{sRDY}, 0\ns_cbranch_scc1", self.kv_flags_load)
        self.strip_side(t)
        if t == RESX_AT:
            def resx():
                self.set_tl_64()
                srd(a, sSS, sXP, S*D*2)
                a(f"""s_lshl3_add_u32 s{sT}, s{sG}, s{sTL}
s_mul_i32 s{sT}, s{sT}, 40960
s_mul_i32 s{sT+1}, s{sCB}, 160
s_add_u32 s{sT}, s{sT}, s{sT+1}
s_lshl_b32 s{sT+1}, s{sKH}, 4
v_and_b32 v{vDUM}, 15, v{vLANE}
v_add_u32 v{vDUM}, s{sT+1}, v{vDUM}
v_mul_u32_u24 v{vDUM}, 1280, v{vDUM}
v_lshrrev_b32 v30, 4, v{vLANE}
v_lshl_add_u32 v31, v30, 3, v{vDUM}
v_lshl_add_u32 v{vDUM}, v30, 4, v{vDUM}
buffer_load_dwordx4 {vr(RX,4)}, v{vDUM}, s[{sSS}:{sSS+3}], s{sT} offen
buffer_load_dwordx4 {vr(RX+4,4)}, v{vDUM}, s[{sSS}:{sSS+3}], s{sT} offen offset:64
buffer_load_dwordx2 {vr(RX+8,2)}, v31, s[{sSS}:{sSS+3}], s{sT} offen offset:128
s_mov_b32 s{sTL}, s{sWAVE}""")
            assert all(sl < 2*t for sl, (k, n, q) in ROUNDS.items() if k == "F" and n == 0)
            self.ool(f"s_or_b32 s{sT}, s{sROLE}, s{sLAST}\ns_cbranch_scc0", resx)

    def pub_addr(self, stt, layer):
        self.a(f"""s_lshr_b32 s{sPUB}, s{stt}, 2
s_lshl_b32 s{sPUB}, s{sPUB}, 7
s_and_b32 s{sT}, s{stt}, 3
s_lshl2_add_u32 s{sPUB}, s{sT}, s{sPUB}
s_lshl_b32 s{sT}, s{sCB2}, 11
s_add_u32 s{sPUB}, s{sPUB}, s{sT}
s_add_u32 s{sPUB}, s{sPUB}, {QF + 32768*layer}""")

    def kv_flags_load(self):
        self.a(f"""buffer_load_dword v{vPL}, v{vXC}, s[{sWS}:{sWS+3}], s{sQFK} offen sc1
buffer_load_dword v{vPL+1}, v{vXC}, s[{sWS}:{sWS+3}], s{sQFV} offen sc1""")
    def kv_check(self):
        a = self.a
        l, lp = a.label("kc"), a.label("kp")
        a(f"""s_lshl_b32 s{sT+4}, s{sT+4}, 3
s_mov_b32 s{sT+5}, 0x100000
{lp}:
s_waitcnt vmcnt(0)
v_and_b32 v{vPL}, v{vPL}, v{vPL+1}
v_cmp_ne_u32 s[{sT+2}:{sT+3}], 0, v{vPL}
s_cmp_eq_u64 s[{sT+2}:{sT+3}], -1
s_cselect_b32 s{sRDY}, 1, 0
s_lshr_b64 s[{sT+2}:{sT+3}], s[{sT+2}:{sT+3}], s{sT+4}
s_and_b32 s{sT+2}, s{sT+2}, 0xff
s_cmp_eq_u32 s{sT+2}, 0xff
s_cbranch_scc1 {l}
s_sub_u32 s{sT+5}, s{sT+5}, 1
s_cbranch_scc1 {l}""")
        self.kv_flags_load()
        a(f"s_branch {lp}\n{l}:")

    def strip_side(self, t):
        a = self.a
        def only(ty, f):
            self.ool(f"s_cmp_ge_u32 s{sTy}, {ty}\ns_cbranch_scc1", f)
        def two(f4, f10):
            def body():
                l = a.label("st")
                f4()
                a(f"s_cmp_eq_u32 s{sTy}, 1\ns_cbranch_scc1 {l}")
                f10()
                a(f"{l}:")
            only(1, body)
        def loads(js):
            for j in js:
                a(f"""s_add_u32 s{sT+1}, s{sSo}, s{sBp}
buffer_load_dwordx2 {vr(SR+4*j,2)}, v{vSO}, s[{sSS}:{sSS+3}], s{sSo} offen
buffer_load_dwordx2 {vr(SR+4*j+2,2)}, v{vSO}, s[{sSS}:{sSS+3}], s{sT+1} offen
s_add_u32 s{sSo}, s{sSo}, s{sA}""")
        assert S_WR >= 14
        wr = lambda ks: [a(f"ds_write_b64 v{vSC}, {vr(SR+2*k,2)} offset:{512*(k % 14)}") for k in ks]
        rd = lambda ks: [a(f"ds_read_b64_tr_b16 {vr(SR+2*k,2)}, v{vSC} offset:{512*(k % 14)}") for k in ks]
        def st(js):
            for j in js:
                a(f"buffer_store_dwordx4 {vr(SR+4*j,4)}, v{vSD}, s[{sWS}:{sWS+3}], s{sDs} offen sc0 sc1\ns_add_u32 s{sDs}, s{sDs}, s{sSt if j % 2 else sSt0}")
        def aux():
            a(f"""s_cmp_ge_u32 s{sQd}, 2
s_cselect_b32 s{sT}, -1, 0
v_and_b32 v{CSA+1}, 0xffff0000, v{CSA}
v_sub_f32 v{CSA+3}, v{CSA}, v{CSA+1}
v_lshrrev_b32 v{CSA+2}, 16, v{CSA+1}
v_or_b32 v{CSA+2}, v{CSA+2}, v{CSA+1}
v_lshrrev_b32 v{CSA+3}, 16, v{CSA+3}
v_and_b32 v{vBI}, s{sT}, v{vBI}
v_lshl_or_b32 v{CSA+3}, v{vBI}, 16, v{CSA+3}
v_lshlrev_b32 v{CSA}, 30, v{vH}
v_add_u32 v{CSA}, v{CSA}, v{vL16}
buffer_store_dwordx2 {vr(CSA+2,2)}, v{CSA}, s[{sWS}:{sWS+3}], s{sAx} offen sc0 sc1""")
        mf = lambda js: [a(f"v_mfma_f32_32x32x16_bf16 {vr(CSA,16)}, {vr(ONE,4)}, {vr(SR+4*j,4)}, {'0' if j == 0 else vr(CSA,16)}") for j in js]
        def either(f1, f2):
            def body():
                l, le = a.label("e2"), a.label("ee")
                a(f"s_cmp_eq_u32 s{sTy}, 2\ns_cbranch_scc1 {l}")
                f1()
                a(f"s_branch {le}\n{l}:")
                f2()
                a(f"{le}:")
            only(1, body)
        def loads16(sg):
            a(f"""s_add_u32 s{sT+1}, s{sSo}, s{sBp}
buffer_load_dwordx4 {vr(SR+8*sg,4)}, v{vSO}, s[{sSS}:{sSS+3}], s{sSo} offen
buffer_load_dwordx4 {vr(SR+8*sg+4,4)}, v{vSO}, s[{sSS}:{sSS+3}], s{sT+1} offen
s_add_u32 s{sSo}, s{sSo}, s{sA}""")
        def wr16():
            for sg in range(2):
                for ab in range(2):
                    for p in range(2):
                        a(f"ds_write_b64 v{vSC}, {vr(SR+8*sg+4*p+2*ab,2)} offset:{512*(4*sg+2*ab+p)}")
        k = t - S_LD
        if k in (0, 1): either(lambda: loads16(k), lambda: loads([2*k, 2*k+1]))
        if k in (2, 3, 4): only(2, lambda: loads([2*k, 2*k+1]))
        k = t - S_WR
        if k == 0: either(lambda: (a("s_waitcnt vmcnt(0)"), wr16()), lambda: (a("s_waitcnt vmcnt(0)"), wr(range(8))))
        if k == 1: two(lambda: rd(range(8)), lambda: wr(range(8, 14)))
        if k == 2: two(lambda: st(range(4)), lambda: (wr(range(14, 20)), rd(range(8, 14))))
        if k == 3: only(2, lambda: (rd(range(14, 20)), st(range(4, 7)), mf(range(0, 3))))
        if k == 4: only(2, lambda: (st(range(7, 10)), mf(range(3, 6))))
        if k == 5: only(2, lambda: mf(range(6, 10)))
        if k == 6: only(2, aux)
        if t == S_FLAG:
            self.ool(f"s_or_b32 s{sT}, s{sWAVE}, s{sLAST}\ns_cbranch_scc0", lambda: a(f"""s_lshl_b32 s{sT}, s2, 2
s_add_u32 s{sT}, s{sT}, {WFL}
s_mov_b64 exec, 1
buffer_store_dword v{vMK}, v{vL16}, s[{sWS}:{sWS+3}], s{sT} offen sc0 sc1
s_mov_b64 exec, -1"""))
        assert WFL == 0
        chk = f"""v_and_b32 v{vPL}, v{vPL}, v{vPL+1}
v_and_b32 v{vPL+2}, v{vPL+2}, v{vPL+3}
v_and_b32 v{vPL}, v{vPL}, v{vPL+2}
v_cmp_eq_u32 vcc, 0, v{vPL}"""
        ld = f"buffer_load_dwordx4 {vr(vPL,4)}, v{vL16}, s[{sWS}:{sWS+3}], 0 offen sc1"
        ldq = f"buffer_load_dword v{vPL+2}, v{vXC}, s[{sWS}:{sWS+3}], s{sT} offen sc1"
        adq = f"s_lshl_b32 s{sT}, s{sCB2}, 11\ns_add_u32 s{sT}, s{sT}, {QF}"
        if t == WQ_POLL:
            a(adq + "\n" + ldq); self.avm.issue("wq")
        if t == WQ_POLL + 2:
            n = self.avm.need("wq")
            def retryq():
                l, lp = a.label("qd"), a.label("qq")
                a(f"""{adq}
s_mov_b32 s{sT+1}, 0x100000
{lp}:
{ldq}
s_sub_u32 s{sT+1}, s{sT+1}, 1
s_cbranch_scc1 {l}
s_waitcnt vmcnt(0)
v_cmp_eq_u32 vcc, 0, v{vPL+2}
s_cbranch_vccnz {lp}
{l}:""")
            self.ool((f"s_waitcnt vmcnt({n})\n" if n is not None else "") + f"v_cmp_eq_u32 vcc, 0, v{vPL+2}\ns_cbranch_vccnz", retryq)
        if t == S_POLL:
            a(ld); self.avm.issue("pl")
        if t == S_POLL + 2:
            n = self.avm.need("pl")
            def retry():
                l, lp = a.label("pd"), a.label("pp")
                a(f"""s_mov_b32 s{sT+1}, 0x100000
{lp}:
{ld}
s_sub_u32 s{sT+1}, s{sT+1}, 1
s_cbranch_scc1 {l}
s_waitcnt vmcnt(0)
{chk}
s_cbranch_vccnz {lp}
{l}:""")
            self.ool(f"s_waitcnt vmcnt({n})\n{chk}\ns_cbranch_vccnz", retry)

    def strip_setup(self):
        a = self.a
        b4, r, sw, i, t0, t1 = 192, 193, 194, 195, 196, 197
        U = [90, 91, 93, 94]
        a(f"""s_load_dwordx2 s[52:53], s[0:1], 16
s_load_dwordx2 s[54:55], s[0:1], 48
s_load_dwordx4 s[56:59], s[0:1], 32
s_mov_b32 s{sTy}, 0
v_bfe_u32 v{b4}, v{vLANE}, 4, 1
v_bfe_u32 v{r}, v{vLANE}, 2, 2
v_and_b32 v{sw}, 1, v{vLANE}
v_lshlrev_b32 v{sw}, 1, v{sw}
v_bfe_u32 v{i}, v{vLANE}, 1, 1
v_or_b32 v{sw}, v{sw}, v{i}
v_and_b32 v{i}, 31, v{vLANE}
s_lshl_b32 s{sT}, s{sWAVE}, 12
s_add_u32 s{sT}, s{sT}, {7168 - 4096}
s_cmp_eq_u32 s{sWAVE}, 0
s_cselect_b32 s{sT}, 0, s{sT}
v_lshlrev_b32 v{vSC}, 3, v{vLANE}
v_add_u32 v{vSC}, s{sT}, v{vSC}
v_mov_b32 v{ONE}, 0x3f803f80
v_mov_b32 v{ONE+1}, 0x3f803f80
v_mov_b32 v{ONE+2}, 0x3f803f80
v_mov_b32 v{ONE+3}, 0x3f803f80
s_waitcnt lgkmcnt(0)
s_mov_b32 s{sSS}, s56
s_and_b32 s{sSS+1}, s57, 0xffff
s_mov_b32 s{sSS+2}, 0
s_mov_b32 s{sSS+3}, 0x20000
s_mov_b32 s{sBS}, s58
s_and_b32 s{sBS+1}, s59, 0xffff
s_mov_b32 s{sBS+2}, {F*2}
s_mov_b32 s{sBS+3}, 0x20000
s_cmp_lg_u32 s{sWAVE}, 0
s_cbranch_scc1 L_st_n80a
s_cmp_ge_u32 s2, 240
s_cbranch_scc1 L_st_done
s_cmp_ge_u32 s2, 192
s_cbranch_scc1 L_st_n80b
s_mov_b32 s{sTy}, 2
s_mov_b32 s{sSS}, s56
s_and_b32 s{sSS+1}, s57, 0xffff
s_mov_b32 s{sSS+2}, {D*F*2}
s_bfe_u32 s{U[0]}, s2, 0x10002
s_mul_i32 s{U[0]}, s{U[0]}, 24
s_add_u32 s{U[0]}, s{U[0]}, s{sJ}              ; strip
s_and_b32 s{sQd}, s2, 3
s_mul_i32 s{U[1]}, s{U[0]}, 0x5556
s_lshr_b32 s{U[1]}, s{U[1]}, 16            ; cb
s_mul_i32 s{U[2]}, s{U[1]}, 3
s_sub_u32 s{U[2]}, s{U[0]}, s{U[2]}           ; tile
s_lshl_b32 s{U[0]}, s{U[0]}, 5                 ; col0
v_lshlrev_b32 v{t0}, 4, v{b4}
v_lshl_add_u32 v{t0}, v{sw}, 2, v{t0}
v_add_u32 v{t0}, s{U[0]}, v{t0}
v_lshl_add_u32 v{t1}, v{vH}, 3, v{r}
v_mul_u32_u24 v{vSO}, 3072, v{t1}
v_lshl_add_u32 v{vSO}, v{t0}, 1, v{vSO}
s_mov_b32 s{sA}, {16*3072}
s_mov_b32 s{sBp}, {4*3072}
s_mul_i32 s{sSo}, s{sQd}, {160*3072}
v_and_b32 v{t0}, 19, v{i}
v_bfe_u32 v{t1}, v{i}, 2, 1
v_lshl_or_b32 v{t0}, v{t1}, 3, v{t0}
v_bfe_u32 v{t1}, v{i}, 3, 1
v_lshl_or_b32 v{t0}, v{t1}, 2, v{t0}
v_add_u32 v{t0}, s{U[0]}, v{t0}
v_lshlrev_b32 v{vBI}, 1, v{t0}
buffer_load_ushort v{vBI}, v{vBI}, s[{sBS}:{sBS+3}], 0 offen
v_mov_b32 v{vSD}, v{vL16}
s_mul_i32 s{sDs}, s{U[1]}, 122880
s_mul_i32 s{sT}, s{sQd}, 30720
s_add_u32 s{sDs}, s{sDs}, s{sT}
s_lshl_b32 s{sT}, s{U[2]}, 10
s_add_u32 s{sDs}, s{sDs}, s{sT}
s_add_u32 s{sDs}, s{sDs}, {W1_F}
s_mov_b32 s{sSt}, 3072
s_lshl_b32 s{sAx}, s{U[1]}, 12
s_add_u32 s{sAx}, s{sAx}, s{sT}
s_lshr_b32 s{sT}, s{sQd}, 1
s_lshl_b32 s{sT}, s{sT}, 9
s_add_u32 s{sAx}, s{sAx}, s{sT}
s_and_b32 s{sT}, s{sQd}, 1
s_lshl_b32 s{sT}, s{sT}, 3
s_add_u32 s{sAx}, s{sAx}, s{sT}
s_add_u32 s{sAx}, s{sAx}, {AUX1}
s_mov_b32 s{sSt0}, s{sSt}
s_branch L_st_done
L_st_n80b:
s_sub_u32 s{sT}, s2, 192
s_mul_i32 s{U[0]}, s{sT}, 0x5556
s_lshr_b32 s{U[0]}, s{U[0]}, 16
s_mul_i32 s{U[1]}, s{U[0]}, 3
s_sub_u32 s{U[1]}, s{sT}, s{U[1]}          ; tile
s_and_b32 s{U[2]}, s{U[0]}, 7                ; cb
s_lshr_b32 s{U[3]}, s{U[0]}, 3
s_add_u32 s{U[3]}, s{U[3]}, 32
s_branch L_st_n80
L_st_n80a:
s_and_b32 s{U[2]}, s{sJ}, 7
s_and_b32 s{U[3]}, s{sJ}, 24
s_add_u32 s{U[3]}, s{U[3]}, s{sG}
s_sub_u32 s{U[1]}, s{sWAVE}, 1
L_st_n80:
s_mov_b32 s{sTy}, 1
s_mov_b32 s{sBp}, {4*1280}
s_cmp_lt_u32 s{U[3]}, 10
s_cbranch_scc1 L_st_wo
s_sub_u32 s{U[3]}, s{U[3]}, 10
s_mov_b32 s{sSS}, s54
s_and_b32 s{sSS+1}, s55, 0xffff
s_mov_b32 s{sSS+2}, {F*D*2}
s_mov_b32 s{sA}, {32*1280}
s_mul_i32 s{sSo}, s{U[3]}, {64*1280}
s_mul_i32 s{sDs}, s{U[2]}, 245760
s_add_u32 s{sDs}, s{sDs}, {W2_F}
s_mov_b32 s{sQd}, 16
s_mov_b32 s{sAx}, 8
s_branch L_st_go
L_st_wo:
s_mov_b32 s{sSS}, s52
s_and_b32 s{sSS+1}, s53, 0xffff
s_mov_b32 s{sSS+2}, {D*D*2}
s_mul_i32 s{sDs}, s{U[2]}, 102400
s_add_u32 s{sDs}, s{sDs}, {WO_F}
s_mov_b32 s{sA}, {40*1280}
s_mul_i32 s{sSo}, s{U[3]}, {80*1280}
s_mov_b32 s{sQd}, 20
s_mov_b32 s{sAx}, 8
s_cmp_lt_u32 s{U[3]}, 8
s_cbranch_scc1 L_st_go
s_mov_b32 s{sA}, {160*1280}
s_mov_b32 s{sBp}, {20*1280}
s_sub_u32 s{sSo}, s{U[3]}, 8
s_mul_i32 s{sSo}, s{sSo}, {320*1280}
s_add_u32 s{sSo}, s{sSo}, {16*1280}
s_mov_b32 s{sQd}, 80
s_mov_b32 s{sAx}, 40
L_st_go:
v_mul_lo_u32 v{vSO}, s{sQd}, v{vH}
v_mul_lo_u32 v{t0}, s{sAx}, v{b4}
v_add3_u32 v{vSO}, v{vSO}, v{t0}, v{r}
v_mul_u32_u24 v{vSO}, 1280, v{vSO}
s_mul_i32 s{sT}, s{U[2]}, 160
s_lshl_b32 s{sT+1}, s{U[1]}, 6
s_add_u32 s{sT}, s{sT}, s{sT+1}
s_add_u32 s{sSo}, s{sSo}, s{sT}
s_mul_i32 s{U[3]}, s{U[3]}, 10240
s_add_u32 s{sDs}, s{sDs}, s{U[3]}
s_lshl_b32 s{sT}, s{U[1]}, 11
s_add_u32 s{sDs}, s{sDs}, s{sT}
s_cmp_eq_u32 s{U[1]}, 2
s_cselect_b32 s{sT+1}, 8, 16
s_mov_b32 s{sSt0}, {OOB}
s_cselect_b32 s{sSt0}, s{sSt0}, 1024
s_sub_u32 s{sSt}, 5120, s{sSt0}
v_and_b32 v{t0}, 3, v{vLANE}
v_mul_lo_u32 v{t0}, s{sT+1}, v{t0}
v_add_u32 v{vSO}, v{vSO}, v{t0}
v_mov_b32 v{vSD}, v{vL16}
L_st_done:
""")
        a("s_load_dwordx2 s[52:53], s[0:1], 56\ns_waitcnt lgkmcnt(0)")
        srd(a, sB2, 52, D*2)

    def split3(self, m):
        a = self.a
        a(f"""
v_sub_f32 v{vT}, 0, v{m}
v_and_b32 v{vT+1}, 0xffff0000, v{vT}
v_sub_f32 v{vT}, v{vT}, v{vT+1}
v_and_b32 v{vT+2}, 0xffff0000, v{vT}
v_sub_f32 v{vT}, v{vT}, v{vT+2}
v_lshrrev_b32 v{vT+1}, 16, v{vT+1}
v_cmp_gt_u32 vcc, 32, v{vLANE}
v_or_b32 v{vT+1}, v{vT+1}, v{vT+2}
v_lshrrev_b32 v{vT}, 16, v{vT}
v_cndmask_b32 v{Q2}, v{vT+1}, v{Q2}, vcc
v_cndmask_b32 v{Q2+1}, v{vT}, v{Q2+1}, vcc
""")

    def rowmax16(self, X, dst, init=None):
        a = self.a
        if init is None:
            a(f"v_max3_f32 v{dst}, v{X}, v{X+1}, v{X+2}")
            a(f"v_max_f32 v{dst}, v{dst}, v{X+3}")
            k0 = 4
        else:
            k0 = 0
        for k in range(k0, 16, 2):
            a(f"v_max3_f32 v{dst}, v{dst}, v{X+k}, v{X+k+1}")
    def crosshalf_max(self, m):
        a = self.a
        a(f"""v_mov_b32 v{vT}, v{m}
s_nop 1
v_permlane32_swap_b32 v{m}, v{vT}
s_nop 1
v_max_f32 v{m}, v{m}, v{vT}""")

    def tpos(self, dst, tok, tmp):
        self.a(f"""v_and_b32 v{dst}, 3, v{tok}
v_bfe_u32 v{tmp}, v{tok}, 3, 1
v_lshl_or_b32 v{dst}, v{tmp}, 2, v{dst}
v_bfe_u32 v{tmp}, v{tok}, 2, 1
v_lshl_or_b32 v{dst}, v{tmp}, 3, v{dst}
v_and_b32 v{tmp}, 16, v{tok}
v_or_b32 v{dst}, v{dst}, v{tmp}
v_xor_b32 v{dst}, {8 + 256}, v{dst}
v_lshlrev_b32 v{dst}, 3, v{dst}""")

    def attention(self):
        a = self.a
        a.c("================ attention")
        l1, l2, l3 = a.label("p1"), a.label("p2"), a.label("p3")
        a(f"""
v_and_b32 v{vT}, 19, v{vLANE}
v_bfe_u32 v{vT+1}, v{vLANE}, 2, 1
v_lshl_or_b32 v{vT}, v{vT+1}, 3, v{vT}
v_bfe_u32 v{vT+1}, v{vLANE}, 3, 1
v_lshl_or_b32 v{vT}, v{vT+1}, 2, v{vT}        ; pi
v_lshlrev_b32 v{vT+1}, 3, v{vH}
v_xor_b32 v{vT+1}, v{vT+1}, v{vT}
v_lshlrev_b32 v{vT+1}, 4, v{vT+1}
v_lshl_add_u32 v{vBK1}, v{vH}, 9, v{vT+1}      ; K1 base
""")
        self.tpos(vBK2, vT, vT+1)
        a(f"""v_lshlrev_b32 v{vT}, 30, v{vH}
v_add_u32 v31, v{vT}, v{vBK2}
v_add_u32 v30, v{vT}, v{vTL}""")
        a(f"""
s_mov_b32 s{sTL}, s{sWAVE}
s_mul_i32 s{sT}, s{sWAVE}, 2560
s_add_u32 s{sT}, s{sT}, {MISC}
v_lshlrev_b32 v{vT}, 3, v{vLANE}
v_add_u32 v{vT}, s{sT}, v{vT}
v_and_b32 v{vT+1}, 7, v{vLANE}
v_cmp_eq_u32 vcc, 2, v{vT+1}
v_mov_b32 v22, 0x3f803f80
v_mov_b32 v23, 0x3f80
v_cndmask_b32 v{vT+3}, 0, v22, vcc
v_cmp_eq_u32 vcc, 0, v{vT+1}
v_lshrrev_b32 v{vXC}, 2, v{vLANE}
v_lshlrev_b32 v{vXC}, 5, v{vXC}
v_and_or_b32 v{vXC}, v{vLANE}, 3, v{vXC}
v_lshlrev_b32 v{vXC}, 2, v{vXC}
v_cndmask_b32 v{vT+2}, v{vT+3}, v23, vcc
ds_write_b64 v{vT}, {vr(vT+2,2)}
v_mov_b32 v{vT+1}, {MISC + 16}
v_cmp_gt_u32 vcc, 32, v{vLANE}
v_sub_u32 v{vMK}, 1, v{vH}
s_nop 0
v_cndmask_b32 v{vBK2}, v{vT+1}, v{vBK2}, vcc     ; K2 base
""")
        def rest():
            a(f"""
v_bfe_u32 v{vT}, v{vLANE}, 2, 2               ; r
v_and_b32 v{vT+1}, 1, v{vLANE}                 ; c&1
v_xor_b32 v{vT+2}, v{vT+1}, v{vH}
v_lshl_add_u32 v{vT+2}, v{vT+2}, 3, v{vT}
v_lshlrev_b32 v{vT+2}, 4, v{vT+2}
v_lshl_add_u32 v{vT+2}, v{vT+1}, 9, v{vT+2}
v_bfe_u32 v{vT+1}, v{vLANE}, 1, 1
v_lshl_add_u32 v{vT+2}, v{vT+1}, 3, v{vT+2}    ; main (m=0,p=0) - 1024
v_lshlrev_b32 v{vT}, 3, v{vT}
v_lshl_add_u32 v{vT}, v{vH}, 5, v{vT}
v_xor_b32 v{vT+1}, 1, v{vT+1}
v_lshlrev_b32 v{vT+1}, 3, v{vT+1}
v_and_b32 v{vT+3}, 16, v{vLANE}
v_cmp_eq_u32 s[{sT}:{sT+1}], 0, v{vT+3}
v_and_b32 v{vT+3}, 19, v{vLANE}
v_cmp_lt_u32 vcc, 16, v{vT+3}
v_mov_b32 v{vT+3}, 1
s_nop 0
v_cndmask_b32 v{vMV}, v{vT+3}, 0, vcc
""")
            for m in range(2):
                for p in range(2):
                    d = vBV + 2*m + p
                    a(f"""v_add_u32 v22, {1024 + 256*m + 64*p}, v{vT+2}
v_add_u32 v23, {2048 + 256 + 128*m + 64*(1-p)}, v{vT}
v_add_u32 v{vT+3}, {MISC + 64*(1-p) + 128*(1-m)}, v{vT+1}
v_cndmask_b32 v{d}, v23, v22, s[{sT}:{sT+1}]
v_cndmask_b32 v{d}, v{d}, v{vT+3}, vcc
v_mov_b32 v{vVA+2*m+p}, v{d}""")
            a(f"v_mov_b32 v{vK1}, v{vBK1}\nv_mov_b32 v{vK2}, v{vBK2}")
            for k in range(16): a(f"v_mov_b32 v{O+k}, 0")
            for k in range(4): a(f"v_mov_b32 v{V1[1]+k}, 0")
            for k in range(4): a(f"v_mov_b32 v{P+4+k}, 0")
            a(f"v_mov_b32 v{SS[1]+14}, 0\nv_mov_b32 v{SS[1]+15}, 0")
            a(f"""
s_and_b32 s{sT+1}, s{sWAVE}, 3
s_lshl2_add_u32 s{sT}, s{sJ}, s{sT+1}          ; q
s_mul_i32 s{sT}, s{sT}, 6528
s_add_u32 s{sAR}, s{sAR}, s{sT}
s_lshl1_add_u32 s{sT}, s{sRB}, s{sT2}
s_mul_i32 s{sT}, s{sT}, 40960
s_mul_i32 s{sT+1}, s{sCB}, 5120
s_add_u32 s{sRES}, s{sRES}, s{sT}
s_add_u32 s{sRES}, s{sRES}, s{sT+1}
v_add_u32 v{vL16B}, 4096, v{vL16}
v_and_b32 v{vXC+1}, 31, v{vLANE}
v_lshlrev_b32 v{vXC+1}, 2, v{vXC+1}
s_lshr_b32 s{sT+6}, s{sJ}, 1
s_add_u32 s{sT+6}, s{sT+6}, 32
s_mul_i32 s{sT+6}, s{sT+6}, 163840
s_lshl3_add_u32 s{sT+7}, s{sG}, s{sWAVE}
s_mul_i32 s{sT+7}, s{sT+7}, 2560
s_add_u32 s{sT+6}, s{sT+6}, s{sT+7}
s_add_u32 s{sT+6}, s{sT+6}, s{sQIN}
s_and_b32 s{sT+7}, s{sJ}, 1
s_lshl_b32 s{sT+8}, s{sT+7}, 10
s_add_u32 s{sT+8}, s{sT+8}, s{sT+6}          ; Q main
s_lshl_b32 s{sT+7}, s{sT+7}, 8
s_add_u32 s{sT+7}, s{sT+7}, s{sT+6}          ; Q tail
s_mul_i32 s{sT+9}, s{sJ}, 163840
s_add_u32 s{sT+9}, s{sT+9}, s{sQIN}
s_mul_i32 s{sT+6}, s{sG}, {CH}
s_add_u32 s{sT+9}, s{sT+9}, s{sT+6}          ; first K/V chunk (own row block)
""")
        a(f"""s_mov_b32 s{sTy}, 0
s_cmp_ge_u32 s{sWAVE}, 4
s_cbranch_scc1 {l1}
v_mov_b32 v{vT}, 0
s_waitcnt vmcnt(0)
s_mov_b64 exec, 1
s_cmp_eq_u32 s{sLAST}, 0
s_cbranch_scc1 {l1}g
s_cmp_lg_u32 s{sSLOW}, 0
s_cbranch_scc1 {l1}s
buffer_store_dword v{vMK}, v{vT}, s[{sWS}:{sWS+3}], s{sRDY} offen
s_branch {l1}g
{l1}s:
buffer_store_dword v{vMK}, v{vT}, s[{sWS}:{sWS+3}], s{sRDY} offen sc0 sc1
{l1}g:
buffer_store_dword v{vMK}, v{vT}, s[{sWS}:{sWS+3}], s{sPUB} offen sc0 sc1
s_mov_b64 exec, -1
s_barrier
""")
        self.stamp("pub")
        a(f"s_cmp_lg_u32 s{sLAST}, 0\ns_cbranch_scc1 L_st_skip")
        self.strip_setup()
        a("L_st_skip:")
        rest()
        lp = a.label("qp")
        a(f"""s_branch {l2}
{l1}:""")
        rest()
        a(f"""s_cmp_lg_u32 s{sWAVE}, 4
s_cbranch_scc1 {l1}o
v_lshrrev_b32 v{vPL+1}, 3, v{vLANE}
v_mov_b32 v{vPL+2}, s{sPUB}
v_mov_b32 v{vPL+3}, s{sQFK}
v_cmp_eq_u32 vcc, 1, v{vPL+1}
v_and_b32 v{vPL}, 7, v{vLANE}
s_nop 0
v_cndmask_b32 v{vPL+2}, v{vPL+2}, v{vPL+3}, vcc
v_mov_b32 v{vPL+3}, s{sQFV}
v_cmp_eq_u32 vcc, 2, v{vPL+1}
s_lshl_b32 s{sT+4}, s{sG}, 8
s_nop 0
v_cndmask_b32 v{vPL+2}, v{vPL+2}, v{vPL+3}, vcc     ; row base
s_cmp_lg_u32 s{sLAST}, 0
s_cbranch_scc1 {l1}l
v_and_b32 v{vPL+1}, 0x8c, v{vXC}
v_add_u32 v{vPL+2}, v{vPL+2}, v{vPL+1}
s_branch {l1}p
{l1}l:
v_bfe_u32 v{vPL+2}, v{vPL+2}, 11, 4
v_lshlrev_b32 v{vPL+2}, 2, v{vPL+2}
v_lshl_add_u32 v{vPL+2}, v{vPL}, 7, v{vPL+2}
s_add_u32 s{sT+4}, s{sFLG}, 3072
{l1}p:
s_mov_b32 s{sT+5}, 0x100000
s_barrier
{lp}:
buffer_load_dword v{vPL}, v{vPL+2}, s[{sWS}:{sWS+3}], s{sT+4} offen sc1
s_sub_u32 s{sT+5}, s{sT+5}, 1
s_cbranch_scc1 {l2}
s_waitcnt vmcnt(0)
v_cmp_eq_u32 vcc, 0, v{vPL}
s_cbranch_vccnz {lp}
s_branch {l2}
{l1}o:
s_barrier
{l2}:
s_load_dwordx2 s[{sXP}:{sXP+1}], s[0:1], 0
s_barrier
""")
        self.stamp("rdy")
        a(f"s_mov_b32 s{sRDY}, 0")
        a(f"""buffer_load_dwordx4 {vr(Q1,4)}, v{vSW}, s[{sWS}:{sWS+3}], s{sT+8} offen sc1
buffer_load_dwordx4 {vr(K1,4)}, v{vBK1}, s[{sWS}:{sWS+3}], s{sT+9} offen
buffer_load_dwordx2 {vr(Q2,2)}, v30, s[{sWS}:{sWS+3}], s{sT+7} offen sc1
buffer_load_dwordx2 {vr(K2,2)}, v31, s[{sWS}:{sWS+3}], s{sT+9} offen
""")
        lw = a.label("w")
        def dma0():
            a(f"s_mov_b32 m0, s{sLDW}\ns_add_u32 s{sT}, s{sT+9}, s{sLDW}")
            self.dma5(sT)
        a(f"""v_cmp_gt_u32 vcc, 32, v{vLANE}
v_mov_b32 v22, 0x3f803f80
s_and_b32 s{sT+6}, s{sWAVE}, 6
s_cmp_lg_u32 s{sT+6}, 4
s_cbranch_scc1 {l3}""")
        dma0()
        a(f"""s_waitcnt vmcnt(5)
s_branch {lw}
{l3}:
s_waitcnt vmcnt(0)
s_cmp_lt_u32 s{sWAVE}, 6
s_cbranch_scc1 {lw}""")
        dma0()
        a(f"""{lw}:
v_cndmask_b32 v{K2}, v22, v{K2}, vcc
v_cndmask_b32 v{K2+1}, v22, v{K2+1}, vcc
v_mfma_f32_32x32x16_bf16 {vr(SS[0],16)}, {vr(K1,4)}, {vr(Q1,4)}, 0
s_nop 0
v_mfma_f32_32x32x8_bf16 {vr(SS[0],16)}, {vr(K2,2)}, {vr(Q2,2)}, {vr(SS[0],16)}
s_nop 12
""")
        self.rowmax16(SS[0], 22)
        self.crosshalf_max(22)
        self.split3(22)
        a(f"""
s_nop 1
v_mfma_f32_32x32x16_bf16 {vr(SS[0],16)}, {vr(K1,4)}, {vr(Q1,4)}, 0
v_mfma_f32_32x32x8_bf16 {vr(SS[0],16)}, {vr(K2,2)}, {vr(Q2,2)}, {vr(SS[0],16)}
""")
        self.stamp("attP")
        self.g16_patterns(vRS, vRSB)
        a(f"""v_add_u32 v{vRSB}, 4096, v{vRSB}
s_cmp_lg_u32 s{sROLE}, 0
s_cselect_b64 vcc, -1, 0
s_nop 1
v_cndmask_b32 v{vRS}, v{vRS}, v{vL16}, vcc
v_cndmask_b32 v{vRSB}, v{vRSB}, v{vL16B}, vcc""")
        self.avm = VM()
        if HALF0:
            a(f"s_and_b32 s{sT}, s{sWAVE}, 6\ns_cmp_lg_u32 s{sT}, 4\ns_cbranch_scc1 {lw}y\ns_waitcnt vmcnt(0)\n{lw}y:")
            for q in range(5): self.avm.issue(("c", 0))
        else:
            a(f"s_cmp_lt_u32 s{sWAVE}, 4\ns_cbranch_scc1 {lw}y\ns_waitcnt vmcnt(0)\n{lw}y:")
        a("s_waitcnt lgkmcnt(0)\ns_barrier")
        self.stamp(0)
        a(f"""
ds_read_b64_tr_b16 {vr(V1[0],2)}, v{vVA+2}
ds_read_b64_tr_b16 {vr(V1[0]+2,2)}, v{vVA+3}
ds_read_b128 {vr(K1,4)}, v{vK1} offset:2560
ds_read_b64 {vr(K2,2)}, v{vK2} offset:2560
ds_read_b64_tr_b16 {vr(V0,2)}, v{vVA}
ds_read_b64_tr_b16 {vr(V0+2,2)}, v{vVA+1}
s_setprio 3
s_nop 3
""")
        self.kv_flags_load(); self.avm.issue("kf"); self.avm.issue("kf")
        self.stamp("attL")
        for t in range(64): self.att_tile(t)
        a("s_nop 0")
        self.stamp("attX")
        a(f"""v_cvt_pk_bf16_f32 v{P+7}, v{SS[1]+14}, v{SS[1]+15}
s_setprio 0
s_nop 0
v_mfma_f32_32x32x16_bf16 {vr(O,16)}, {vr(V1[1],4)}, {vr(P+4,4)}, {vr(O,16)}
""")
        self.tt_off(sT+4, sOF, OSTR)
        a(f"""
s_lshl_b32 s{sT+5}, s{sJ}, 10
s_add_u32 s{sT+5}, s{sT+5}, s{sT+4}
s_lshr_b32 s{sT+6}, s{sJ}, 1
s_lshl_b32 s{sT+6}, s{sT+6}, 9               ; (head/4)*1024 + ((head%4)/2)*512
s_add_u32 s{sT+4}, s{sT+4}, s{sT+6}
s_and_b32 s{sT+6}, s{sJ}, 1
s_lshl_b32 s{sT+6}, s{sT+6}, 3
s_add_u32 s{sT+4}, s{sT+4}, s{sT+6}
s_add_u32 s{sT+4}, s{sT+4}, 32768
v_lshlrev_b32 v23, 30, v{vH}
v_add_u32 v23, v23, v{vL16}
s_mov_b32 s{sT+6}, {f2u(2.0**64):#x}
s_nop 5
v_cmp_lt_f32 vcc, v{O+12}, s{sT+6}
s_cmp_eq_u64 vcc, -1
{'s_nop 0' if 'nofb' in XP else 's_cbranch_scc0 L_att_fallback'}
L_att_fin:
v_rcp_f32 v22, v{O+12}
s_nop 0
""")
        for k in range(6):
            a(f"v_pk_mul_f32 {vr(O+2*k,2)}, {vr(O+2*k,2)}, v[22:23] op_sel_hi:[1,0]")
        for k in range(6):
            a(f"v_cvt_pk_bf16_f32 v{O+k}, v{O+2*k}, v{O+2*k+1}")
        lx, lxd = a.label("xpoll"), a.label("xdone")
        a(f"""
buffer_store_dwordx4 {vr(O,4)}, v{vL16}, s[{sWS}:{sWS+3}], s{sT+5} offen
buffer_store_dwordx2 {vr(O+4,2)}, v23, s[{sWS}:{sWS+3}], s{sT+4} offen
s_waitcnt vmcnt(2)
v_readfirstlane_b32 s{sT}, v{vXC+1}
s_nop 1
v_cmp_ne_u32 vcc, s{sT}, v{vXC+1}
s_cmp_lg_u64 vcc, 0
s_cselect_b32 s{sSLOW}, 1, 0
s_waitcnt lgkmcnt(0)
""")
        self.publish(0, sJ)
        self.stamp(1)

    def att_fallback(self):
        a = self.a
        X = SS[0]
        a(f"""
L_att_fallback:
s_waitcnt vmcnt(0) lgkmcnt(0)
s_mul_i32 s{sT+7}, s{sJ}, 163840
s_add_u32 s{sT+7}, s{sT+7}, s{sQIN}
v_cmp_gt_u32 vcc, 32, v{vLANE}
v_mov_b32 v{vT}, 0
s_nop 0
v_cndmask_b32 v{Q2}, v{vT}, v{Q2}, vcc
v_cndmask_b32 v{Q2+1}, v{vT}, v{Q2+1}, vcc
v_lshlrev_b32 v{vK2}, 30, v{vH}
v_add_u32 v{vK2}, v{vK2}, v{vBK2}              ; lower: tail offset in tile, upper: out of range
v_mov_b32 v22, 0xff800000
s_mov_b32 s{sT+8}, s{sT+7}
s_mov_b32 s{sT+9}, 64
L_fb_max:
buffer_load_dwordx4 {vr(K1,4)}, v{vBK1}, s[{sWS}:{sWS+3}], s{sT+8} offen
buffer_load_dwordx2 {vr(K2,2)}, v{vK2}, s[{sWS}:{sWS+3}], s{sT+8} offen
s_waitcnt vmcnt(0)
v_mfma_f32_32x32x16_bf16 {vr(X,16)}, {vr(K1,4)}, {vr(Q1,4)}, 0
v_mfma_f32_32x32x8_bf16 {vr(X,16)}, {vr(K2,2)}, {vr(Q2,2)}, {vr(X,16)}
s_nop 15
""")
        self.rowmax16(X, 22, init=True)
        a(f"""
s_add_u32 s{sT+8}, s{sT+8}, 2560
s_sub_u32 s{sT+9}, s{sT+9}, 1
s_cmp_lg_u32 s{sT+9}, 0
s_cbranch_scc1 L_fb_max
""")
        self.crosshalf_max(22)
        self.split3(22)
        a(f"""
s_mul_i32 s{sT+8}, s{sWAVE}, 2560
s_add_u32 s{sT+8}, s{sT+8}, {MISC + 512 - 1024}
v_mad_u32_u24 v{vVA}, s{sT+8}, v{vMV}, v{vBV}
v_mad_u32_u24 v{vVA+1}, s{sT+8}, v{vMV}, v{vBV+1}
v_mad_u32_u24 v{vVA+2}, s{sT+8}, v{vMV}, v{vBV+2}
v_mad_u32_u24 v{vVA+3}, s{sT+8}, v{vMV}, v{vBV+3}
v_add_u32 v{vK1}, s{sT+8}, v{vL16}
v_lshlrev_b32 v{SS[1]}, 3, v{vLANE}
v_add_u32 v{SS[1]+1}, s{sT+8}, v{SS[1]}
s_mov_b32 s{sT+8}, s{sT+7}
s_mov_b32 s{sT+9}, 64
""")
        for k in range(16): a(f"v_mov_b32 v{O+k}, 0")
        a(f"""
L_fb_pv:
buffer_load_dwordx4 {vr(K1,4)}, v{vBK1}, s[{sWS}:{sWS+3}], s{sT+8} offen
buffer_load_dwordx2 {vr(K2,2)}, v{vK2}, s[{sWS}:{sWS+3}], s{sT+8} offen
buffer_load_dwordx4 {vr(V0,4)}, v{vL16}, s[{sWS}:{sWS+3}], s{sT+8} offen offset:1024
buffer_load_dwordx2 {vr(V1[0],2)}, v{SS[1]}, s[{sWS}:{sWS+3}], s{sT+8} offen offset:2048
v_cmp_gt_u32 vcc, 32, v{vLANE}
v_mov_b32 v{vT}, 0x3f803f80
s_waitcnt vmcnt(0)
v_cndmask_b32 v{K2}, v{vT}, v{K2}, vcc
v_cndmask_b32 v{K2+1}, v{vT}, v{K2+1}, vcc
ds_write_b128 v{vK1}, {vr(V0,4)} offset:1024
ds_write_b64 v{SS[1]+1}, {vr(V1[0],2)} offset:2048
v_mfma_f32_32x32x16_bf16 {vr(X,16)}, {vr(K1,4)}, {vr(Q1,4)}, 0
v_mfma_f32_32x32x8_bf16 {vr(X,16)}, {vr(K2,2)}, {vr(Q2,2)}, {vr(X,16)}
s_waitcnt lgkmcnt(0)
ds_read_b64_tr_b16 {vr(V0,2)}, v{vVA}
ds_read_b64_tr_b16 {vr(V0+2,2)}, v{vVA+1}
ds_read_b64_tr_b16 {vr(V1[0],2)}, v{vVA+2}
ds_read_b64_tr_b16 {vr(V1[0]+2,2)}, v{vVA+3}
s_nop 12
""")
        for k in range(16): a(f"v_exp_f32 v{X+k}, v{X+k}")
        a("s_nop 0")
        for k in range(8): a(f"v_cvt_pk_bf16_f32 v{P+k}, v{X+2*k}, v{X+2*k+1}")
        a(f"""
s_waitcnt lgkmcnt(0)
s_nop 1
v_mfma_f32_32x32x16_bf16 {vr(O,16)}, {vr(V0,4)}, {vr(P,4)}, {vr(O,16)}
v_mfma_f32_32x32x16_bf16 {vr(O,16)}, {vr(V1[0],4)}, {vr(P+4,4)}, {vr(O,16)}
s_add_u32 s{sT+8}, s{sT+8}, 2560
s_sub_u32 s{sT+9}, s{sT+9}, 1
s_cmp_lg_u32 s{sT+9}, 0
s_cbranch_scc1 L_fb_pv
s_nop 15
s_branch L_att_fin
""")

    def prof_store(self, final=True):
        a = self.a
        if not self.prof: return
        a(f"""
s_waitcnt lgkmcnt(0)
{'s_memrealtime' if self.prof == 2 else 's_memtime'} s[{sPROF+22}:{sPROF+23}]
s_lshl_b32 s{sT}, s{sKID}, 8
s_add_u32 s{sT}, s{sT}, s2
s_lshl_b32 s{sT}, s{sT}, 3
s_add_u32 s{sT}, s{sT}, s{sWAVE}
s_lshl_b32 s{sT}, s{sT}, 6
s_add_u32 s{sT}, s{sT}, {PROF}
v_mov_b32 v{vT}, 0
s_waitcnt lgkmcnt(0)
s_mov_b64 exec, 1""")
        for i in range(12):
            a(f"v_mov_b32 v{vT+1}, s{sPROF+2*i}\nbuffer_store_dword v{vT+1}, v{vT}, s[{sWS}:{sWS+3}], s{sT} offen offset:{4*i}")
        a(f"v_mov_b32 v{vT+1}, s99\nbuffer_store_dword v{vT+1}, v{vT}, s[{sWS}:{sWS+3}], s{sT} offen offset:48")
        a(f"v_mov_b32 v{vT+1}, s{sSLOW}\nbuffer_store_dword v{vT+1}, v{vT}, s[{sWS}:{sWS+3}], s{sT} offen offset:52")
        if final: a("s_waitcnt vmcnt(0)")
        a(f"s_memrealtime s[100:101]\ns_waitcnt lgkmcnt(0)")
        a(f"v_mov_b32 v{vT+1}, s3\nbuffer_store_dword v{vT+1}, v{vT}, s[{sWS}:{sWS+3}], s{sT} offen offset:56")
        a(f"v_mov_b32 v{vT+1}, s100\nbuffer_store_dword v{vT+1}, v{vT}, s[{sWS}:{sWS+3}], s{sT} offen offset:60")
        if not final:
            a("s_mov_b64 exec, -1\ns_mov_b32 s3, s100")
            a(f"s_mov_b32 s99, s{sPROF+22}\ns_add_u32 s{sKID}, s{sKID}, 1")
            for i in range(12): a(f"s_mov_b64 s[{sPROF+2*i}:{sPROF+2*i+1}], 0")


def gen_main(a, prof=False):
    g = Gen(a, prof)
    a("L_layer:")
    g.prof_store(False)
    def params(k, qin, qout, res, stq, actq, of, x1f, hf, st1):
        for r, v in ((sQIN, qin), (sQOUT, qout), (sRES, res), (sFLG, A_FL + k*4096), (sSTQ, stq), (sACTQ, actq), (sOF, of), (sX1F, x1f), (sHF, hf), (sST1, st1)):
            a(f"s_mov_b32 s{r}, {v:#x}")
    a(f"s_cmp_lg_u32 s{sLAST}, 0\ns_cbranch_scc1 L_par2")
    params(0, QKV[0], QKV[1], X1F[0], STAT[2], X2F, OF[0], X1F[0], HF[0], STAT[1])
    a(f"s_branch L_par3\nL_par2:\ns_load_dwordx2 s[{sT}:{sT+1}], s[0:1], 64")
    params(1, QKV[1], 0, X2F, 0, 0, OF[1], X1F[1], HF[1], STAT[3])
    a("s_waitcnt lgkmcnt(0)")
    srd(a, sOUT, sT, S*D*2)
    a(f"""L_par3:
s_and_b32 s{sCB}, s{sJ}, 7
s_lshr_b32 s{sRB}, s{sJ}, 3
s_and_b32 s{sCB2}, s{sJ}, 15
s_lshr_b32 s{sRB2}, s{sJ}, 4
s_and_b32 s{sT2}, s{sWAVE}, 1
s_bfe_u32 s{sKH}, s{sWAVE}, 0x10001
s_mul_i32 s{sAR}, s{sG}, {AST}
s_add_u32 s{sAR}, s{sAR}, {ARENA}
s_add_u32 s{sFLG}, s{sFLG}, s{sAR}
s_add_u32 s{sRES}, s{sRES}, s{sAR}
s_add_u32 s{sSTQ}, s{sSTQ}, s{sAR}
s_add_u32 s{sACTQ}, s{sACTQ}, s{sAR}
s_add_u32 s{sOF}, s{sOF}, s{sAR}
s_add_u32 s{sX1F}, s{sX1F}, s{sAR}
s_add_u32 s{sHF}, s{sHF}, s{sAR}
s_add_u32 s{sST1}, s{sST1}, s{sAR}
s_mul_i32 s{sT+6}, s{sG}, {8*2560}
s_add_u32 s{sQOUT}, s{sQOUT}, s{sT+6}
s_and_b32 s{sLDW}, s{sWAVE}, 3
s_mul_i32 s{sLDW}, s{sLDW}, 5120
s_lshr_b32 s{sROLE}, s{sWAVE}, 2
s_mul_i32 s{sLDR}, s{sWAVE}, 5120
s_mul_i32 s{sWO}, s{sCB}, 102400
s_add_u32 s{sWO}, s{sWO}, {WO_F}
s_add_u32 s{sWO}, s{sWO}, s{sLDW}
s_mul_i32 s{sW1}, s{sCB2}, 122880
s_add_u32 s{sW1}, s{sW1}, {W1_F}
s_add_u32 s{sW1}, s{sW1}, s{sLDW}
s_mul_i32 s{sW2}, s{sCB}, 245760
s_add_u32 s{sW2}, s{sW2}, {W2_F}
s_add_u32 s{sW2}, s{sW2}, s{sLDW}
s_mul_i32 s{sWQ}, s{sCB2}, 163840
s_add_u32 s{sWQ}, s{sWQ}, {WQKV_F}
s_add_u32 s{sWQ}, s{sWQ}, s{sLDW}
s_mul_i32 s{sSRC}, s{sJ}, 163840
s_add_u32 s{sSRC}, s{sSRC}, s{sQIN}
s_add_u32 s{sSRC}, s{sSRC}, s{sLDW}
s_lshl_b32 s{sT}, s{sLAST}, 15
s_add_u32 s{sT}, s{sT}, {QF}
s_mul_i32 s{sT+1}, s{sJ}, 0x2aab
s_lshr_b32 s{sT+1}, s{sT+1}, 16
s_lshl_b32 s{sT+1}, s{sT+1}, 11
s_add_u32 s{sT+1}, s{sT+1}, s{sT}
s_cmp_lg_u32 s{sROLE}, 0
s_cselect_b32 s{sPUB}, s{sT+1}, s{sPUB}   ; flag row of Q (loader waves)
s_add_u32 s{sQFK}, s{sJ}, 32
s_mul_i32 s{sQFK}, s{sQFK}, 0x2aab
s_lshr_b32 s{sQFK}, s{sQFK}, 16
s_lshl_b32 s{sQFK}, s{sQFK}, 11
s_add_u32 s{sQFK}, s{sQFK}, s{sT}
s_add_u32 s{sQFV}, s{sJ}, 64
s_mul_i32 s{sQFV}, s{sQFV}, 0x2aab
s_lshr_b32 s{sQFV}, s{sQFV}, 16
s_lshl_b32 s{sQFV}, s{sQFV}, 11
s_add_u32 s{sQFV}, s{sQFV}, s{sT}
""")
    g.attention()
    g.left = {6: 0, 7: 0}
    g.acq = 7
    a(f"s_cmp_ge_u32 s{sWAVE}, 4\ns_cbranch_scc1 L_loader_main")
    if CPRIO: a(f's_setprio {CPRIO}')
    g.b2load(); g.aux_load(True)
    R = g.fifo_reg(E_RES)
    a(f"s_cmp_eq_u32 s{sLAST}, 0\ns_cbranch_scc1 L_res_x")
    a(f"""s_mov_b32 s{sT}, 0xffff0000
s_mov_b32 s{sT+1}, 0xffff0000
v_cndmask_b32 v{R+16}, v{R+16}, v{R+18}, s[{sT}:{sT+1}]
v_cndmask_b32 v{R+17}, v{R+17}, v{R+19}, s[{sT}:{sT+1}]""")
    g.unpack(OWN, R, 4)
    g.unpack(OWN+8, R+8, 4)
    g.unpack(OWN+16, R+16, 2)
    a("s_branch L_res_done\nL_res_x:")
    g.unpack(OWN, RX, 10)
    a("L_res_done:")
    if 'addsleep' in XP:
        a("s_sleep 79")
    if 'addmfma' in XP:
        for k in range(156): a(f"v_mfma_f32_32x32x16_bf16 {vr(ACC+16*(k%2),16)}, {vr(C13+4*(k%10),4)}, {vr(C13+4*((k*3+1)%10),4)}, {vr(ACC+16*(k%2),16)}")
    g.barrier(need=12, tag="E0")
    g.phase_n80(0, 8, 5)
    g.phase_w1(13)
    g.phase_n80(1, 19, 12)
    nb_last = len(g.bar)
    a("L_qkv_phase:")
    g.vm.drain()
    g.phase_qkv(31)
    a(f"s_lshl3_add_u32 s{sT+1}, s{sG}, s{sTL}")
    g.pub_addr(sT+1, 1)
    a(f"""s_lshl_b32 s{sRDY}, s{sTL}, 7
s_lshl2_add_u32 s{sRDY}, s{sCB2}, s{sRDY}
s_add_u32 s{sRDY}, s{sRDY}, s{sFLG}
s_add_u32 s{sRDY}, s{sRDY}, {4096 + 3072}
L_next:
s_mov_b32 s{sLAST}, 1
s_branch L_layer""")
    a("L_done:")
    if DIAG:
        g.stamp("END")
        if 'wbend' in XP: a("s_waitcnt vmcnt(0)\ns_sleep 100\nbuffer_wbl2 sc1\ns_waitcnt vmcnt(0)")
        sh = "" if DIAGI == "s_memrealtime" else "s_lshr_b32 s62, s62, 4"
        a(f"""s_cmp_lg_u32 s2, 100
s_cbranch_scc1 L_end
s_cmp_lg_u32 s{sWAVE}, 0
s_cbranch_scc1 L_end
s_waitcnt lgkmcnt(0)
s_sub_u32 s62, s62, s66
{sh}
s_add_u32 s62, s62, 15000
L_diag:
s_memrealtime s[64:65]
s_waitcnt lgkmcnt(0)
s_sub_u32 s64, s64, s60
s_cmp_lt_u32 s64, s62
s_cbranch_scc1 L_diag""")
    g.prof_store()
    a("L_end:\ns_endpgm")
    g.final_out()
    a("s_branch L_done")
    g.att_fallback()
    a.L.extend(g.oolbuf)
    a(f"L_loader_main:\ns_cmp_lg_u32 s{sLAST}, 0\ns_cbranch_scc1 L_loader_last")
    g.loader3(g.bar, 38, PLAN, FL[0])
    a("s_branch L_next\nL_loader_last:")
    g.loader3(g.bar[:nb_last], 30, PLAN, FL[1])
    a("s_branch L_done")
    return g
```
